```python
import torch

def _softmax(x, axis=-1):
    return torch.softmax(x, dim=axis)
def _gelu(x):
    return torch.nn.functional.gelu(x, approximate="tanh")
def _silu(x):
    return torch.nn.functional.silu(x)
def _sigmoid(x):
    return torch.sigmoid(x)
def _layernorm(x, axis=-1, eps=1e-5):
    m = x.mean(dim=axis, keepdim=True)
    v = x.var(dim=axis, keepdim=True, unbiased=False)
    return (x - m) / torch.sqrt(v + eps)
def _scatter_add(tgt, idx, src, axis=0):
    return tgt.clone().index_add_(axis, idx, src)
def _segment_sum(src, seg, n):
    out = torch.zeros((n,) + src.shape[1:], dtype=src.dtype)
    return out.index_add_(0, seg, src)
def _pad(x, pw):
    flat = tuple(v for pair in reversed(pw) for v in pair)
    return torch.nn.functional.pad(x, flat)

kernel_name = 'standalone__softmax_full_bidir__decode'

def setup_inputs():

    _w = (lambda a: (lambda t: t.to(torch.bfloat16) if t.is_floating_point() else t)(torch.as_tensor(a)))
    B, H, Sq, Skv, Dh = 4, 16, 1, 16384, 256
    return {
        "q": _w((lambda *s: torch.randn(*s, dtype=torch.bfloat16) * 0.8)(B, H, Sq, Dh)),
        "k": _w((lambda *s: torch.randn(*s, dtype=torch.bfloat16) * 0.8)(B, H, Skv, Dh)),
        "v": _w((lambda *s: torch.randn(*s, dtype=torch.bfloat16) * 0.05)(B, H, Skv, Dh)),
    }

def reference(q, k, v):
    scale = q.shape[-1] ** -0.5
    scores = torch.einsum('bhqd,bhkd->bhqk', q, k) * scale
    attn = _softmax(scores, axis=-1)
    return torch.einsum('bhqk,bhkd->bhqd', attn, v)
```

```python
import argparse, math, sys

NAME = "standalone__softmax_full_bidir__decode"
B, H, SKV, DH = 4, 16, 16384, 256
NH = B * H
ROWB = DH * 2
HEADB = SKV * ROWB
LOG2E = 1.4426950408889634

HEADER = """; Kernarg layout for this problem (48 bytes, ptrs only, base s[0:1]):
"""

import struct
def f32hex(x):
    return "0x%08x" % struct.unpack("<I", struct.pack("<f", x))[0]

class A:
    def __init__(self):
        self.l = []
    def __call__(self, s):
        self.l.append("    " + s)
    def label(self, s):
        self.l.append(s + ":")
    def c(self, s):
        self.l.append("    ; " + s)
    def text(self):
        return "\n".join(self.l) + "\n"

def vr(a, n=4):
    return "v[%d:%d]" % (a, a + n - 1)
def sr(a, n=4):
    return "s[%d:%d]" % (a, a + n - 1)

def gen(P):
    W = P.waves
    NWG = P.nwg
    NS = P.stages
    MG = P.mg
    S = NWG // NH
    assert NWG % NH == 0
    TK = 4 * MG
    TB = TK * ROWB
    keys_wg = SKV // S
    tiles_wg = keys_wg // TK
    assert tiles_wg % W == 0
    NT = tiles_wg // W
    assert NT % NS == 0
    NL = 2 * MG
    pol = (" " + P.policy) if P.policy else ""
    REC = 1024 + 128
    c_hex = f32hex(LOG2E / 16.0)

    a = A()
    sK, sV, sQ, sW = 4, 8, 12, 16
    sOff, sOff2, sCnt, sHead, sSplit, sWave, sC = 20, 21, 22, 23, 24, 25, 26
    sT0, sT1 = 28, 29
    sPtr = 32
    sO = 44
    sD = 48
    vKoff, vVoff = 1, 2
    vLane = 3
    vQ = 4
    vMask = 12
    vM, vL, vMc, vAl = 16, 17, 18, 19
    vO = 20
    vC = 28
    vS = 44
    vT = 48
    vBuf = 64
    def Kreg(s, i): return vBuf + s * (8 * NL) + 4 * i
    def Vreg(s, i): return vBuf + s * (8 * NL) + 4 * NL + 4 * i
    nvgpr = vBuf + NS * 8 * NL
    assert MG <= 4

    def load_tile(base_fn, s, srd, voff):
        for m in range(MG):
            for j in range(2):
                off = m * 2048 + j * 256
                so = sOff
                if off >= 4096:
                    off -= 4096
                    so = sOff2
                a("buffer_load_dwordx4 %s, v%d, %s, s%d offen offset:%d%s" %
                  (vr(base_fn(s, m * 2 + j)), voff, sr(srd), so, off, pol))

    a.c("uniform exit for workgroups past the data")
    a("s_cmp_ge_u32 s2, %d" % NWG)
    a("s_cbranch_scc1 L_done")
    a("s_load_dwordx4 %s, s[0:1], 0" % sr(sPtr))
    a("s_load_dwordx4 %s, s[0:1], 16" % sr(sPtr + 4))
    a("s_load_dwordx4 %s, s[0:1], 32" % sr(sPtr + 8))
    a("v_and_b32 v%d, 63, v0" % vLane)
    a("v_lshrrev_b32 v%d, 6, v0" % vT)
    a("v_lshrrev_b32 v%d, 4, v%d" % (vT + 1, vLane))
    a("v_readfirstlane_b32 s%d, v%d" % (sWave, vT))
    if P.headmajor:
        a("s_lshr_b32 s%d, s2, %d" % (sHead, int(math.log2(S))))
        a("s_and_b32 s%d, s2, %d" % (sSplit, S - 1))
    else:
        a("s_and_b32 s%d, s2, %d" % (sHead, NH - 1))
        a("s_lshr_b32 s%d, s2, %d" % (sSplit, 6))
    a("v_bfe_u32 v%d, v%d, 2, 2" % (vT + 2, vLane))
    a("v_lshlrev_b32 v%d, 9, v%d" % (vT + 2, vT + 2))
    a("v_lshl_add_u32 v%d, v%d, 6, v%d" % (vT + 2, vT + 1, vT + 2))
    a("v_and_b32 v%d, 3, v%d" % (vT + 3, vLane))
    a("v_lshl_add_u32 v%d, v%d, 4, v%d" % (vKoff, vT + 3, vT + 2))
    a("v_and_b32 v%d, 15, v%d" % (vT + 4, vLane))
    a("v_lshlrev_b32 v%d, 4, v%d" % (vT + 4, vT + 4))
    a("v_lshl_add_u32 v%d, v%d, 9, v%d" % (vVoff, vT + 1, vT + 4))
    a("v_lshlrev_b32 v%d, 4, v%d" % (vT + 3, vT + 3))
    a("v_lshl_add_u32 v%d, v%d, 6, v%d" % (vT + 5, vT + 1, vT + 3))
    a("s_lshr_b32 s%d, s%d, %d" % (sT1, sHead, 32 - 23))
    a("s_lshl_b32 s%d, s%d, 23" % (sT0, sHead))
    a("s_mul_i32 s%d, s%d, %d" % (sOff, sSplit, keys_wg * ROWB))
    a("s_add_u32 s%d, s%d, s%d" % (sT0, sT0, sOff))
    a("s_addc_u32 s%d, s%d, 0" % (sT1, sT1))
    if P.wavecontig:
        a("s_mul_i32 s%d, s%d, %d" % (sOff, sWave, NT * TB))
        stride = TB
    else:
        a("s_mul_i32 s%d, s%d, %d" % (sOff, sWave, TB))
        stride = W * TB
    a("s_add_u32 s%d, s%d, 4096" % (sOff2, sOff))
    a("s_waitcnt lgkmcnt(0)")
    a("s_add_u32 s%d, s%d, s%d" % (sK, sPtr + 2, sT0))
    a("s_addc_u32 s%d, s%d, s%d" % (sK + 1, sPtr + 3, sT1))
    a("s_and_b32 s%d, s%d, 0xffff" % (sK + 1, sK + 1))
    a("s_mov_b32 s%d, %d" % (sK + 2, keys_wg * ROWB))
    a("s_mov_b32 s%d, 0x00020000" % (sK + 3))
    a("s_add_u32 s%d, s%d, s%d" % (sV, sPtr + 4, sT0))
    a("s_addc_u32 s%d, s%d, s%d" % (sV + 1, sPtr + 5, sT1))
    a("s_and_b32 s%d, s%d, 0xffff" % (sV + 1, sV + 1))
    a("s_mov_b32 s%d, %d" % (sV + 2, keys_wg * ROWB))
    a("s_mov_b32 s%d, 0x00020000" % (sV + 3))
    a("s_mov_b32 s%d, s%d" % (sQ, sPtr))
    a("s_and_b32 s%d, s%d, 0xffff" % (sQ + 1, sPtr + 1))
    a("s_mov_b32 s%d, %d" % (sQ + 2, NH * ROWB))
    a("s_mov_b32 s%d, 0x00020000" % (sQ + 3))
    a("s_lshl_b32 s%d, s%d, 9" % (sT0, sHead))
    a("buffer_load_dwordx4 %s, v%d, %s, s%d offen" % (vr(vQ), vT + 5, sr(sQ), sT0))
    a("buffer_load_dwordx4 %s, v%d, %s, s%d offen offset:256" % (vr(vQ + 4), vT + 5, sr(sQ), sT0))
    for s in range(NS):
        load_tile(Kreg, s, sK, vKoff)
        load_tile(Vreg, s, sV, vVoff)
        a("s_add_u32 s%d, s%d, %d" % (sOff, sOff, stride))
        a("s_add_u32 s%d, s%d, %d" % (sOff2, sOff2, stride))
    a("s_mov_b32 s%d, s%d" % (sW, sPtr + 10))
    a("s_and_b32 s%d, s%d, 0xffff" % (sW + 1, sPtr + 11))
    a("s_mov_b32 s%d, %d" % (sW + 2, NWG * REC))
    a("s_mov_b32 s%d, 0x00020000" % (sW + 3))
    a("s_mov_b32 s%d, s%d" % (sO, sPtr + 6))
    a("s_and_b32 s%d, s%d, 0xffff" % (sO + 1, sPtr + 7))
    a("s_mov_b32 s%d, %d" % (sO + 2, NH * ROWB))
    a("s_mov_b32 s%d, 0x00020000" % (sO + 3))
    a("s_mov_b32 s%d, s%d" % (sD, sPtr + 8))
    a("s_and_b32 s%d, s%d, 0xffff" % (sD + 1, sPtr + 9))
    a("s_mov_b32 s%d, 256" % (sD + 2))
    a("s_mov_b32 s%d, 0x00020000" % (sD + 3))
    a("v_and_b32 v%d, 1, v%d" % (vT, vLane))
    a("v_lshlrev_b32 v%d, 4, v%d" % (vT, vT))
    a("v_mov_b32 v%d, 0xffff" % (vT + 1))
    a("v_lshlrev_b32 v%d, v%d, v%d" % (vT, vT, vT + 1))
    a("v_bfe_u32 v%d, v%d, 1, 2" % (vT + 1, vLane))
    for r in range(4):
        a("v_cmp_eq_u32 vcc, %d, v%d" % (r, vT + 1))
        a("s_nop 1")
        a("v_cndmask_b32 v%d, 0, v%d, vcc" % (vMask + r, vT))
    a("v_mov_b32 v%d, 0xff800000" % vM)
    a("v_mov_b32 v%d, 0" % vL)
    for i in range(8):
        a("v_mov_b32 v%d, 0" % (vO + i))
    a("s_mov_b32 s%d, %s" % (sC, c_hex))
    a("s_mov_b32 s%d, %d" % (sCnt, NT // NS))

    a.label("L_loop")
    for s in range(NS):
        tot = NS * 2 * NL
        a("s_waitcnt vmcnt(%d)" % (tot - NL))
        if not P.nocompute:
            for m in range(MG):
                a("v_mfma_f32_16x16x32_bf16 %s, %s, %s, 0" % (vr(vC + 4 * m), vr(Kreg(s, 2 * m)), vr(vQ)))
            for m in range(MG):
                a("v_mfma_f32_16x16x32_bf16 %s, %s, %s, %s" % (vr(vC + 4 * m), vr(Kreg(s, 2 * m + 1)), vr(vQ + 4), vr(vC + 4 * m)))
        else:
            for i in range(NL):
                a("v_xor_b32 v%d, v%d, v%d" % (vO + (i & 7), vO + (i & 7), Kreg(s, i)))
        load_tile(Kreg, s, sK, vKoff)
        if not P.nocompute:
            a("s_nop 7")
            for m in range(MG):
                a("v_mov_b32_dpp v%d, v%d quad_perm:[0,0,0,0] row_mask:0xf bank_mask:0xf" % (vS + m, vC + 4 * m))
            for r in range(1, 4):
                if MG < 4:
                    a("s_nop %d" % (2 - 1 if MG >= 2 else 1))
                for m in range(MG):
                    a("v_add_f32_dpp v%d, v%d, v%d quad_perm:[%d,%d,%d,%d] row_mask:0xf bank_mask:0xf" %
                      (vS + m, vC + 4 * m + r, vS + m, r, r, r, r))
            if MG == 4:
                a("v_max3_f32 v%d, v%d, v%d, v%d" % (vT, vS, vS + 1, vS + 2))
                a("v_max3_f32 v%d, v%d, v%d, v%d" % (vT, vT, vS + 3, vM))
            elif MG == 2:
                a("v_max3_f32 v%d, v%d, v%d, v%d" % (vT, vS, vS + 1, vM))
            else:
                a("v_max_f32 v%d, v%d, v%d" % (vT, vS, vM))
            a("v_mov_b32 v%d, v%d" % (vT + 1, vT))
            a("s_nop 1")
            a("v_permlane16_swap_b32 v%d, v%d" % (vT, vT + 1))
            a("s_nop 1")
            a("v_max_f32 v%d, v%d, v%d" % (vT, vT, vT + 1))
            a("v_mov_b32 v%d, v%d" % (vT + 1, vT))
            a("s_nop 1")
            a("v_permlane32_swap_b32 v%d, v%d" % (vT, vT + 1))
            a("s_nop 1")
            a("v_max_f32 v%d, v%d, v%d" % (vT, vT, vT + 1))
            a("v_sub_f32 v%d, v%d, v%d" % (vAl, vM, vT))
            a("v_mul_f32 v%d, s%d, v%d" % (vAl, sC, vAl))
            a("v_mul_f32 v%d, s%d, v%d" % (vMc, sC, vT))
            a("v_exp_f32 v%d, v%d" % (vAl, vAl))
            a("v_mov_b32 v%d, v%d" % (vM, vT))
            for m in range(MG):
                a("v_fma_f32 v%d, v%d, s%d, -v%d" % (vS + m, vS + m, sC, vMc))
            for m in range(MG):
                a("v_exp_f32 v%d, v%d" % (vS + m, vS + m))
            a("v_mul_f32 v%d, v%d, v%d" % (vL, vL, vAl))
            for i in range(8):
                a("v_mul_f32 v%d, v%d, v%d" % (vO + i, vO + i, vAl))
            for m in range(MG):
                a("v_add_f32 v%d, v%d, v%d" % (vL, vL, vS + m))
            for m in range(MG):
                a("v_cvt_pk_bf16_f32 v%d, v%d, v%d" % (vS + m, vS + m, vS + m))
            for m in range(MG):
                for r in range(4):
                    a("v_and_b32 v%d, v%d, v%d" % (vC + 4 * m + r, vS + m, vMask + r))
        a("s_waitcnt vmcnt(%d)" % (tot - NL))
        if not P.nocompute:
            a("s_nop 1")
            for m in range(MG):
                for h in range(2):
                    a("v_mfma_f32_16x16x32_bf16 %s, %s, %s, %s" % (vr(vO + 4 * h), vr(vC + 4 * m), vr(Vreg(s, 2 * m + h)), vr(vO + 4 * h)))
        else:
            for i in range(NL):
                a("v_xor_b32 v%d, v%d, v%d" % (vO + (i & 7), vO + (i & 7), Vreg(s, i)))
        load_tile(Vreg, s, sV, vVoff)
        a("s_add_u32 s%d, s%d, %d" % (sOff, sOff, stride))
        a("s_add_u32 s%d, s%d, %d" % (sOff2, sOff2, stride))
    a("s_sub_u32 s%d, s%d, 1" % (sCnt, sCnt))
    a("s_cmp_lg_u32 s%d, 0" % sCnt)
    a("s_cbranch_scc1 L_loop")

    a("s_nop 7")
    a("s_nop 7")
    a("v_mov_b32 v%d, v%d" % (vT + 1, vL))
    a("s_nop 1")
    a("v_permlane16_swap_b32 v%d, v%d" % (vL, vT + 1))
    a("s_nop 1")
    a("v_add_f32 v%d, v%d, v%d" % (vL, vL, vT + 1))
    a("v_mov_b32 v%d, v%d" % (vT + 1, vL))
    a("s_nop 1")
    a("v_permlane32_swap_b32 v%d, v%d" % (vL, vT + 1))
    a("s_nop 1")
    a("v_add_f32 v%d, v%d, v%d" % (vL, vL, vT + 1))
    a("v_and_b32 v%d, 15, v%d" % (vT, vLane))
    a("v_lshlrev_b32 v%d, 5, v%d" % (vT, vT))
    a("v_bfe_u32 v%d, v%d, 4, 1" % (vT + 1, vLane))
    a("v_lshl_add_u32 v%d, v%d, 4, v%d" % (vT, vT + 1, vT))
    a("s_lshl_b32 s%d, s%d, 10" % (sT0, sWave))
    a("v_add_u32 v%d, s%d, v%d" % (vT, sT0, vT))
    a("ds_write_b128 v%d, %s" % (vT, vr(vO)))
    a("ds_write_b128 v%d, %s offset:512" % (vT, vr(vO + 4)))
    a("s_lshl_b32 s%d, s%d, 2" % (sT0, sWave))
    a("v_mov_b32 v%d, s%d" % (vT + 2, sT0))
    a("ds_write_b32 v%d, v%d offset:%d" % (vT + 2, vM, W * 1024))
    a("ds_write_b32 v%d, v%d offset:%d" % (vT + 2, vL, W * 1024 + 64))
    a("s_waitcnt vmcnt(0) lgkmcnt(0)")
    a("s_barrier")
    a("s_cmp_lg_u32 s%d, 0" % sWave)
    a("s_cbranch_scc1 L_done")
    vm, vl, vo = 64, 80, 96
    a("v_mov_b32 v%d, 0" % vT)
    for i in range(0, W, 4):
        a("ds_read_b128 %s, v%d offset:%d" % (vr(vm + i), vT, W * 1024 + 4 * i))
        a("ds_read_b128 %s, v%d offset:%d" % (vr(vl + i), vT, W * 1024 + 64 + 4 * i))
    a("v_lshlrev_b32 v%d, 4, v%d" % (vT + 1, vLane))
    a("s_waitcnt lgkmcnt(0)")
    a("v_max_f32 v%d, v%d, v%d" % (vM, vm, vm + 1))
    for i in range(2, W, 2):
        a("v_max3_f32 v%d, v%d, v%d, v%d" % (vM, vM, vm + i, vm + i + 1))
    a("v_mul_f32 v%d, s%d, v%d" % (vMc, sC, vM))
    for i in range(W):
        a("v_fma_f32 v%d, v%d, s%d, -v%d" % (vm + i, vm + i, sC, vMc))
    for i in range(W):
        a("v_exp_f32 v%d, v%d" % (vm + i, vm + i))
    a("s_nop 0")
    a("v_mul_f32 v%d, v%d, v%d" % (vL, vm, vl))
    for i in range(1, W):
        a("v_fmac_f32 v%d, v%d, v%d" % (vL, vm + i, vl + i))
    for i0 in range(0, W, 4):
        for i in range(4):
            a("ds_read_b128 %s, v%d offset:%d" % (vr(vo + 4 * i), vT + 1, (i0 + i) * 1024))
        for i in range(4):
            a("s_waitcnt lgkmcnt(%d)" % (3 - i))
            for r in range(4):
                if i0 + i == 0:
                    a("v_mul_f32 v%d, v%d, v%d" % (vO + r, vm, vo + r))
                else:
                    a("v_fmac_f32 v%d, v%d, v%d" % (vO + r, vm + i0 + i, vo + 4 * i + r))
    a("s_mul_i32 s%d, s2, %d" % (sT0, REC))
    a("v_mov_b32 v%d, v%d" % (vT + 2, vM))
    a("v_mov_b32 v%d, v%d" % (vT + 3, vL))
    a("v_mov_b32 v%d, 0" % (vT + 4))
    a("buffer_store_dwordx4 %s, v%d, %s, s%d offen sc0 sc1" % (vr(vO), vT + 1, sr(sW), sT0))
    a("s_mov_b64 %s, exec" % sr(30, 2))
    a("s_mov_b64 exec, 1")
    a("buffer_store_dwordx2 %s, v%d, %s, s%d offen offset:1024 sc0 sc1" % (vr(vT + 2, 2), vT + 4, sr(sW), sT0))
    a("s_waitcnt vmcnt(0)")
    a("v_mov_b32 v%d, 1" % (vT + 5))
    a("s_lshl_b32 s%d, s%d, 2" % (sT1, sHead))
    a("buffer_atomic_add v%d, v%d, %s, s%d offen sc0" % (vT + 5, vT + 4, sr(sD), sT1))
    a("s_waitcnt vmcnt(0)")
    a("v_readfirstlane_b32 s%d, v%d" % (sT1, vT + 5))
    a("s_nop 3")
    a("s_mov_b64 exec, %s" % sr(30, 2))
    a("s_cmp_lg_u32 s%d, %d" % (sT1, S - 1))
    a("s_cbranch_scc1 L_done")
    if P.headmajor:
        a("s_mul_i32 s%d, s%d, %d" % (sT0, sHead, S * REC))
        rstride = REC
    else:
        a("s_mul_i32 s%d, s%d, %d" % (sT0, sHead, REC))
        rstride = 64 * REC
    a("v_mov_b32 v%d, 0" % (vT + 4))
    G = min(S, 8)
    first = True
    vml = 64
    assert S <= 16
    for i in range(S):
        a("s_add_u32 s%d, s%d, %d" % (sT1, sT0, i * rstride))
        a("buffer_load_dwordx2 %s, v%d, %s, s%d offen offset:1024 sc0 sc1" % (vr(vml + 2 * i, 2), vT + 4, sr(sW), sT1))
    vo2 = 96
    ng = (S + G - 1) // G
    def load_group(g0):
        for i in range(g0, min(S, g0 + G)):
            a("s_add_u32 s%d, s%d, %d" % (sT1, sT0, i * rstride))
            a("buffer_load_dwordx4 %s, v%d, %s, s%d offen sc0 sc1" % (vr(vo2 + 4 * (i - g0)), vT + 1, sr(sW), sT1))
    load_group(0)
    a("s_waitcnt vmcnt(%d)" % min(G, S))
    if S == 1:
        a("v_mov_b32 v%d, v%d" % (vM, vml))
    else:
        a("v_max_f32 v%d, v%d, v%d" % (vM, vml, vml + 2))
        for i in range(2, S):
            a("v_max_f32 v%d, v%d, v%d" % (vM, vM, vml + 2 * i))
    a("v_mul_f32 v%d, s%d, v%d" % (vMc, sC, vM))
    for i in range(S):
        a("v_fma_f32 v%d, v%d, s%d, -v%d" % (vml + 2 * i, vml + 2 * i, sC, vMc))
    for i in range(S):
        a("v_exp_f32 v%d, v%d" % (vml + 2 * i, vml + 2 * i))
    a("s_nop 0")
    a("v_mul_f32 v%d, v%d, v%d" % (vL, vml, vml + 1))
    for i in range(1, S):
        a("v_fmac_f32 v%d, v%d, v%d" % (vL, vml + 2 * i, vml + 2 * i + 1))
    a("v_rcp_f32 v%d, v%d" % (vL, vL))
    for g0 in range(0, S, G):
        if g0 > 0:
            load_group(g0)
        a("s_waitcnt vmcnt(0)")
        for i in range(g0, min(S, g0 + G)):
            for r in range(4):
                if i == 0:
                    a("v_mul_f32 v%d, v%d, v%d" % (vO + r, vml, vo2 + r))
                else:
                    a("v_fmac_f32 v%d, v%d, v%d" % (vO + r, vml + 2 * i, vo2 + 4 * (i - g0) + r))
    for r in range(4):
        a("v_mul_f32 v%d, v%d, v%d" % (vO + r, vO + r, vL))
    a("v_cvt_pk_bf16_f32 v%d, v%d, v%d" % (vO, vO, vO + 1))
    a("v_cvt_pk_bf16_f32 v%d, v%d, v%d" % (vO + 1, vO + 2, vO + 3))
    a("v_lshlrev_b32 v%d, 3, v%d" % (vT + 1, vLane))
    a("s_lshl_b32 s%d, s%d, 9" % (sT0, sHead))
    a("buffer_store_dwordx2 %s, v%d, %s, s%d offen" % (vr(vO, 2), vT + 1, sr(sO), sT0))
    a.label("L_done")
    a("s_endpgm")

    lds = W * 1024 + 128
    out = HEADER
    out += "; @launch grid=(%d,1,1) block=(%d,1,1) lds=%d\n" % (NWG, W * 64, lds)
    out += '.amdgcn_target "amdgcn-amd-amdhsa--gfx950"\n.text\n'
    out += ".globl %s_kernel\n.p2align 8\n.type %s_kernel,@function\n%s_kernel:\n" % (NAME, NAME, NAME)
    out += a.text()
    out += '.section .rodata,"a"\n.p2align 6\n.amdhsa_kernel %s_kernel\n' % NAME
    nv = max(nvgpr, 128)
    out += "  .amdhsa_next_free_vgpr %d\n  .amdhsa_next_free_sgpr 64\n  .amdhsa_accum_offset %d\n" % (nv, (nv + 3) // 4 * 4)
    out += "  .amdhsa_group_segment_fixed_size 0\n  .amdhsa_kernarg_size 48\n  .amdhsa_user_sgpr_count 2\n"
    out += "  .amdhsa_user_sgpr_kernarg_segment_ptr 1\n  .amdhsa_system_sgpr_workgroup_id_x 1\n.end_amdhsa_kernel\n"
    return out

def parse(argv=None):
    ap = argparse.ArgumentParser()
    ap.add_argument("--waves", type=int, default=16)
    ap.add_argument("--nwg", type=int, default=256)
    ap.add_argument("--stages", type=int, default=1)
    ap.add_argument("--mg", type=int, default=4)
    ap.add_argument("--policy", default="")
    ap.add_argument("--headmajor", type=int, default=1)
    ap.add_argument("--wavecontig", type=int, default=0)
    ap.add_argument("--nocompute", type=int, default=0)
    ap.add_argument("-o", default="-")
    return ap.parse_args(argv)

if __name__ == "__main__":
    P = parse()
    t = gen(P)
    if P.o == "-":
        sys.stdout.write(t)
    else:
        open(P.o, "w").write(t)
```

```python
import argparse, math, sys

NAME = "standalone__softmax_full_bidir__decode"
B, H, SKV, DH = 4, 16, 16384, 256
NH = B * H
ROWB = DH * 2
HEADB = SKV * ROWB
LOG2E = 1.4426950408889634

HEADER = """; Kernarg layout for this problem (48 bytes, ptrs only, base s[0:1]):
"""

import struct
def f32hex(x):
    return "0x%08x" % struct.unpack("<I", struct.pack("<f", x))[0]

class A:
    def __init__(self):
        self.l = []
    def __call__(self, s):
        self.l.append("    " + s)
    def label(self, s):
        self.l.append(s + ":")
    def c(self, s):
        self.l.append("    ; " + s)
    def text(self):
        return "\n".join(self.l) + "\n"

def vr(a, n=4):
    return "v[%d:%d]" % (a, a + n - 1)
def sr(a, n=4):
    return "s[%d:%d]" % (a, a + n - 1)

def gen(P):
    W = P.waves
    NWG = P.nwg
    NS = P.stages
    MG = P.mg
    S = NWG // NH
    assert NWG % NH == 0
    TK = 4 * MG
    TB = TK * ROWB
    keys_wg = SKV // S
    tiles_wg = keys_wg // TK
    assert tiles_wg % W == 0
    NT = tiles_wg // W
    assert NT % NS == 0
    NL = 2 * MG
    pol = (" " + P.policy) if P.policy else ""
    REC = 1024 + 128
    c_hex = f32hex(LOG2E / 16.0)

    a = A()
    sK, sV, sQ, sW = 4, 8, 12, 16
    sOff, sOff2, sCnt, sHead, sSplit, sWave, sC = 20, 21, 22, 23, 24, 25, 26
    sT0, sT1 = 28, 29
    sPtr = 32
    sO = 44
    sD = 48
    vKoff, vVoff = 1, 2
    vLane = 3
    vQ = 4
    vMask = 12
    vM, vL, vMc, vAl = 16, 17, 18, 19
    vO = 20
    vC = 28
    vS = 44
    vT = 48
    vBuf = 64
    def Kreg(s, i): return vBuf + s * (8 * NL) + 4 * i
    def Vreg(s, i): return vBuf + s * (8 * NL) + 4 * NL + 4 * i
    nvgpr = vBuf + NS * 8 * NL
    assert MG <= 4

    def load_tile(base_fn, s, srd, voff):
        for m in range(MG):
            for j in range(2):
                off = m * 2048 + j * 256
                so = sOff
                if off >= 4096:
                    off -= 4096
                    so = sOff2
                a("buffer_load_dwordx4 %s, v%d, %s, s%d offen offset:%d%s" %
                  (vr(base_fn(s, m * 2 + j)), voff, sr(srd), so, off, pol))

    a.c("uniform exit for workgroups past the data")
    a("s_cmp_ge_u32 s2, %d" % NWG)
    a("s_cbranch_scc1 L_done")
    a("s_load_dwordx4 %s, s[0:1], 0" % sr(sPtr))
    a("s_load_dwordx4 %s, s[0:1], 16" % sr(sPtr + 4))
    a("s_load_dwordx4 %s, s[0:1], 32" % sr(sPtr + 8))
    a("v_and_b32 v%d, 63, v0" % vLane)
    a("v_lshrrev_b32 v%d, 6, v0" % vT)
    a("v_lshrrev_b32 v%d, 4, v%d" % (vT + 1, vLane))
    a("v_readfirstlane_b32 s%d, v%d" % (sWave, vT))
    if P.headmajor:
        a("s_lshr_b32 s%d, s2, %d" % (sHead, int(math.log2(S))))
        a("s_and_b32 s%d, s2, %d" % (sSplit, S - 1))
    else:
        a("s_and_b32 s%d, s2, %d" % (sHead, NH - 1))
        a("s_lshr_b32 s%d, s2, %d" % (sSplit, 6))
    a("v_bfe_u32 v%d, v%d, 2, 2" % (vT + 2, vLane))
    a("v_lshlrev_b32 v%d, 9, v%d" % (vT + 2, vT + 2))
    a("v_lshl_add_u32 v%d, v%d, 6, v%d" % (vT + 2, vT + 1, vT + 2))
    a("v_and_b32 v%d, 3, v%d" % (vT + 3, vLane))
    a("v_lshl_add_u32 v%d, v%d, 4, v%d" % (vKoff, vT + 3, vT + 2))
    a("v_and_b32 v%d, 15, v%d" % (vT + 4, vLane))
    a("v_lshlrev_b32 v%d, 4, v%d" % (vT + 4, vT + 4))
    a("v_lshl_add_u32 v%d, v%d, 9, v%d" % (vVoff, vT + 1, vT + 4))
    a("v_lshlrev_b32 v%d, 4, v%d" % (vT + 3, vT + 3))
    a("v_lshl_add_u32 v%d, v%d, 6, v%d" % (vT + 5, vT + 1, vT + 3))
    a("s_lshr_b32 s%d, s%d, %d" % (sT1, sHead, 32 - 23))
    a("s_lshl_b32 s%d, s%d, 23" % (sT0, sHead))
    a("s_mul_i32 s%d, s%d, %d" % (sOff, sSplit, keys_wg * ROWB))
    a("s_add_u32 s%d, s%d, s%d" % (sT0, sT0, sOff))
    a("s_addc_u32 s%d, s%d, 0" % (sT1, sT1))
    nrec = keys_wg * ROWB
    if P.wavecontig:
        a("s_mul_i32 s%d, s%d, %d" % (sOff, sWave, NT * TB))
        a("s_add_u32 s%d, s%d, s%d" % (sT0, sT0, sOff))
        a("s_addc_u32 s%d, s%d, 0" % (sT1, sT1))
        a("s_mov_b32 s%d, 0" % (sOff))
        stride = TB
        nrec = NT * TB
    else:
        a("s_mul_i32 s%d, s%d, %d" % (sOff, sWave, TB))
        stride = W * TB
    a("s_add_u32 s%d, s%d, 4096" % (sOff2, sOff))
    a("s_waitcnt lgkmcnt(0)")
    a("s_add_u32 s%d, s%d, s%d" % (sK, sPtr + 2, sT0))
    a("s_addc_u32 s%d, s%d, s%d" % (sK + 1, sPtr + 3, sT1))
    a("s_and_b32 s%d, s%d, 0xffff" % (sK + 1, sK + 1))
    a("s_mov_b32 s%d, %d" % (sK + 2, nrec))
    a("s_mov_b32 s%d, 0x00020000" % (sK + 3))
    a("s_add_u32 s%d, s%d, s%d" % (sV, sPtr + 4, sT0))
    a("s_addc_u32 s%d, s%d, s%d" % (sV + 1, sPtr + 5, sT1))
    a("s_and_b32 s%d, s%d, 0xffff" % (sV + 1, sV + 1))
    a("s_mov_b32 s%d, %d" % (sV + 2, nrec))
    a("s_mov_b32 s%d, 0x00020000" % (sV + 3))
    a("s_mov_b32 s%d, s%d" % (sQ, sPtr))
    a("s_and_b32 s%d, s%d, 0xffff" % (sQ + 1, sPtr + 1))
    a("s_mov_b32 s%d, %d" % (sQ + 2, NH * ROWB))
    a("s_mov_b32 s%d, 0x00020000" % (sQ + 3))
    a("s_lshl_b32 s%d, s%d, 9" % (sT0, sHead))
    a("buffer_load_dwordx4 %s, v%d, %s, s%d offen" % (vr(vQ), vT + 5, sr(sQ), sT0))
    a("buffer_load_dwordx4 %s, v%d, %s, s%d offen offset:256" % (vr(vQ + 4), vT + 5, sr(sQ), sT0))
    for s in range(NS):
        load_tile(Kreg, s, sK, vKoff)
        load_tile(Vreg, s, sV, vVoff)
        a("s_add_u32 s%d, s%d, %d" % (sOff, sOff, stride))
        a("s_add_u32 s%d, s%d, %d" % (sOff2, sOff2, stride))
    a("s_mov_b32 s%d, s%d" % (sW, sPtr + 10))
    a("s_and_b32 s%d, s%d, 0xffff" % (sW + 1, sPtr + 11))
    a("s_mov_b32 s%d, %d" % (sW + 2, NWG * REC))
    a("s_mov_b32 s%d, 0x00020000" % (sW + 3))
    a("s_mov_b32 s%d, s%d" % (sO, sPtr + 6))
    a("s_and_b32 s%d, s%d, 0xffff" % (sO + 1, sPtr + 7))
    a("s_mov_b32 s%d, %d" % (sO + 2, NH * ROWB))
    a("s_mov_b32 s%d, 0x00020000" % (sO + 3))
    a("s_mov_b32 s%d, s%d" % (sD, sPtr + 8))
    a("s_and_b32 s%d, s%d, 0xffff" % (sD + 1, sPtr + 9))
    a("s_mov_b32 s%d, 256" % (sD + 2))
    a("s_mov_b32 s%d, 0x00020000" % (sD + 3))
    a("v_and_b32 v%d, 1, v%d" % (vT, vLane))
    a("v_lshlrev_b32 v%d, 4, v%d" % (vT, vT))
    a("v_mov_b32 v%d, 0xffff" % (vT + 1))
    a("v_lshlrev_b32 v%d, v%d, v%d" % (vT, vT, vT + 1))
    a("v_bfe_u32 v%d, v%d, 1, 2" % (vT + 1, vLane))
    for r in range(4):
        a("v_cmp_eq_u32 vcc, %d, v%d" % (r, vT + 1))
        a("s_nop 1")
        a("v_cndmask_b32 v%d, 0, v%d, vcc" % (vMask + r, vT))
    a("v_mov_b32 v%d, 0xff800000" % vM)
    a("v_mov_b32 v%d, 0" % vL)
    for i in range(8):
        a("v_mov_b32 v%d, 0" % (vO + i))
    a("s_mov_b32 s%d, %s" % (sC, c_hex))
    a("s_mov_b32 s%d, %d" % (sCnt, NT // NS))

    a.label("L_loop")
    for s in range(NS):
        tot = NS * 2 * NL
        a("s_waitcnt vmcnt(%d)" % (tot - NL))
        if not P.nocompute:
            for m in range(MG):
                a("v_mfma_f32_16x16x32_bf16 %s, %s, %s, 0" % (vr(vC + 4 * m), vr(Kreg(s, 2 * m)), vr(vQ)))
            for m in range(MG):
                a("v_mfma_f32_16x16x32_bf16 %s, %s, %s, %s" % (vr(vC + 4 * m), vr(Kreg(s, 2 * m + 1)), vr(vQ + 4), vr(vC + 4 * m)))
        else:
            for i in range(NL):
                a("v_xor_b32 v%d, v%d, v%d" % (vO + (i & 7), vO + (i & 7), Kreg(s, i)))
        load_tile(Kreg, s, sK, vKoff)
        if not P.nocompute:
            a("s_nop 7")
            for m in range(MG):
                a("v_mov_b32_dpp v%d, v%d quad_perm:[0,0,0,0] row_mask:0xf bank_mask:0xf" % (vS + m, vC + 4 * m))
            for r in range(1, 4):
                if MG < 4:
                    a("s_nop %d" % (2 - 1 if MG >= 2 else 1))
                for m in range(MG):
                    a("v_add_f32_dpp v%d, v%d, v%d quad_perm:[%d,%d,%d,%d] row_mask:0xf bank_mask:0xf" %
                      (vS + m, vC + 4 * m + r, vS + m, r, r, r, r))
            if MG == 4:
                a("v_max3_f32 v%d, v%d, v%d, v%d" % (vT, vS, vS + 1, vS + 2))
                a("v_max3_f32 v%d, v%d, v%d, v%d" % (vT, vT, vS + 3, vM))
            elif MG == 2:
                a("v_max3_f32 v%d, v%d, v%d, v%d" % (vT, vS, vS + 1, vM))
            else:
                a("v_max_f32 v%d, v%d, v%d" % (vT, vS, vM))
            a("v_mov_b32 v%d, v%d" % (vT + 1, vT))
            a("s_nop 1")
            a("v_permlane16_swap_b32 v%d, v%d" % (vT, vT + 1))
            a("s_nop 1")
            a("v_max_f32 v%d, v%d, v%d" % (vT, vT, vT + 1))
            a("v_mov_b32 v%d, v%d" % (vT + 1, vT))
            a("s_nop 1")
            a("v_permlane32_swap_b32 v%d, v%d" % (vT, vT + 1))
            a("s_nop 1")
            a("v_max_f32 v%d, v%d, v%d" % (vT, vT, vT + 1))
            a("v_sub_f32 v%d, v%d, v%d" % (vAl, vM, vT))
            a("v_mul_f32 v%d, s%d, v%d" % (vAl, sC, vAl))
            a("v_mul_f32 v%d, s%d, v%d" % (vMc, sC, vT))
            a("v_exp_f32 v%d, v%d" % (vAl, vAl))
            a("v_mov_b32 v%d, v%d" % (vM, vT))
            for m in range(MG):
                a("v_fma_f32 v%d, v%d, s%d, -v%d" % (vS + m, vS + m, sC, vMc))
            for m in range(MG):
                a("v_exp_f32 v%d, v%d" % (vS + m, vS + m))
            a("v_mul_f32 v%d, v%d, v%d" % (vL, vL, vAl))
            for i in range(8):
                a("v_mul_f32 v%d, v%d, v%d" % (vO + i, vO + i, vAl))
            for m in range(MG):
                a("v_add_f32 v%d, v%d, v%d" % (vL, vL, vS + m))
            for m in range(MG):
                a("v_cvt_pk_bf16_f32 v%d, v%d, v%d" % (vS + m, vS + m, vS + m))
            for m in range(MG):
                for r in range(4):
                    a("v_and_b32 v%d, v%d, v%d" % (vC + 4 * m + r, vS + m, vMask + r))
        a("s_waitcnt vmcnt(%d)" % (tot - NL))
        if not P.nocompute:
            a("s_nop 1")
            for m in range(MG):
                for h in range(2):
                    a("v_mfma_f32_16x16x32_bf16 %s, %s, %s, %s" % (vr(vO + 4 * h), vr(vC + 4 * m), vr(Vreg(s, 2 * m + h)), vr(vO + 4 * h)))
        else:
            for i in range(NL):
                a("v_xor_b32 v%d, v%d, v%d" % (vO + (i & 7), vO + (i & 7), Vreg(s, i)))
        load_tile(Vreg, s, sV, vVoff)
        a("s_add_u32 s%d, s%d, %d" % (sOff, sOff, stride))
        a("s_add_u32 s%d, s%d, %d" % (sOff2, sOff2, stride))
    a("s_sub_u32 s%d, s%d, 1" % (sCnt, sCnt))
    a("s_cmp_lg_u32 s%d, 0" % sCnt)
    a("s_cbranch_scc1 L_loop")

    a("s_nop 7")
    a("s_nop 7")
    a("v_mov_b32 v%d, v%d" % (vT + 1, vL))
    a("s_nop 1")
    a("v_permlane16_swap_b32 v%d, v%d" % (vL, vT + 1))
    a("s_nop 1")
    a("v_add_f32 v%d, v%d, v%d" % (vL, vL, vT + 1))
    a("v_mov_b32 v%d, v%d" % (vT + 1, vL))
    a("s_nop 1")
    a("v_permlane32_swap_b32 v%d, v%d" % (vL, vT + 1))
    a("s_nop 1")
    a("v_add_f32 v%d, v%d, v%d" % (vL, vL, vT + 1))
    a("v_and_b32 v%d, 15, v%d" % (vT, vLane))
    a("v_lshlrev_b32 v%d, 5, v%d" % (vT, vT))
    a("v_bfe_u32 v%d, v%d, 4, 1" % (vT + 1, vLane))
    a("v_lshl_add_u32 v%d, v%d, 4, v%d" % (vT, vT + 1, vT))
    a("s_lshl_b32 s%d, s%d, 10" % (sT0, sWave))
    a("v_add_u32 v%d, s%d, v%d" % (vT, sT0, vT))
    a("ds_write_b128 v%d, %s" % (vT, vr(vO)))
    a("ds_write_b128 v%d, %s offset:512" % (vT, vr(vO + 4)))
    a("s_lshl_b32 s%d, s%d, 2" % (sT0, sWave))
    a("v_mov_b32 v%d, s%d" % (vT + 2, sT0))
    a("ds_write_b32 v%d, v%d offset:%d" % (vT + 2, vM, W * 1024))
    a("ds_write_b32 v%d, v%d offset:%d" % (vT + 2, vL, W * 1024 + 64))
    a("s_waitcnt vmcnt(0) lgkmcnt(0)")
    a("s_barrier")
    a("s_cmp_lg_u32 s%d, 0" % sWave)
    a("s_cbranch_scc1 L_done")
    vm, vl, vo = 64, 80, 96
    a("v_mov_b32 v%d, 0" % vT)
    for i in range(0, W, 4):
        a("ds_read_b128 %s, v%d offset:%d" % (vr(vm + i), vT, W * 1024 + 4 * i))
        a("ds_read_b128 %s, v%d offset:%d" % (vr(vl + i), vT, W * 1024 + 64 + 4 * i))
    a("v_lshlrev_b32 v%d, 4, v%d" % (vT + 1, vLane))
    a("s_waitcnt lgkmcnt(0)")
    a("v_max_f32 v%d, v%d, v%d" % (vM, vm, vm + 1))
    for i in range(2, W, 2):
        a("v_max3_f32 v%d, v%d, v%d, v%d" % (vM, vM, vm + i, vm + i + 1))
    a("v_mul_f32 v%d, s%d, v%d" % (vMc, sC, vM))
    for i in range(W):
        a("v_fma_f32 v%d, v%d, s%d, -v%d" % (vm + i, vm + i, sC, vMc))
    for i in range(W):
        a("v_exp_f32 v%d, v%d" % (vm + i, vm + i))
    a("s_nop 0")
    a("v_mul_f32 v%d, v%d, v%d" % (vL, vm, vl))
    for i in range(1, W):
        a("v_fmac_f32 v%d, v%d, v%d" % (vL, vm + i, vl + i))
    for i0 in range(0, W, 4):
        for i in range(4):
            a("ds_read_b128 %s, v%d offset:%d" % (vr(vo + 4 * i), vT + 1, (i0 + i) * 1024))
        for i in range(4):
            a("s_waitcnt lgkmcnt(%d)" % (3 - i))
            for r in range(4):
                if i0 + i == 0:
                    a("v_mul_f32 v%d, v%d, v%d" % (vO + r, vm, vo + r))
                else:
                    a("v_fmac_f32 v%d, v%d, v%d" % (vO + r, vm + i0 + i, vo + 4 * i + r))
    a("s_mul_i32 s%d, s2, %d" % (sT0, REC))
    a("v_mov_b32 v%d, v%d" % (vT + 2, vM))
    a("v_mov_b32 v%d, v%d" % (vT + 3, vL))
    a("v_mov_b32 v%d, 0" % (vT + 4))
    a("buffer_store_dwordx4 %s, v%d, %s, s%d offen sc0 sc1" % (vr(vO), vT + 1, sr(sW), sT0))
    a("s_mov_b64 %s, exec" % sr(30, 2))
    a("s_mov_b64 exec, 1")
    a("buffer_store_dwordx2 %s, v%d, %s, s%d offen offset:1024 sc0 sc1" % (vr(vT + 2, 2), vT + 4, sr(sW), sT0))
    a("s_waitcnt vmcnt(0)")
    a("v_mov_b32 v%d, 1" % (vT + 5))
    a("s_lshl_b32 s%d, s%d, 2" % (sT1, sHead))
    a("buffer_atomic_add v%d, v%d, %s, s%d offen sc0" % (vT + 5, vT + 4, sr(sD), sT1))
    a("s_waitcnt vmcnt(0)")
    a("v_readfirstlane_b32 s%d, v%d" % (sT1, vT + 5))
    a("s_nop 3")
    a("s_mov_b64 exec, %s" % sr(30, 2))
    a("s_cmp_lg_u32 s%d, %d" % (sT1, S - 1))
    a("s_cbranch_scc1 L_done")
    if P.headmajor:
        a("s_mul_i32 s%d, s%d, %d" % (sT0, sHead, S * REC))
        rstride = REC
    else:
        a("s_mul_i32 s%d, s%d, %d" % (sT0, sHead, REC))
        rstride = 64 * REC
    a("v_mov_b32 v%d, 0" % (vT + 4))
    G = min(S, 8)
    first = True
    vml = 64
    assert S <= 16
    for i in range(S):
        a("s_add_u32 s%d, s%d, %d" % (sT1, sT0, i * rstride))
        a("buffer_load_dwordx2 %s, v%d, %s, s%d offen offset:1024 sc0 sc1" % (vr(vml + 2 * i, 2), vT + 4, sr(sW), sT1))
    vo2 = 96
    ng = (S + G - 1) // G
    def load_group(g0):
        for i in range(g0, min(S, g0 + G)):
            a("s_add_u32 s%d, s%d, %d" % (sT1, sT0, i * rstride))
            a("buffer_load_dwordx4 %s, v%d, %s, s%d offen sc0 sc1" % (vr(vo2 + 4 * (i - g0)), vT + 1, sr(sW), sT1))
    load_group(0)
    a("s_waitcnt vmcnt(%d)" % min(G, S))
    if S == 1:
        a("v_mov_b32 v%d, v%d" % (vM, vml))
    else:
        a("v_max_f32 v%d, v%d, v%d" % (vM, vml, vml + 2))
        for i in range(2, S):
            a("v_max_f32 v%d, v%d, v%d" % (vM, vM, vml + 2 * i))
    a("v_mul_f32 v%d, s%d, v%d" % (vMc, sC, vM))
    for i in range(S):
        a("v_fma_f32 v%d, v%d, s%d, -v%d" % (vml + 2 * i, vml + 2 * i, sC, vMc))
    for i in range(S):
        a("v_exp_f32 v%d, v%d" % (vml + 2 * i, vml + 2 * i))
    a("s_nop 0")
    a("v_mul_f32 v%d, v%d, v%d" % (vL, vml, vml + 1))
    for i in range(1, S):
        a("v_fmac_f32 v%d, v%d, v%d" % (vL, vml + 2 * i, vml + 2 * i + 1))
    a("v_rcp_f32 v%d, v%d" % (vL, vL))
    for g0 in range(0, S, G):
        if g0 > 0:
            load_group(g0)
        a("s_waitcnt vmcnt(0)")
        for i in range(g0, min(S, g0 + G)):
            for r in range(4):
                if i == 0:
                    a("v_mul_f32 v%d, v%d, v%d" % (vO + r, vml, vo2 + r))
                else:
                    a("v_fmac_f32 v%d, v%d, v%d" % (vO + r, vml + 2 * i, vo2 + 4 * (i - g0) + r))
    for r in range(4):
        a("v_mul_f32 v%d, v%d, v%d" % (vO + r, vO + r, vL))
    a("v_cvt_pk_bf16_f32 v%d, v%d, v%d" % (vO, vO, vO + 1))
    a("v_cvt_pk_bf16_f32 v%d, v%d, v%d" % (vO + 1, vO + 2, vO + 3))
    a("v_lshlrev_b32 v%d, 3, v%d" % (vT + 1, vLane))
    a("s_lshl_b32 s%d, s%d, 9" % (sT0, sHead))
    a("buffer_store_dwordx2 %s, v%d, %s, s%d offen" % (vr(vO, 2), vT + 1, sr(sO), sT0))
    a.label("L_done")
    a("s_endpgm")

    lds = W * 1024 + 128
    out = HEADER
    out += "; @launch grid=(%d,1,1) block=(%d,1,1) lds=%d\n" % (NWG, W * 64, lds)
    out += '.amdgcn_target "amdgcn-amd-amdhsa--gfx950"\n.text\n'
    out += ".globl %s_kernel\n.p2align 8\n.type %s_kernel,@function\n%s_kernel:\n" % (NAME, NAME, NAME)
    out += a.text()
    out += '.section .rodata,"a"\n.p2align 6\n.amdhsa_kernel %s_kernel\n' % NAME
    nv = max(nvgpr, 128)
    out += "  .amdhsa_next_free_vgpr %d\n  .amdhsa_next_free_sgpr 64\n  .amdhsa_accum_offset %d\n" % (nv, (nv + 3) // 4 * 4)
    out += "  .amdhsa_group_segment_fixed_size 0\n  .amdhsa_kernarg_size 48\n  .amdhsa_user_sgpr_count 2\n"
    out += "  .amdhsa_user_sgpr_kernarg_segment_ptr 1\n  .amdhsa_system_sgpr_workgroup_id_x 1\n.end_amdhsa_kernel\n"
    return out

def parse(argv=None):
    ap = argparse.ArgumentParser()
    ap.add_argument("--waves", type=int, default=16)
    ap.add_argument("--nwg", type=int, default=256)
    ap.add_argument("--stages", type=int, default=1)
    ap.add_argument("--mg", type=int, default=4)
    ap.add_argument("--policy", default="")
    ap.add_argument("--headmajor", type=int, default=1)
    ap.add_argument("--wavecontig", type=int, default=0)
    ap.add_argument("--nocompute", type=int, default=0)
    ap.add_argument("-o", default="-")
    return ap.parse_args(argv)

if __name__ == "__main__":
    P = parse()
    t = gen(P)
    if P.o == "-":
        sys.stdout.write(t)
    else:
        open(P.o, "w").write(t)
```

```python
import argparse, math, sys

NAME = "standalone__softmax_full_bidir__decode"
B, H, SKV, DH = 4, 16, 16384, 256
NH = B * H
ROWB = DH * 2
HEADB = SKV * ROWB
LOG2E = 1.4426950408889634

HEADER = """; Kernarg layout for this problem (48 bytes, ptrs only, base s[0:1]):
"""

import struct
def f32hex(x):
    return "0x%08x" % struct.unpack("<I", struct.pack("<f", x))[0]

class A:
    def __init__(self):
        self.l = []
    def __call__(self, s):
        self.l.append("    " + s)
    def label(self, s):
        self.l.append(s + ":")
    def c(self, s):
        self.l.append("    ; " + s)
    def text(self):
        return "\n".join(self.l) + "\n"

def vr(a, n=4):
    return "v[%d:%d]" % (a, a + n - 1)
def sr(a, n=4):
    return "s[%d:%d]" % (a, a + n - 1)

def gen(P):
    W = P.waves
    NWG = P.nwg
    NS = P.stages
    MG = P.mg
    S = NWG // NH
    assert NWG % NH == 0
    TK = 4 * MG
    TB = TK * ROWB
    keys_wg = SKV // S
    tiles_wg = keys_wg // TK
    assert tiles_wg % W == 0
    NT = tiles_wg // W
    assert NT % NS == 0
    NL = 2 * MG
    pol = (" " + P.policy) if P.policy else ""
    REC = 1024 + 128
    c_hex = f32hex(LOG2E / 16.0)

    a = A()
    sK, sV, sQ, sW = 4, 8, 12, 16
    sOff, sOff2, sCnt, sHead, sSplit, sWave, sC = 20, 21, 22, 23, 24, 25, 26
    sT0, sT1 = 28, 29
    sPtr = 32
    sO = 44
    sD = 48
    vKoff, vVoff = 1, 2
    vLane = 3
    vQ = 4
    vMask = 12
    vM, vL, vMc, vAl = 16, 17, 18, 19
    vO = 20
    vC = 28
    vS = 44
    vT = 48
    vBuf = 64
    def Kreg(s, i): return vBuf + s * (8 * NL) + 4 * i
    def Vreg(s, i): return vBuf + s * (8 * NL) + 4 * NL + 4 * i
    nvgpr = vBuf + NS * 8 * NL
    assert MG <= 4

    def load_tile(base_fn, s, srd, voff):
        for m in range(MG):
            for j in range(2):
                off = m * 2048 + j * 256
                so = sOff
                if off >= 4096:
                    off -= 4096
                    so = sOff2
                a("buffer_load_dwordx4 %s, v%d, %s, s%d offen offset:%d%s" %
                  (vr(base_fn(s, m * 2 + j)), voff, sr(srd), so, off, pol))

    if P.diag:
        a("s_memrealtime s[52:53]")
    a.c("uniform exit for workgroups past the data")
    a("s_cmp_ge_u32 s2, %d" % NWG)
    a("s_cbranch_scc1 L_done")
    a("s_load_dwordx4 %s, s[0:1], 0" % sr(sPtr))
    a("s_load_dwordx4 %s, s[0:1], 16" % sr(sPtr + 4))
    a("s_load_dwordx4 %s, s[0:1], 32" % sr(sPtr + 8))
    a("v_and_b32 v%d, 63, v0" % vLane)
    a("v_lshrrev_b32 v%d, 6, v0" % vT)
    a("v_lshrrev_b32 v%d, 4, v%d" % (vT + 1, vLane))
    a("v_readfirstlane_b32 s%d, v%d" % (sWave, vT))
    if P.headmajor:
        a("s_lshr_b32 s%d, s2, %d" % (sHead, int(math.log2(S))))
        a("s_and_b32 s%d, s2, %d" % (sSplit, S - 1))
    else:
        a("s_and_b32 s%d, s2, %d" % (sHead, NH - 1))
        a("s_lshr_b32 s%d, s2, %d" % (sSplit, 6))
    a("v_bfe_u32 v%d, v%d, 2, 2" % (vT + 2, vLane))
    a("v_lshlrev_b32 v%d, 9, v%d" % (vT + 2, vT + 2))
    a("v_lshl_add_u32 v%d, v%d, 6, v%d" % (vT + 2, vT + 1, vT + 2))
    a("v_and_b32 v%d, 3, v%d" % (vT + 3, vLane))
    a("v_lshl_add_u32 v%d, v%d, 4, v%d" % (vKoff, vT + 3, vT + 2))
    a("v_and_b32 v%d, 15, v%d" % (vT + 4, vLane))
    a("v_lshlrev_b32 v%d, 4, v%d" % (vT + 4, vT + 4))
    a("v_lshl_add_u32 v%d, v%d, 9, v%d" % (vVoff, vT + 1, vT + 4))
    a("v_lshlrev_b32 v%d, 4, v%d" % (vT + 3, vT + 3))
    a("v_lshl_add_u32 v%d, v%d, 6, v%d" % (vT + 5, vT + 1, vT + 3))
    a("s_lshr_b32 s%d, s%d, %d" % (sT1, sHead, 32 - 23))
    a("s_lshl_b32 s%d, s%d, 23" % (sT0, sHead))
    a("s_mul_i32 s%d, s%d, %d" % (sOff, sSplit, keys_wg * ROWB))
    a("s_add_u32 s%d, s%d, s%d" % (sT0, sT0, sOff))
    a("s_addc_u32 s%d, s%d, 0" % (sT1, sT1))
    nrec = keys_wg * ROWB
    if P.wavecontig:
        a("s_mul_i32 s%d, s%d, %d" % (sOff, sWave, NT * TB))
        a("s_add_u32 s%d, s%d, s%d" % (sT0, sT0, sOff))
        a("s_addc_u32 s%d, s%d, 0" % (sT1, sT1))
        a("s_mov_b32 s%d, 0" % (sOff))
        stride = TB
        nrec = NT * TB
    else:
        a("s_mul_i32 s%d, s%d, %d" % (sOff, sWave, TB))
        stride = W * TB
    a("s_add_u32 s%d, s%d, 4096" % (sOff2, sOff))
    a("s_waitcnt lgkmcnt(0)")
    a("s_add_u32 s%d, s%d, s%d" % (sK, sPtr + 2, sT0))
    a("s_addc_u32 s%d, s%d, s%d" % (sK + 1, sPtr + 3, sT1))
    a("s_and_b32 s%d, s%d, 0xffff" % (sK + 1, sK + 1))
    a("s_mov_b32 s%d, %d" % (sK + 2, nrec))
    a("s_mov_b32 s%d, 0x00020000" % (sK + 3))
    a("s_add_u32 s%d, s%d, s%d" % (sV, sPtr + 4, sT0))
    a("s_addc_u32 s%d, s%d, s%d" % (sV + 1, sPtr + 5, sT1))
    a("s_and_b32 s%d, s%d, 0xffff" % (sV + 1, sV + 1))
    a("s_mov_b32 s%d, %d" % (sV + 2, nrec))
    a("s_mov_b32 s%d, 0x00020000" % (sV + 3))
    a("s_mov_b32 s%d, s%d" % (sQ, sPtr))
    a("s_and_b32 s%d, s%d, 0xffff" % (sQ + 1, sPtr + 1))
    a("s_mov_b32 s%d, %d" % (sQ + 2, NH * ROWB))
    a("s_mov_b32 s%d, 0x00020000" % (sQ + 3))
    a("s_lshl_b32 s%d, s%d, 9" % (sT0, sHead))
    a("buffer_load_dwordx4 %s, v%d, %s, s%d offen" % (vr(vQ), vT + 5, sr(sQ), sT0))
    a("buffer_load_dwordx4 %s, v%d, %s, s%d offen offset:256" % (vr(vQ + 4), vT + 5, sr(sQ), sT0))
    for s in range(NS):
        load_tile(Kreg, s, sK, vKoff)
        load_tile(Vreg, s, sV, vVoff)
        a("s_add_u32 s%d, s%d, %d" % (sOff, sOff, stride))
        a("s_add_u32 s%d, s%d, %d" % (sOff2, sOff2, stride))
    a("s_mov_b32 s%d, s%d" % (sW, sPtr + 10))
    a("s_and_b32 s%d, s%d, 0xffff" % (sW + 1, sPtr + 11))
    a("s_mov_b32 s%d, %d" % (sW + 2, NWG * REC))
    a("s_mov_b32 s%d, 0x00020000" % (sW + 3))
    a("s_mov_b32 s%d, s%d" % (sO, sPtr + 6))
    a("s_and_b32 s%d, s%d, 0xffff" % (sO + 1, sPtr + 7))
    a("s_mov_b32 s%d, %d" % (sO + 2, NH * ROWB))
    a("s_mov_b32 s%d, 0x00020000" % (sO + 3))
    a("s_mov_b32 s%d, s%d" % (sD, sPtr + 8))
    a("s_and_b32 s%d, s%d, 0xffff" % (sD + 1, sPtr + 9))
    a("s_mov_b32 s%d, 256" % (sD + 2))
    a("s_mov_b32 s%d, 0x00020000" % (sD + 3))
    a("v_and_b32 v%d, 1, v%d" % (vT, vLane))
    a("v_lshlrev_b32 v%d, 4, v%d" % (vT, vT))
    a("v_mov_b32 v%d, 0xffff" % (vT + 1))
    a("v_lshlrev_b32 v%d, v%d, v%d" % (vT, vT, vT + 1))
    a("v_bfe_u32 v%d, v%d, 1, 2" % (vT + 1, vLane))
    for r in range(4):
        a("v_cmp_eq_u32 vcc, %d, v%d" % (r, vT + 1))
        a("s_nop 1")
        a("v_cndmask_b32 v%d, 0, v%d, vcc" % (vMask + r, vT))
    a("v_mov_b32 v%d, 0xff800000" % vM)
    a("v_mov_b32 v%d, 0" % vL)
    for i in range(8):
        a("v_mov_b32 v%d, 0" % (vO + i))
    a("s_mov_b32 s%d, %s" % (sC, c_hex))
    a("s_mov_b32 s%d, %d" % (sCnt, NT // NS))

    if P.diag:
        a("s_waitcnt vmcnt(%d)" % (NS * 2 * NL - NL))
        a("s_memrealtime s[54:55]")
    a.label("L_loop")
    for s in range(NS):
        tot = NS * 2 * NL
        a("s_waitcnt vmcnt(%d)" % (tot - NL))
        if not P.nocompute:
            for m in range(MG):
                a("v_mfma_f32_16x16x32_bf16 %s, %s, %s, 0" % (vr(vC + 4 * m), vr(Kreg(s, 2 * m)), vr(vQ)))
            for m in range(MG):
                a("v_mfma_f32_16x16x32_bf16 %s, %s, %s, %s" % (vr(vC + 4 * m), vr(Kreg(s, 2 * m + 1)), vr(vQ + 4), vr(vC + 4 * m)))
        else:
            for i in range(NL):
                a("v_xor_b32 v%d, v%d, v%d" % (vO + (i & 7), vO + (i & 7), Kreg(s, i)))
        load_tile(Kreg, s, sK, vKoff)
        if not P.nocompute:
            a("s_nop 7")
            for m in range(MG):
                a("v_mov_b32_dpp v%d, v%d quad_perm:[0,0,0,0] row_mask:0xf bank_mask:0xf" % (vS + m, vC + 4 * m))
            for r in range(1, 4):
                if MG < 4:
                    a("s_nop %d" % (2 - 1 if MG >= 2 else 1))
                for m in range(MG):
                    a("v_add_f32_dpp v%d, v%d, v%d quad_perm:[%d,%d,%d,%d] row_mask:0xf bank_mask:0xf" %
                      (vS + m, vC + 4 * m + r, vS + m, r, r, r, r))
            if MG == 4:
                a("v_max3_f32 v%d, v%d, v%d, v%d" % (vT, vS, vS + 1, vS + 2))
                a("v_max3_f32 v%d, v%d, v%d, v%d" % (vT, vT, vS + 3, vM))
            elif MG == 2:
                a("v_max3_f32 v%d, v%d, v%d, v%d" % (vT, vS, vS + 1, vM))
            else:
                a("v_max_f32 v%d, v%d, v%d" % (vT, vS, vM))
            a("v_mov_b32 v%d, v%d" % (vT + 1, vT))
            a("s_nop 1")
            a("v_permlane16_swap_b32 v%d, v%d" % (vT, vT + 1))
            a("s_nop 1")
            a("v_max_f32 v%d, v%d, v%d" % (vT, vT, vT + 1))
            a("v_mov_b32 v%d, v%d" % (vT + 1, vT))
            a("s_nop 1")
            a("v_permlane32_swap_b32 v%d, v%d" % (vT, vT + 1))
            a("s_nop 1")
            a("v_max_f32 v%d, v%d, v%d" % (vT, vT, vT + 1))
            a("v_sub_f32 v%d, v%d, v%d" % (vAl, vM, vT))
            a("v_mul_f32 v%d, s%d, v%d" % (vAl, sC, vAl))
            a("v_mul_f32 v%d, s%d, v%d" % (vMc, sC, vT))
            a("v_exp_f32 v%d, v%d" % (vAl, vAl))
            a("v_mov_b32 v%d, v%d" % (vM, vT))
            for m in range(MG):
                a("v_fma_f32 v%d, v%d, s%d, -v%d" % (vS + m, vS + m, sC, vMc))
            for m in range(MG):
                a("v_exp_f32 v%d, v%d" % (vS + m, vS + m))
            a("v_mul_f32 v%d, v%d, v%d" % (vL, vL, vAl))
            for i in range(8):
                a("v_mul_f32 v%d, v%d, v%d" % (vO + i, vO + i, vAl))
            for m in range(MG):
                a("v_add_f32 v%d, v%d, v%d" % (vL, vL, vS + m))
            for m in range(MG):
                a("v_cvt_pk_bf16_f32 v%d, v%d, v%d" % (vS + m, vS + m, vS + m))
            for m in range(MG):
                for r in range(4):
                    a("v_and_b32 v%d, v%d, v%d" % (vC + 4 * m + r, vS + m, vMask + r))
        a("s_waitcnt vmcnt(%d)" % (tot - NL))
        if not P.nocompute:
            a("s_nop 1")
            for m in range(MG):
                for h in range(2):
                    a("v_mfma_f32_16x16x32_bf16 %s, %s, %s, %s" % (vr(vO + 4 * h), vr(vC + 4 * m), vr(Vreg(s, 2 * m + h)), vr(vO + 4 * h)))
        else:
            for i in range(NL):
                a("v_xor_b32 v%d, v%d, v%d" % (vO + (i & 7), vO + (i & 7), Vreg(s, i)))
        load_tile(Vreg, s, sV, vVoff)
        a("s_add_u32 s%d, s%d, %d" % (sOff, sOff, stride))
        a("s_add_u32 s%d, s%d, %d" % (sOff2, sOff2, stride))
    a("s_sub_u32 s%d, s%d, 1" % (sCnt, sCnt))
    a("s_cmp_lg_u32 s%d, 0" % sCnt)
    a("s_cbranch_scc1 L_loop")

    if P.diag:
        a("s_memrealtime s[56:57]")
    a("s_nop 7")
    a("s_nop 7")
    a("v_mov_b32 v%d, v%d" % (vT + 1, vL))
    a("s_nop 1")
    a("v_permlane16_swap_b32 v%d, v%d" % (vL, vT + 1))
    a("s_nop 1")
    a("v_add_f32 v%d, v%d, v%d" % (vL, vL, vT + 1))
    a("v_mov_b32 v%d, v%d" % (vT + 1, vL))
    a("s_nop 1")
    a("v_permlane32_swap_b32 v%d, v%d" % (vL, vT + 1))
    a("s_nop 1")
    a("v_add_f32 v%d, v%d, v%d" % (vL, vL, vT + 1))
    a("v_and_b32 v%d, 15, v%d" % (vT, vLane))
    a("v_lshlrev_b32 v%d, 5, v%d" % (vT, vT))
    a("v_bfe_u32 v%d, v%d, 4, 1" % (vT + 1, vLane))
    a("v_lshl_add_u32 v%d, v%d, 4, v%d" % (vT, vT + 1, vT))
    a("s_lshl_b32 s%d, s%d, 10" % (sT0, sWave))
    a("v_add_u32 v%d, s%d, v%d" % (vT, sT0, vT))
    a("ds_write_b128 v%d, %s" % (vT, vr(vO)))
    a("ds_write_b128 v%d, %s offset:512" % (vT, vr(vO + 4)))
    a("s_lshl_b32 s%d, s%d, 2" % (sT0, sWave))
    a("v_mov_b32 v%d, s%d" % (vT + 2, sT0))
    a("ds_write_b32 v%d, v%d offset:%d" % (vT + 2, vM, W * 1024))
    a("ds_write_b32 v%d, v%d offset:%d" % (vT + 2, vL, W * 1024 + 64))
    a("s_waitcnt vmcnt(0) lgkmcnt(0)")
    a("s_barrier")
    a("s_cmp_lg_u32 s%d, 0" % sWave)
    a("s_cbranch_scc1 L_fin")
    vm, vl, vo = 64, 80, 96
    a("v_mov_b32 v%d, 0" % vT)
    for i in range(0, W, 4):
        a("ds_read_b128 %s, v%d offset:%d" % (vr(vm + i), vT, W * 1024 + 4 * i))
        a("ds_read_b128 %s, v%d offset:%d" % (vr(vl + i), vT, W * 1024 + 64 + 4 * i))
    a("v_lshlrev_b32 v%d, 4, v%d" % (vT + 1, vLane))
    a("s_waitcnt lgkmcnt(0)")
    a("v_max_f32 v%d, v%d, v%d" % (vM, vm, vm + 1))
    for i in range(2, W, 2):
        a("v_max3_f32 v%d, v%d, v%d, v%d" % (vM, vM, vm + i, vm + i + 1))
    a("v_mul_f32 v%d, s%d, v%d" % (vMc, sC, vM))
    for i in range(W):
        a("v_fma_f32 v%d, v%d, s%d, -v%d" % (vm + i, vm + i, sC, vMc))
    for i in range(W):
        a("v_exp_f32 v%d, v%d" % (vm + i, vm + i))
    a("s_nop 0")
    a("v_mul_f32 v%d, v%d, v%d" % (vL, vm, vl))
    for i in range(1, W):
        a("v_fmac_f32 v%d, v%d, v%d" % (vL, vm + i, vl + i))
    for i0 in range(0, W, 4):
        for i in range(4):
            a("ds_read_b128 %s, v%d offset:%d" % (vr(vo + 4 * i), vT + 1, (i0 + i) * 1024))
        for i in range(4):
            a("s_waitcnt lgkmcnt(%d)" % (3 - i))
            for r in range(4):
                if i0 + i == 0:
                    a("v_mul_f32 v%d, v%d, v%d" % (vO + r, vm, vo + r))
                else:
                    a("v_fmac_f32 v%d, v%d, v%d" % (vO + r, vm + i0 + i, vo + 4 * i + r))
    a("s_mul_i32 s%d, s2, %d" % (sT0, REC))
    a("v_mov_b32 v%d, v%d" % (vT + 2, vM))
    a("v_mov_b32 v%d, v%d" % (vT + 3, vL))
    a("v_mov_b32 v%d, 0" % (vT + 4))
    a("buffer_store_dwordx4 %s, v%d, %s, s%d offen sc0 sc1" % (vr(vO), vT + 1, sr(sW), sT0))
    a("s_mov_b64 %s, exec" % sr(30, 2))
    a("s_mov_b64 exec, 1")
    a("buffer_store_dwordx2 %s, v%d, %s, s%d offen offset:1024 sc0 sc1" % (vr(vT + 2, 2), vT + 4, sr(sW), sT0))
    a("s_waitcnt vmcnt(0)")
    a("v_mov_b32 v%d, 1" % (vT + 5))
    a("s_lshl_b32 s%d, s%d, 2" % (sT1, sHead))
    a("buffer_atomic_add v%d, v%d, %s, s%d offen sc0" % (vT + 5, vT + 4, sr(sD), sT1))
    a("s_waitcnt vmcnt(0)")
    a("v_readfirstlane_b32 s%d, v%d" % (sT1, vT + 5))
    a("s_nop 3")
    a("s_mov_b64 exec, %s" % sr(30, 2))
    a("s_cmp_lg_u32 s%d, %d" % (sT1, S - 1))
    a("s_cbranch_scc1 L_fin")
    if P.headmajor:
        a("s_mul_i32 s%d, s%d, %d" % (sT0, sHead, S * REC))
        rstride = REC
    else:
        a("s_mul_i32 s%d, s%d, %d" % (sT0, sHead, REC))
        rstride = 64 * REC
    a("v_mov_b32 v%d, 0" % (vT + 4))
    G = min(S, 8)
    first = True
    vml = 64
    assert S <= 16
    for i in range(S):
        a("s_add_u32 s%d, s%d, %d" % (sT1, sT0, i * rstride))
        a("buffer_load_dwordx2 %s, v%d, %s, s%d offen offset:1024 sc0 sc1" % (vr(vml + 2 * i, 2), vT + 4, sr(sW), sT1))
    vo2 = 96
    ng = (S + G - 1) // G
    def load_group(g0):
        for i in range(g0, min(S, g0 + G)):
            a("s_add_u32 s%d, s%d, %d" % (sT1, sT0, i * rstride))
            a("buffer_load_dwordx4 %s, v%d, %s, s%d offen sc0 sc1" % (vr(vo2 + 4 * (i - g0)), vT + 1, sr(sW), sT1))
    load_group(0)
    a("s_waitcnt vmcnt(%d)" % min(G, S))
    if S == 1:
        a("v_mov_b32 v%d, v%d" % (vM, vml))
    else:
        a("v_max_f32 v%d, v%d, v%d" % (vM, vml, vml + 2))
        for i in range(2, S):
            a("v_max_f32 v%d, v%d, v%d" % (vM, vM, vml + 2 * i))
    a("v_mul_f32 v%d, s%d, v%d" % (vMc, sC, vM))
    for i in range(S):
        a("v_fma_f32 v%d, v%d, s%d, -v%d" % (vml + 2 * i, vml + 2 * i, sC, vMc))
    for i in range(S):
        a("v_exp_f32 v%d, v%d" % (vml + 2 * i, vml + 2 * i))
    a("s_nop 0")
    a("v_mul_f32 v%d, v%d, v%d" % (vL, vml, vml + 1))
    for i in range(1, S):
        a("v_fmac_f32 v%d, v%d, v%d" % (vL, vml + 2 * i, vml + 2 * i + 1))
    a("v_rcp_f32 v%d, v%d" % (vL, vL))
    for g0 in range(0, S, G):
        if g0 > 0:
            load_group(g0)
        a("s_waitcnt vmcnt(0)")
        for i in range(g0, min(S, g0 + G)):
            for r in range(4):
                if i == 0:
                    a("v_mul_f32 v%d, v%d, v%d" % (vO + r, vml, vo2 + r))
                else:
                    a("v_fmac_f32 v%d, v%d, v%d" % (vO + r, vml + 2 * i, vo2 + 4 * (i - g0) + r))
    for r in range(4):
        a("v_mul_f32 v%d, v%d, v%d" % (vO + r, vO + r, vL))
    a("v_cvt_pk_bf16_f32 v%d, v%d, v%d" % (vO, vO, vO + 1))
    a("v_cvt_pk_bf16_f32 v%d, v%d, v%d" % (vO + 1, vO + 2, vO + 3))
    a("v_lshlrev_b32 v%d, 3, v%d" % (vT + 1, vLane))
    a("s_lshl_b32 s%d, s%d, 9" % (sT0, sHead))
    a("buffer_store_dwordx2 %s, v%d, %s, s%d offen" % (vr(vO, 2), vT + 1, sr(sO), sT0))
    a.label("L_fin")
    if P.diag:
        a("s_waitcnt vmcnt(0)")
        a("s_memrealtime s[58:59]")
        a("s_waitcnt lgkmcnt(0)")
        a("s_add_u32 s60, s%d, 0x40000000" % (sPtr + 10))
        a("s_addc_u32 s61, s%d, 0" % (sPtr + 11))
        a("s_and_b32 s61, s61, 0xffff")
        a("s_mov_b32 s62, 0x1000000")
        a("s_mov_b32 s63, 0x00020000")
        a("s_mul_i32 s28, s2, %d" % W)
        a("s_add_u32 s28, s28, s%d" % sWave)
        a("s_lshl_b32 s28, s28, 5")
        a("s_mov_b64 exec, 1")
        a("v_mov_b32 v4, s52")
        a("v_mov_b32 v5, s54")
        a("v_mov_b32 v6, s56")
        a("v_mov_b32 v7, s58")
        a("s_getreg_b32 s29, hwreg(HW_REG_XCC_ID)")
        a("v_mov_b32 v8, s29")
        a("s_getreg_b32 s29, hwreg(HW_REG_HW_ID)")
        a("v_mov_b32 v9, s29")
        a("v_mov_b32 v10, 0")
        a("buffer_store_dwordx4 v[4:7], v10, s[60:63], s28 offen")
        a("buffer_store_dwordx2 v[8:9], v10, s[60:63], s28 offen offset:16")
    a.label("L_done")
    a("s_endpgm")

    lds = W * 1024 + 128
    out = HEADER
    out += "; @launch grid=(%d,1,1) block=(%d,1,1) lds=%d\n" % (NWG, W * 64, lds)
    out += '.amdgcn_target "amdgcn-amd-amdhsa--gfx950"\n.text\n'
    out += ".globl %s_kernel\n.p2align 8\n.type %s_kernel,@function\n%s_kernel:\n" % (NAME, NAME, NAME)
    out += a.text()
    out += '.section .rodata,"a"\n.p2align 6\n.amdhsa_kernel %s_kernel\n' % NAME
    nv = max(nvgpr, 128)
    out += "  .amdhsa_next_free_vgpr %d\n  .amdhsa_next_free_sgpr 64\n  .amdhsa_accum_offset %d\n" % (nv, (nv + 3) // 4 * 4)
    out += "  .amdhsa_group_segment_fixed_size 0\n  .amdhsa_kernarg_size 48\n  .amdhsa_user_sgpr_count 2\n"
    out += "  .amdhsa_user_sgpr_kernarg_segment_ptr 1\n  .amdhsa_system_sgpr_workgroup_id_x 1\n.end_amdhsa_kernel\n"
    return out

def parse(argv=None):
    ap = argparse.ArgumentParser()
    ap.add_argument("--waves", type=int, default=16)
    ap.add_argument("--nwg", type=int, default=256)
    ap.add_argument("--stages", type=int, default=1)
    ap.add_argument("--mg", type=int, default=4)
    ap.add_argument("--policy", default="")
    ap.add_argument("--headmajor", type=int, default=1)
    ap.add_argument("--wavecontig", type=int, default=0)
    ap.add_argument("--nocompute", type=int, default=0)
    ap.add_argument("--diag", type=int, default=0)
    ap.add_argument("-o", default="-")
    return ap.parse_args(argv)

if __name__ == "__main__":
    P = parse()
    t = gen(P)
    if P.o == "-":
        sys.stdout.write(t)
    else:
        open(P.o, "w").write(t)
```

```python
import argparse, math, sys, struct

NAME = "standalone__softmax_full_bidir__decode"
B, H, SKV, DH = 4, 16, 16384, 256
NH = B * H
ROWB = DH * 2
HEADB = SKV * ROWB
LOG2E = 1.4426950408889634

HEADER = """; Kernarg layout for this problem (48 bytes, ptrs only, base s[0:1]):
"""

def f32hex(x):
    return "0x%08x" % struct.unpack("<I", struct.pack("<f", x))[0]

class A:
    def __init__(self):
        self.l = []
    def __call__(self, s):
        self.l.append("    " + s)
    def label(self, s):
        self.l.append(s + ":")
    def c(self, s):
        self.l.append("    ; " + s)
    def text(self):
        return "\n".join(self.l) + "\n"

def vr(a, n=4):
    return "v[%d:%d]" % (a, a + n - 1)
def sr(a, n=4):
    return "s[%d:%d]" % (a, a + n - 1)

def gen(P):
    W = P.waves
    S = 8
    NWG = (NH // 2) * S
    MG = P.mg
    NS = P.stages
    TK = 4 * MG
    TB = TK * ROWB
    CK = W * TK
    CB = CK * ROWB
    NTH = SKV // CK
    NTICK = 2 * NTH
    NL = 2 * MG
    pol = (" " + P.policy) if P.policy else ""
    REC = 1024 + 128
    c_hex = f32hex(LOG2E / 16.0)
    ML = 2 * W * 1024
    MBOX = ML + 256
    MBN = NTICK + 64
    MBN = (MBN + 255) // 256 * 256
    NEGBIG = "0xff7fffff"

    a = A()
    sK, sV, sQ, sW = 4, 8, 12, 16
    sOff, sOff2, sLim, sPair, sJ, sWave, sC, sWOff = 20, 21, 22, 23, 24, 25, 26, 27
    sT0, sT1 = 28, 29
    sT2, sT3 = 30, 31
    sPtr = 32
    sO = 44
    sD = 48
    sHOff = 64
    sTk = 66
    sRot = 65
    sWsC, sAtc = 70, 71
    vKoff, vVoff, vLane = 1, 2, 3
    vQ = 4
    vMask = 12
    vM, vL, vMc, vAl = 16, 17, 18, 19
    vO = 20
    vC = 28
    vS = 44
    vT = 48
    vTk, vMaddr, vPub, vZero = 54, 55, 56, 57
    vRnd = 58
    vQ2 = 64
    vOA = 72
    vMcA, vLA = 80, 81
    vBuf = 84
    def Kreg(s, i): return vBuf + s * 8 * NL + 4 * i
    def Vreg(s, i): return vBuf + s * 8 * NL + 4 * NL + 4 * i
    nvgpr = vBuf + NS * 8 * NL
    assert MG <= 4 and NS <= 4

    def load_tile(base_fn, s, srd, voff):
        for m in range(MG):
            for j in range(2):
                off = m * 2048 + j * 256
                so = sOff
                if off >= 4096:
                    off -= 4096
                    so = sOff2
                a("buffer_load_dwordx4 %s, v%d, %s, s%d offen offset:%d%s" %
                  (vr(base_fn(s, m * 2 + j)), voff, sr(srd), so, off, pol))

    def set_off(src):
        if P.rot or P.mul != 1:
            a("s_mul_i32 s%d, s%d, %d" % (sOff, src, P.mul))
            a("s_add_u32 s%d, s%d, s%d" % (sOff, sOff, sRot))
            a("s_and_b32 s%d, s%d, %d" % (sOff, sOff, NTH - 1))
            a("s_andn2_b32 s%d, s%d, %d" % (sOff2, src, NTH - 1))
            a("s_or_b32 s%d, s%d, s%d" % (sOff, sOff, sOff2))
            a("s_mul_i32 s%d, s%d, %d" % (sOff, sOff, CB))
        else:
            a("s_mul_i32 s%d, s%d, %d" % (sOff, src, CB))
        a("s_add_u32 s%d, s%d, s%d" % (sOff, sOff, sWOff))
        a("s_add_u32 s%d, s%d, 4096" % (sOff2, sOff))

    if P.diag:
        a("s_memrealtime s[52:53]")
        a("s_mov_b32 s78, 0")
    a.c("uniform exit for workgroups past the data")
    a("s_cmp_ge_u32 s2, %d" % NWG)
    a("s_cbranch_scc1 L_done")
    a("s_load_dwordx4 %s, s[0:1], 0" % sr(sPtr))
    a("s_load_dwordx4 %s, s[0:1], 16" % sr(sPtr + 4))
    a("s_load_dwordx4 %s, s[0:1], 32" % sr(sPtr + 8))
    a("v_and_b32 v%d, 63, v0" % vLane)
    a("v_lshrrev_b32 v%d, 6, v0" % vT)
    a("v_lshrrev_b32 v%d, 4, v%d" % (vT + 1, vLane))
    a("v_readfirstlane_b32 s%d, v%d" % (sWave, vT))
    a("s_lshr_b32 s%d, s2, 3" % sPair)
    a("s_and_b32 s%d, s2, 7" % sJ)
    a("v_bfe_u32 v%d, v%d, 2, 2" % (vT + 2, vLane))
    a("v_lshlrev_b32 v%d, 9, v%d" % (vT + 2, vT + 2))
    a("v_lshl_add_u32 v%d, v%d, 6, v%d" % (vT + 2, vT + 1, vT + 2))
    a("v_and_b32 v%d, 3, v%d" % (vT + 3, vLane))
    a("v_lshl_add_u32 v%d, v%d, 4, v%d" % (vKoff, vT + 3, vT + 2))
    a("v_and_b32 v%d, 15, v%d" % (vT + 4, vLane))
    a("v_lshlrev_b32 v%d, 4, v%d" % (vT + 4, vT + 4))
    a("v_lshl_add_u32 v%d, v%d, 9, v%d" % (vVoff, vT + 1, vT + 4))
    a("v_lshlrev_b32 v%d, 4, v%d" % (vT + 3, vT + 3))
    a("v_lshl_add_u32 v%d, v%d, 6, v%d" % (vT + 5, vT + 1, vT + 3))
    a("v_mov_b32 v%d, 0" % vZero)
    a("s_lshr_b32 s%d, s%d, %d" % (sT1, sPair, 32 - 24))
    a("s_lshl_b32 s%d, s%d, 24" % (sT0, sPair))
    a("s_mul_i32 s%d, s%d, %d" % (sWOff, sWave, TB))
    a("s_lshl_b32 s%d, s%d, 3" % (sHOff, sPair))
    a("s_mul_i32 s%d, s%d, %d" % (sRot, sPair, P.rot))
    for s in range(NS):
        a("s_add_u32 s%d, s%d, %d" % (sTk + s, sJ, s * S))
    set_off(sTk)
    a("s_waitcnt lgkmcnt(0)")
    for (srd, p) in ((sK, sPtr + 2), (sV, sPtr + 4)):
        a("s_add_u32 s%d, s%d, s%d" % (srd, p, sT0))
        a("s_addc_u32 s%d, s%d, s%d" % (srd + 1, p + 1, sT1))
        a("s_and_b32 s%d, s%d, 0xffff" % (srd + 1, srd + 1))
        a("s_mov_b32 s%d, %d" % (srd + 2, 2 * HEADB))
        a("s_mov_b32 s%d, 0x00020000" % (srd + 3))
    a("s_mov_b32 s%d, s%d" % (sD, sPtr + 8))
    a("s_and_b32 s%d, s%d, 0xffff" % (sD + 1, sPtr + 9))
    a("s_mov_b32 s%d, 256" % (sD + 2))
    a("s_mov_b32 s%d, 0x00020000" % (sD + 3))
    a("s_mov_b32 s%d, s%d" % (sW, sPtr + 10))
    a("s_and_b32 s%d, s%d, 0xffff" % (sW + 1, sPtr + 11))
    a("s_mov_b32 s%d, %d" % (sW + 2, 0x200000))
    a("s_mov_b32 s%d, 0x00020000" % (sW + 3))
    a("s_lshl_b32 s%d, s%d, 8" % (sWsC, sPair))
    a("s_add_u32 s%d, s%d, 0x100000" % (sWsC, sWsC))
    a("s_mov_b32 s%d, 0" % sAtc)
    a("s_mov_b32 s%d, s%d" % (sQ, sPtr))
    a("s_and_b32 s%d, s%d, 0xffff" % (sQ + 1, sPtr + 1))
    a("s_mov_b32 s%d, %d" % (sQ + 2, NH * ROWB))
    a("s_mov_b32 s%d, 0x00020000" % (sQ + 3))
    a("s_lshl_b32 s%d, s%d, 10" % (sT0, sPair))

    PADDR = MBOX - 4
    a("s_cmp_eq_u32 s%d, %d" % (sWave, W))
    a("s_cbranch_scc1 L_helper")
    for s in range(NS):
        if s > 0:
            set_off(sTk + s)
        load_tile(Kreg, s, sK, vKoff)
        if s == 0:
            a("buffer_load_dwordx4 %s, v%d, %s, s%d offen" % (vr(vQ), vT + 5, sr(sQ), sT0))
            a("buffer_load_dwordx4 %s, v%d, %s, s%d offen offset:256" % (vr(vQ + 4), vT + 5, sr(sQ), sT0))
            a("buffer_load_dwordx4 %s, v%d, %s, s%d offen offset:512" % (vr(vQ2), vT + 5, sr(sQ), sT0))
            a("buffer_load_dwordx4 %s, v%d, %s, s%d offen offset:768" % (vr(vQ2 + 4), vT + 5, sr(sQ), sT0))
        load_tile(Vreg, s, sV, vVoff)
    a("s_mov_b32 s%d, s%d" % (sW, sPtr + 10))
    a("s_and_b32 s%d, s%d, 0xffff" % (sW + 1, sPtr + 11))
    a("s_mov_b32 s%d, %d" % (sW + 2, 0x200000))
    a("s_mov_b32 s%d, 0x00020000" % (sW + 3))
    a("s_mov_b32 s%d, s%d" % (sO, sPtr + 6))
    a("s_and_b32 s%d, s%d, 0xffff" % (sO + 1, sPtr + 7))
    a("s_mov_b32 s%d, %d" % (sO + 2, NH * ROWB))
    a("s_mov_b32 s%d, 0x00020000" % (sO + 3))
    a("v_and_b32 v%d, 1, v%d" % (vT, vLane))
    a("v_lshlrev_b32 v%d, 4, v%d" % (vT, vT))
    a("v_mov_b32 v%d, 0xffff" % (vT + 1))
    a("v_lshlrev_b32 v%d, v%d, v%d" % (vT, vT, vT + 1))
    a("v_bfe_u32 v%d, v%d, 1, 2" % (vT + 1, vLane))
    for r in range(4):
        a("v_cmp_eq_u32 vcc, %d, v%d" % (r, vT + 1))
        a("s_nop 1")
        a("v_cndmask_b32 v%d, 0, v%d, vcc" % (vMask + r, vT))
    a("v_mov_b32 v%d, %s" % (vM, NEGBIG))
    a("v_mov_b32 v%d, %s" % (vMc, NEGBIG))
    a("v_mov_b32 v%d, 0" % vL)
    for i in range(8):
        a("v_mov_b32 v%d, 0" % (vO + i))
    a("s_mov_b32 s%d, %s" % (sC, c_hex))
    a("s_mov_b32 s%d, %d" % (sLim, NTH))
    a("v_mov_b32 v%d, %d" % (vMaddr, MBOX + 4 * NS))
    a("v_mov_b32 v%d, %d" % (vPub, PADDR))
    a("v_mov_b32 v%d, 0" % vRnd)
    a("s_barrier")
    if P.diag:
        a("s_waitcnt vmcnt(%d)" % (NS * 2 * NL - NL))
        a("s_memrealtime s[54:55]")

    def loop(tag):
        for s in range(NS):
            t = "%s%d" % (tag, s)
            a.label("L_loop_" + t)
            a("s_cmp_lt_u32 s%d, s%d" % (sTk + s, sLim))
            a("s_cbranch_scc0 L_switch_" + t)
            a("ds_max_u32 v%d, v%d" % (vPub, vRnd))
            a("ds_read_b32 v%d, v%d" % (vTk, vMaddr))
            a("s_waitcnt vmcnt(%d)" % (NL + (NS - 1) * 2 * NL))
            for m in range(MG):
                a("v_mfma_f32_16x16x32_bf16 %s, %s, %s, 0" % (vr(vC + 4 * m), vr(Kreg(s, 2 * m)), vr(vQ)))
            for m in range(MG):
                a("v_mfma_f32_16x16x32_bf16 %s, %s, %s, %s" % (vr(vC + 4 * m), vr(Kreg(s, 2 * m + 1)), vr(vQ + 4), vr(vC + 4 * m)))
            a("s_waitcnt lgkmcnt(0)")
            a("v_readfirstlane_b32 s%d, v%d" % (sTk + s, vTk))
            a("s_cmp_eq_u32 s%d, -1" % (sTk + s))
            a("s_cbranch_scc1 L_poll_" + t)
            a.label("L_have_" + t)
            set_off(sTk + s)
            load_tile(Kreg, s, sK, vKoff)
            a("s_nop 3")
            for m in range(MG):
                a("v_mov_b32_dpp v%d, v%d quad_perm:[0,0,0,0] row_mask:0xf bank_mask:0xf" % (vS + m, vC + 4 * m))
            for r in range(1, 4):
                if MG < 4:
                    a("s_nop 1")
                for m in range(MG):
                    a("v_add_f32_dpp v%d, v%d, v%d quad_perm:[%d,%d,%d,%d] row_mask:0xf bank_mask:0xf" %
                      (vS + m, vC + 4 * m + r, vS + m, r, r, r, r))
            if MG == 4:
                a("v_max3_f32 v%d, v%d, v%d, v%d" % (vT, vS, vS + 1, vS + 2))
                a("v_max3_f32 v%d, v%d, v%d, v%d" % (vT, vT, vS + 3, vM))
            elif MG == 2:
                a("v_max3_f32 v%d, v%d, v%d, v%d" % (vT, vS, vS + 1, vM))
            else:
                a("v_max_f32 v%d, v%d, v%d" % (vT, vS, vM))
            a("v_mov_b32 v%d, v%d" % (vT + 1, vT))
            a("s_nop 1")
            a("v_permlane16_swap_b32 v%d, v%d" % (vT, vT + 1))
            a("s_nop 1")
            a("v_max_f32 v%d, v%d, v%d" % (vT, vT, vT + 1))
            a("v_mov_b32 v%d, v%d" % (vT + 1, vT))
            a("s_nop 1")
            a("v_permlane32_swap_b32 v%d, v%d" % (vT, vT + 1))
            a("s_nop 1")
            a("v_max_f32 v%d, v%d, v%d" % (vM, vT, vT + 1))
            a("v_mul_f32 v%d, s%d, v%d" % (vT, sC, vM))
            a("v_sub_f32 v%d, v%d, v%d" % (vAl, vMc, vT))
            a("v_mov_b32 v%d, v%d" % (vMc, vT))
            a("v_exp_f32 v%d, v%d" % (vAl, vAl))
            for m in range(MG):
                a("v_fma_f32 v%d, v%d, s%d, -v%d" % (vS + m, vS + m, sC, vMc))
            for m in range(MG):
                a("v_exp_f32 v%d, v%d" % (vS + m, vS + m))
            a("v_mul_f32 v%d, v%d, v%d" % (vL, vL, vAl))
            for i in range(8):
                a("v_mul_f32 v%d, v%d, v%d" % (vO + i, vO + i, vAl))
            for m in range(MG):
                a("v_add_f32 v%d, v%d, v%d" % (vL, vL, vS + m))
            for m in range(MG):
                a("v_cvt_pk_bf16_f32 v%d, v%d, v%d" % (vS + m, vS + m, vS + m))
            for m in range(MG):
                for r in range(4):
                    a("v_and_b32 v%d, v%d, v%d" % (vC + 4 * m + r, vS + m, vMask + r))
            a("v_add_u32 v%d, 4, v%d" % (vMaddr, vMaddr))
            a("v_add_u32 v%d, 1, v%d" % (vRnd, vRnd))
            a("s_waitcnt vmcnt(%d)" % ((NS - 1) * 2 * NL + NL))
            a("s_nop 1")
            for m in range(MG):
                for h in range(2):
                    a("v_mfma_f32_16x16x32_bf16 %s, %s, %s, %s" % (vr(vO + 4 * h), vr(vC + 4 * m), vr(Vreg(s, 2 * m + h)), vr(vO + 4 * h)))
            load_tile(Vreg, s, sV, vVoff)
        a("s_branch L_loop_%s0" % tag)
        for s in range(NS):
            t = "%s%d" % (tag, s)
            a.label("L_poll_" + t)
            if P.diag:
                a("s_add_u32 s78, s78, 1")
            a("s_sleep 1")
            a("ds_read_b32 v%d, v%d" % (vTk, vMaddr))
            a("s_waitcnt lgkmcnt(0)")
            a("v_readfirstlane_b32 s%d, v%d" % (sTk + s, vTk))
            a("s_cmp_eq_u32 s%d, -1" % (sTk + s))
            a("s_cbranch_scc1 L_poll_" + t)
            a("s_branch L_have_" + t)
            a.label("L_switch_" + t)
            a("s_cmp_eq_u32 s%d, %d" % (sLim, NTICK))
            a("s_cbranch_scc1 L_epi")
            a("s_nop 7")
            for i in range(8):
                a("v_mov_b32 v%d, v%d" % (vOA + i, vO + i))
                a("v_mov_b32 v%d, 0" % (vO + i))
                a("v_mov_b32 v%d, v%d" % (vQ + i, vQ2 + i))
            a("v_mov_b32 v%d, v%d" % (vMcA, vMc))
            a("v_mov_b32 v%d, v%d" % (vLA, vL))
            a("v_mov_b32 v%d, %s" % (vM, NEGBIG))
            a("v_mov_b32 v%d, %s" % (vMc, NEGBIG))
            a("v_mov_b32 v%d, 0" % vL)
            a("s_mov_b32 s%d, %d" % (sLim, NTICK))
            a("s_branch L_loop_" + t)
    loop("c")

    a.label("L_epi")
    if P.diag:
        a("s_memrealtime s[56:57]")
    a("s_nop 7")
    for vl_ in (vLA, vL):
        a("v_mov_b32 v%d, v%d" % (vT + 1, vl_))
        a("s_nop 1")
        a("v_permlane16_swap_b32 v%d, v%d" % (vl_, vT + 1))
        a("s_nop 1")
        a("v_add_f32 v%d, v%d, v%d" % (vl_, vl_, vT + 1))
        a("v_mov_b32 v%d, v%d" % (vT + 1, vl_))
        a("s_nop 1")
        a("v_permlane32_swap_b32 v%d, v%d" % (vl_, vT + 1))
        a("s_nop 1")
        a("v_add_f32 v%d, v%d, v%d" % (vl_, vl_, vT + 1))
    a("v_and_b32 v%d, 15, v%d" % (vT, vLane))
    a("v_lshlrev_b32 v%d, 5, v%d" % (vT, vT))
    a("v_bfe_u32 v%d, v%d, 4, 1" % (vT + 1, vLane))
    a("v_lshl_add_u32 v%d, v%d, 4, v%d" % (vT, vT + 1, vT))
    a("s_lshl_b32 s%d, s%d, 10" % (sT0, sWave))
    a("v_add_u32 v%d, s%d, v%d" % (vT, sT0, vT))
    a("ds_write_b128 v%d, %s" % (vT, vr(vOA)))
    a("ds_write_b128 v%d, %s offset:512" % (vT, vr(vOA + 4)))
    a("ds_write_b128 v%d, %s offset:%d" % (vT, vr(vO), W * 1024))
    a("ds_write_b128 v%d, %s offset:%d" % (vT, vr(vO + 4), W * 1024 + 512))
    a("s_lshl_b32 s%d, s%d, 2" % (sT0, sWave))
    a("v_mov_b32 v%d, s%d" % (vT + 2, sT0))
    a("ds_write_b32 v%d, v%d offset:%d" % (vT + 2, vMcA, ML))
    a("ds_write_b32 v%d, v%d offset:%d" % (vT + 2, vLA, ML + 64))
    a("ds_write_b32 v%d, v%d offset:%d" % (vT + 2, vMc, ML + 128))
    a("ds_write_b32 v%d, v%d offset:%d" % (vT + 2, vL, ML + 192))
    a("s_waitcnt vmcnt(0) lgkmcnt(0)")
    a("s_barrier")
    a("s_cmp_ge_u32 s%d, 2" % sWave)
    a("s_cbranch_scc1 L_fin")
    vm, vl, vo = vBuf, vBuf + 16, vBuf + 32
    a("s_lshl_b32 s%d, s%d, 7" % (sT0, sWave))
    a("v_mov_b32 v%d, s%d" % (vT, sT0))
    for i in range(0, W, 4):
        a("ds_read_b128 %s, v%d offset:%d" % (vr(vm + i), vT, ML + 4 * i))
        a("ds_read_b128 %s, v%d offset:%d" % (vr(vl + i), vT, ML + 64 + 4 * i))
    a("v_lshlrev_b32 v%d, 4, v%d" % (vT + 1, vLane))
    a("s_mul_i32 s%d, s%d, %d" % (sT0, sWave, W * 1024))
    a("v_add_u32 v%d, s%d, v%d" % (vT + 2, sT0, vT + 1))
    for i in range(min(W, 4)):
        a("ds_read_b128 %s, v%d offset:%d" % (vr(vo + 4 * i), vT + 2, i * 1024))
    a("s_waitcnt lgkmcnt(%d)" % min(W, 4))
    a("v_max_f32 v%d, v%d, v%d" % (vMc, vm, vm + 1))
    for i in range(2, W, 2):
        a("v_max3_f32 v%d, v%d, v%d, v%d" % (vMc, vMc, vm + i, vm + i + 1))
    for i in range(W):
        a("v_sub_f32 v%d, v%d, v%d" % (vm + i, vm + i, vMc))
    for i in range(W):
        a("v_exp_f32 v%d, v%d" % (vm + i, vm + i))
    a("s_nop 0")
    a("v_mul_f32 v%d, v%d, v%d" % (vL, vm, vl))
    for i in range(1, W):
        a("v_fmac_f32 v%d, v%d, v%d" % (vL, vm + i, vl + i))
    for i0 in range(0, W, 4):
        if i0 > 0:
            for i in range(4):
                a("ds_read_b128 %s, v%d offset:%d" % (vr(vo + 4 * i), vT + 2, (i0 + i) * 1024))
        for i in range(4):
            a("s_waitcnt lgkmcnt(%d)" % (3 - i))
            for r in range(4):
                if i0 + i == 0:
                    a("v_mul_f32 v%d, v%d, v%d" % (vO + r, vm, vo + r))
                else:
                    a("v_fmac_f32 v%d, v%d, v%d" % (vO + r, vm + i0 + i, vo + 4 * i + r))
    a("s_lshl_b32 s%d, s2, 1" % sT0)
    a("s_add_u32 s%d, s%d, s%d" % (sT0, sT0, sWave))
    a("s_mul_i32 s%d, s%d, %d" % (sT0, sT0, REC))
    a("v_mov_b32 v%d, v%d" % (vT + 2, vMc))
    a("v_mov_b32 v%d, v%d" % (vT + 3, vL))
    a("buffer_store_dwordx4 %s, v%d, %s, s%d offen sc0 sc1" % (vr(vO), vT + 1, sr(sW), sT0))
    a("s_mov_b64 exec, 1")
    a("buffer_store_dwordx2 %s, v%d, %s, s%d offen offset:1024 sc0 sc1" % (vr(vT + 2, 2), vZero, sr(sW), sT0))
    a("s_lshl_b32 s%d, s%d, 1" % (sT2, sPair))
    a("s_add_u32 s%d, s%d, s%d" % (sT2, sT2, sWave))
    a("s_lshl_b32 s%d, s%d, 2" % (sT3, sWave))
    a("s_add_u32 s%d, s%d, s%d" % (sT3, sT3, sWsC))
    a("v_mov_b32 v%d, 1" % (vT + 5))
    a("s_waitcnt vmcnt(0)")
    a("buffer_atomic_add v%d, v%d, %s, s%d offen offset:4 sc0" % (vT + 5, vZero, sr(sW), sT3))
    a("s_waitcnt vmcnt(0)")
    a("v_readfirstlane_b32 s%d, v%d" % (sT1, vT + 5))
    a("s_mov_b64 exec, -1")
    a("s_nop 1")
    a("s_cmp_lg_u32 s%d, %d" % (sT1, S - 1))
    a("s_cbranch_scc1 L_fin")
    a("s_lshl_b32 s%d, s%d, 4" % (sT0, sPair))
    a("s_add_u32 s%d, s%d, s%d" % (sT0, sT0, sWave))
    a("s_mul_i32 s%d, s%d, %d" % (sT0, sT0, REC))
    vml = vBuf
    for i in range(S):
        a("s_add_u32 s%d, s%d, %d" % (sT1, sT0, i * 2 * REC))
        a("buffer_load_dwordx2 %s, v%d, %s, s%d offen offset:1024 sc0 sc1" % (vr(vml + 2 * i, 2), vZero, sr(sW), sT1))
    vo2 = vBuf + 32
    for i in range(S):
        a("s_add_u32 s%d, s%d, %d" % (sT1, sT0, i * 2 * REC))
        a("buffer_load_dwordx4 %s, v%d, %s, s%d offen sc0 sc1" % (vr(vo2 + 4 * i), vT + 1, sr(sW), sT1))
    a("s_waitcnt vmcnt(%d)" % S)
    a("v_max_f32 v%d, v%d, v%d" % (vMc, vml, vml + 2))
    for i in range(2, S):
        a("v_max_f32 v%d, v%d, v%d" % (vMc, vMc, vml + 2 * i))
    for i in range(S):
        a("v_sub_f32 v%d, v%d, v%d" % (vml + 2 * i, vml + 2 * i, vMc))
    for i in range(S):
        a("v_exp_f32 v%d, v%d" % (vml + 2 * i, vml + 2 * i))
    a("s_nop 0")
    a("v_mul_f32 v%d, v%d, v%d" % (vL, vml, vml + 1))
    for i in range(1, S):
        a("v_fmac_f32 v%d, v%d, v%d" % (vL, vml + 2 * i, vml + 2 * i + 1))
    a("v_rcp_f32 v%d, v%d" % (vL, vL))
    for i in range(S):
        a("s_waitcnt vmcnt(%d)" % (S - 1 - i))
        for r in range(4):
            if i == 0:
                a("v_mul_f32 v%d, v%d, v%d" % (vO + r, vml, vo2 + r))
            else:
                a("v_fmac_f32 v%d, v%d, v%d" % (vO + r, vml + 2 * i, vo2 + 4 * i + r))
    for r in range(4):
        a("v_mul_f32 v%d, v%d, v%d" % (vO + r, vO + r, vL))
    a("v_cvt_pk_bf16_f32 v%d, v%d, v%d" % (vO, vO, vO + 1))
    a("v_cvt_pk_bf16_f32 v%d, v%d, v%d" % (vO + 1, vO + 2, vO + 3))
    a("v_lshlrev_b32 v%d, 3, v%d" % (vT + 1, vLane))
    a("s_lshl_b32 s%d, s%d, 9" % (sT0, sT2))
    a("buffer_store_dwordx2 %s, v%d, %s, s%d offen" % (vr(vO, 2), vT + 1, sr(sO), sT0))
    a.label("L_fin")
    if P.diag:
        a("s_waitcnt vmcnt(0)")
        a("s_memrealtime s[58:59]")
        a("s_waitcnt lgkmcnt(0)")
        a("s_add_u32 s60, s%d, 0x40000000" % (sPtr + 10))
        a("s_addc_u32 s61, s%d, 0" % (sPtr + 11))
        a("s_and_b32 s61, s61, 0xffff")
        a("s_mov_b32 s62, 0x1000000")
        a("s_mov_b32 s63, 0x00020000")
        a("s_mul_i32 s28, s2, %d" % W)
        a("s_add_u32 s28, s28, s%d" % sWave)
        a("s_lshl_b32 s28, s28, 5")
        a("s_mov_b64 exec, 1")
        a("v_mov_b32 v4, s52")
        a("v_mov_b32 v5, s54")
        a("v_mov_b32 v6, s56")
        a("v_mov_b32 v7, s58")
        a("s_getreg_b32 s29, hwreg(HW_REG_XCC_ID)")
        a("v_mov_b32 v8, s29")
        a("s_getreg_b32 s29, hwreg(HW_REG_HW_ID)")
        a("v_mov_b32 v9, s29")
        a("v_mov_b32 v10, s78")
        a("v_mov_b32 v12, 0")
        a("v_subrev_u32 v11, %d, v%d" % (MBOX + 4 * NS - (W * 1024 + 128 + 4), vMaddr))
        a("buffer_store_dwordx4 v[4:7], v12, s[60:63], s28 offen")
        a("buffer_store_dwordx4 v[8:11], v12, s[60:63], s28 offen offset:16")
    a.label("L_done")
    a("s_endpgm")
    a.label("L_helper")
    a("s_setprio %d" % P.hprio)
    sNx, sPg, sN, sLast = 72, 73, 82, 83
    R0 = P.r0
    BASE = R0 * S
    POOL = NTICK - BASE
    assert NS <= R0 <= 256
    a("v_mov_b32 v%d, -1" % vT)
    a("v_mov_b32 v%d, -1" % (vT + 1))
    a("v_mov_b32 v%d, -1" % (vT + 2))
    a("v_mov_b32 v%d, -1" % (vT + 3))
    a("v_lshlrev_b32 v%d, 4, v%d" % (vT + 4, vLane))
    for i in range(MBN * 4 // 1024):
        a("ds_write_b128 v%d, %s offset:%d" % (vT + 4, vr(vT), MBOX + 1024 * i))
    a("v_lshlrev_b32 v%d, 3, v%d" % (vT, vLane))
    a("v_add_u32 v%d, s%d, v%d" % (vT, sJ, vT))
    a("v_lshlrev_b32 v%d, 2, v%d" % (vT + 1, vLane))
    for b in range(0, R0, 64):
        if R0 - b < 64:
            a("v_cmp_gt_u32 vcc, %d, v%d" % (R0 - b, vLane))
            a("s_and_saveexec_b64 s[84:85], vcc")
        a("ds_write_b32 v%d, v%d offset:%d" % (vT + 1, vT, MBOX + 4 * b))
        if R0 - b < 64:
            a("s_mov_b64 exec, s[84:85]")
        else:
            a("v_add_u32 v%d, %d, v%d" % (vT, 512, vT))
    a("ds_write_b32 v%d, v%d offset:%d" % (vZero, vZero, PADDR))
    a("v_mov_b32 v%d, %d" % (vPub, PADDR))
    a("s_mov_b32 s%d, %d" % (sNx, R0))
    a("s_mov_b32 s%d, 0" % sLast)
    if P.diag:
        a("s_mov_b32 s79, 0")
        a("s_mov_b32 s80, 0")
        a("s_mov_b32 s81, 0")
    a("s_waitcnt lgkmcnt(0)")
    a("s_barrier")
    a("s_mov_b64 exec, 1")
    a("s_lshl_b32 s%d, s%d, 2" % (sT2, sPair))
    a("s_cmp_lg_u32 s%d, 0" % sJ)
    a("s_cbranch_scc1 L_h_flagwait")
    a("v_mov_b32 v%d, 0" % vT)
    a("v_mov_b32 v%d, 0" % (vT + 1))
    a("v_mov_b32 v%d, 0" % (vT + 2))
    a("v_mov_b32 v%d, 0" % (vT + 3))
    a("buffer_store_dwordx4 %s, v%d, %s, s%d offen sc0 sc1" % (vr(vT), vZero, sr(sW), sWsC))
    a("s_waitcnt vmcnt(0)")
    a("v_mov_b32 v%d, 1" % vT)
    a("buffer_store_dword v%d, v%d, %s, s%d offen sc0 sc1" % (vT, vZero, sr(sD), sT2))
    a("s_waitcnt vmcnt(0)")
    a.label("L_h_flagwait")
    a.label("L_h_w0")
    a("ds_read_b32 v%d, v%d" % (vT, vPub))
    a("s_waitcnt lgkmcnt(0)")
    a("v_readfirstlane_b32 s%d, v%d" % (sPg, vT))
    a("s_add_u32 s%d, s%d, %d" % (sPg, sPg, NS + P.la + 2))
    a("s_cmp_le_u32 s%d, s%d" % (sNx, sPg))
    a("s_cbranch_scc1 L_h_flag")
    a("s_sleep 16")
    a("s_branch L_h_w0")
    a.label("L_h_flag")
    a("buffer_load_dword v%d, v%d, %s, s%d offen sc0 sc1" % (vT, vZero, sr(sD), sT2))
    a("s_waitcnt vmcnt(0)")
    a("v_readfirstlane_b32 s%d, v%d" % (sPg, vT))
    a("s_cmp_lg_u32 s%d, 0" % sPg)
    a("s_cbranch_scc1 L_h_loop")
    a("s_sleep 4")
    a("s_branch L_h_flag")
    a.label("L_h_loop")
    a("ds_read_b32 v%d, v%d" % (vT, vPub))
    a("s_waitcnt lgkmcnt(0)")
    a("v_readfirstlane_b32 s%d, v%d" % (sPg, vT))
    a("s_add_u32 s%d, s%d, %d" % (sPg, sPg, NS + P.la))
    a("s_cmp_le_u32 s%d, s%d" % (sNx, sPg))
    a("s_cbranch_scc1 L_h_go")
    if P.diag:
        a("s_add_u32 s78, s78, 1")
    a("s_sleep %d" % P.hsleep)
    a("s_branch L_h_loop")
    a.label("L_h_go")
    if P.diag:
        a("s_memrealtime s[74:75]")
        a("s_waitcnt lgkmcnt(0)")
    a("s_sub_i32 s%d, %d, s%d" % (sN, POOL, sLast))
    a("s_ashr_i32 s%d, s%d, %d" % (sN, sN, P.gdiv))
    a("s_max_i32 s%d, s%d, %d" % (sN, sN, P.nmin))
    a("s_min_i32 s%d, s%d, %d" % (sN, sN, P.nmax))
    a("v_mov_b32 v%d, s%d" % (vT + 1, sN))
    a("buffer_atomic_add v%d, v%d, %s, s%d offen sc0" % (vT + 1, vZero, sr(sW), sWsC))
    a("s_lshl_b32 s%d, s%d, 2" % (sT0, sNx))
    a("s_add_u32 s%d, s%d, %d" % (sT0, sT0, MBOX))
    a("s_add_u32 s%d, s%d, s%d" % (sNx, sNx, sN))
    a("s_waitcnt vmcnt(0)")
    if P.diag:
        a("s_memrealtime s[76:77]")
        a("s_waitcnt lgkmcnt(0)")
        a("s_sub_u32 s76, s76, s74")
        a("s_add_u32 s79, s79, s76")
        a("s_max_u32 s80, s80, s76")
        a("s_add_u32 s81, s81, 1")
    a("v_readfirstlane_b32 s%d, v%d" % (sLast, vT + 1))
    a("s_add_u32 s%d, s%d, s%d" % (sLast, sLast, sN))
    a("s_lshl_b32 s%d, 1, s%d" % (sT1, sN))
    a("s_sub_u32 s%d, s%d, 1" % (sT1, sT1))
    a("s_mov_b32 exec_lo, s%d" % sT1)
    a("s_sub_u32 s%d, s%d, s%d" % (sT1, sLast, sN))
    a("s_add_u32 s%d, s%d, %d" % (sT1, sT1, BASE))
    a("v_add_u32 v%d, s%d, v%d" % (vT + 1, sT1, vLane))
    a("v_lshlrev_b32 v%d, 2, v%d" % (vT + 2, vLane))
    a("v_add_u32 v%d, s%d, v%d" % (vT + 2, sT0, vT + 2))
    a("ds_write_b32 v%d, v%d" % (vT + 2, vT + 1))
    a("s_mov_b64 exec, 1")
    a("s_cmp_lt_u32 s%d, %d" % (sLast, POOL))
    a("s_cbranch_scc1 L_h_loop")
    a("s_mov_b64 exec, 0xff")
    a("s_lshl_b32 s%d, s%d, 2" % (sT0, sNx))
    a("s_add_u32 s%d, s%d, %d" % (sT0, sT0, MBOX))
    a("v_lshlrev_b32 v%d, 2, v%d" % (vT, vLane))
    a("v_add_u32 v%d, s%d, v%d" % (vT, sT0, vT))
    a("v_mov_b32 v%d, %d" % (vT + 1, NTICK))
    a("ds_write_b32 v%d, v%d" % (vT, vT + 1))
    a("s_waitcnt lgkmcnt(0)")
    if P.diag:
        a("s_add_u32 s60, s%d, 0x40100000" % (sPtr + 10))
        a("s_addc_u32 s61, s%d, 0" % (sPtr + 11))
        a("s_and_b32 s61, s61, 0xffff")
        a("s_mov_b32 s62, 0x100000")
        a("s_mov_b32 s63, 0x00020000")
        a("s_lshl_b32 s73, s2, 8")
        a("s_mov_b64 exec, 1")
        a("v_mov_b32 v4, s79")
        a("v_mov_b32 v5, s81")
        a("v_mov_b32 v6, s80")
        a("v_mov_b32 v7, s78")
        a("buffer_store_dwordx4 v[4:7], v%d, s[60:63], s73 offen" % vZero)
    a("s_endpgm")

    lds = max(MBOX + MBN * 4, P.lds)
    out = HEADER
    out += "; @launch grid=(%d,1,1) block=(%d,1,1) lds=%d\n" % (NWG, (W + 1) * 64, lds)
    out += '.amdgcn_target "amdgcn-amd-amdhsa--gfx950"\n.text\n'
    out += ".globl %s_kernel\n.p2align 8\n.type %s_kernel,@function\n%s_kernel:\n" % (NAME, NAME, NAME)
    out += a.text()
    out += '.section .rodata,"a"\n.p2align 6\n.amdhsa_kernel %s_kernel\n' % NAME
    nv = max(nvgpr, vBuf + 64)
    out += "  .amdhsa_next_free_vgpr %d\n  .amdhsa_next_free_sgpr 88\n  .amdhsa_accum_offset %d\n" % (nv, (nv + 3) // 4 * 4)
    out += "  .amdhsa_group_segment_fixed_size 0\n  .amdhsa_kernarg_size 48\n  .amdhsa_user_sgpr_count 2\n"
    out += "  .amdhsa_user_sgpr_kernarg_segment_ptr 1\n  .amdhsa_system_sgpr_workgroup_id_x 1\n.end_amdhsa_kernel\n"
    return out

def parse(argv=None):
    ap = argparse.ArgumentParser()
    ap.add_argument("--waves", type=int, default=4)
    ap.add_argument("--mg", type=int, default=4)
    ap.add_argument("--stages", type=int, default=2)
    ap.add_argument("--policy", default="nt")
    ap.add_argument("--lds", type=int, default=98304)
    ap.add_argument("--diag", type=int, default=0)
    ap.add_argument("--la", type=int, default=2)
    ap.add_argument("--r0", type=int, default=52)
    ap.add_argument("--gdiv", type=int, default=4)
    ap.add_argument("--nmin", type=int, default=1)
    ap.add_argument("--nmax", type=int, default=4)
    ap.add_argument("--hprio", type=int, default=3)
    ap.add_argument("--hsleep", type=int, default=2)
    ap.add_argument("--rot", type=int, default=0)
    ap.add_argument("--mul", type=int, default=1)
    ap.add_argument("-o", default="-")
    return ap.parse_args(argv)

if __name__ == "__main__":
    P = parse()
    t = gen(P)
    if P.o == "-":
        sys.stdout.write(t)
    else:
        open(P.o, "w").write(t)
```

```python
import argparse, math, sys, struct

NAME = "standalone__softmax_full_bidir__decode"
B, H, SKV, DH = 4, 16, 16384, 256
NH = B * H
ROWB = DH * 2
HEADB = SKV * ROWB
LOG2E = 1.4426950408889634

HEADER = """; Kernarg layout for this problem (48 bytes, ptrs only, base s[0:1]):
"""

def f32hex(x):
    return "0x%08x" % struct.unpack("<I", struct.pack("<f", x))[0]

class A:
    def __init__(self):
        self.l = []
    def __call__(self, s):
        self.l.append("    " + s)
    def label(self, s):
        self.l.append(s + ":")
    def c(self, s):
        self.l.append("    ; " + s)
    def text(self):
        return "\n".join(self.l) + "\n"

def vr(a, n=4):
    return "v[%d:%d]" % (a, a + n - 1)
def sr(a, n=4):
    return "s[%d:%d]" % (a, a + n - 1)

def gen(P):
    W = P.waves
    S = 8
    NWG = (NH // 2) * S
    MG = P.mg
    NS = P.stages
    TK = 4 * MG
    TB = TK * ROWB
    CK = W * TK
    CB = CK * ROWB
    NTH = SKV // CK
    NTICK = 2 * NTH
    NL = 2 * MG
    pol = (" " + P.policy) if P.policy else ""
    REC = 1024 + 128
    c_hex = f32hex(LOG2E / 16.0)
    ML = 2 * W * 1024
    MBOX = ML + 256
    MBN = NTICK + 64
    MBN = (MBN + 255) // 256 * 256
    NEGBIG = "0xff7fffff"

    a = A()
    sK, sV, sQ, sW = 4, 8, 12, 16
    sOff, sOff2, sLim, sPair, sJ, sWave, sC, sWOff = 20, 21, 22, 23, 24, 25, 26, 27
    sT0, sT1 = 28, 29
    sT2, sT3 = 30, 31
    sPtr = 32
    sO = 44
    sD = 48
    sHOff = 64
    sTk = 66
    sRot = 65
    sWsC, sAtc = 70, 71
    vKoff, vVoff, vLane = 1, 2, 3
    vQ = 4
    vMask = 12
    vM, vL, vMc, vAl = 16, 17, 18, 19
    vO = 20
    vC = 28
    vS = 44
    vT = 48
    vTk, vMaddr, vPub, vZero = 54, 55, 56, 57
    vRnd = 58
    vQ2 = 64
    vOA = 72
    vMcA, vLA = 80, 81
    vBuf = 84
    def Kreg(s, i): return vBuf + s * 8 * NL + 4 * i
    def Vreg(s, i): return vBuf + s * 8 * NL + 4 * NL + 4 * i
    nvgpr = vBuf + NS * 8 * NL
    assert MG <= 4 and NS <= 4

    def load_tile(base_fn, s, srd, voff):
        for m in range(MG):
            for j in range(2):
                off = m * 2048 + j * 256
                so = sOff
                if off >= 4096:
                    off -= 4096
                    so = sOff2
                a("buffer_load_dwordx4 %s, v%d, %s, s%d offen offset:%d%s" %
                  (vr(base_fn(s, m * 2 + j)), voff, sr(srd), so, off, pol))

    def set_off(src):
        if P.rot or P.mul != 1:
            a("s_mul_i32 s%d, s%d, %d" % (sOff, src, P.mul))
            a("s_add_u32 s%d, s%d, s%d" % (sOff, sOff, sRot))
            a("s_and_b32 s%d, s%d, %d" % (sOff, sOff, NTH - 1))
            a("s_andn2_b32 s%d, s%d, %d" % (sOff2, src, NTH - 1))
            a("s_or_b32 s%d, s%d, s%d" % (sOff, sOff, sOff2))
            a("s_mul_i32 s%d, s%d, %d" % (sOff, sOff, CB))
        else:
            a("s_mul_i32 s%d, s%d, %d" % (sOff, src, CB))
        a("s_add_u32 s%d, s%d, s%d" % (sOff, sOff, sWOff))
        a("s_add_u32 s%d, s%d, 4096" % (sOff2, sOff))

    if P.diag or P.diag2:
        a("s_memrealtime s[52:53]")
        a("s_mov_b32 s78, 0")
    a.c("uniform exit for workgroups past the data")
    a("s_cmp_ge_u32 s2, %d" % NWG)
    a("s_cbranch_scc1 L_done")
    a("s_load_dwordx4 %s, s[0:1], 0" % sr(sPtr))
    a("s_load_dwordx4 %s, s[0:1], 16" % sr(sPtr + 4))
    a("s_load_dwordx4 %s, s[0:1], 32" % sr(sPtr + 8))
    a("v_and_b32 v%d, 63, v0" % vLane)
    a("v_lshrrev_b32 v%d, 6, v0" % vT)
    a("v_lshrrev_b32 v%d, 4, v%d" % (vT + 1, vLane))
    a("v_readfirstlane_b32 s%d, v%d" % (sWave, vT))
    a("s_lshr_b32 s%d, s2, 3" % sPair)
    a("s_and_b32 s%d, s2, 7" % sJ)
    a("v_bfe_u32 v%d, v%d, 2, 2" % (vT + 2, vLane))
    a("v_lshlrev_b32 v%d, 9, v%d" % (vT + 2, vT + 2))
    a("v_lshl_add_u32 v%d, v%d, 6, v%d" % (vT + 2, vT + 1, vT + 2))
    a("v_and_b32 v%d, 3, v%d" % (vT + 3, vLane))
    a("v_lshl_add_u32 v%d, v%d, 4, v%d" % (vKoff, vT + 3, vT + 2))
    a("v_and_b32 v%d, 15, v%d" % (vT + 4, vLane))
    a("v_lshlrev_b32 v%d, 4, v%d" % (vT + 4, vT + 4))
    a("v_lshl_add_u32 v%d, v%d, 9, v%d" % (vVoff, vT + 1, vT + 4))
    a("v_lshlrev_b32 v%d, 4, v%d" % (vT + 3, vT + 3))
    a("v_lshl_add_u32 v%d, v%d, 6, v%d" % (vT + 5, vT + 1, vT + 3))
    a("v_mov_b32 v%d, 0" % vZero)
    a("s_lshr_b32 s%d, s%d, %d" % (sT1, sPair, 32 - 24))
    a("s_lshl_b32 s%d, s%d, 24" % (sT0, sPair))
    a("s_mul_i32 s%d, s%d, %d" % (sWOff, sWave, TB))
    a("s_lshl_b32 s%d, s%d, 3" % (sHOff, sPair))
    a("s_mul_i32 s%d, s%d, %d" % (sRot, sPair, P.rot))
    for s in range(NS):
        a("s_add_u32 s%d, s%d, %d" % (sTk + s, sJ, s * S))
    set_off(sTk)
    a("s_waitcnt lgkmcnt(0)")
    for (srd, p) in ((sK, sPtr + 2), (sV, sPtr + 4)):
        a("s_add_u32 s%d, s%d, s%d" % (srd, p, sT0))
        a("s_addc_u32 s%d, s%d, s%d" % (srd + 1, p + 1, sT1))
        a("s_and_b32 s%d, s%d, 0xffff" % (srd + 1, srd + 1))
        a("s_mov_b32 s%d, %d" % (srd + 2, 2 * HEADB))
        a("s_mov_b32 s%d, 0x00020000" % (srd + 3))
    a("s_mov_b32 s%d, s%d" % (sD, sPtr + 8))
    a("s_and_b32 s%d, s%d, 0xffff" % (sD + 1, sPtr + 9))
    a("s_mov_b32 s%d, 256" % (sD + 2))
    a("s_mov_b32 s%d, 0x00020000" % (sD + 3))
    a("s_mov_b32 s%d, s%d" % (sW, sPtr + 10))
    a("s_and_b32 s%d, s%d, 0xffff" % (sW + 1, sPtr + 11))
    a("s_mov_b32 s%d, %d" % (sW + 2, 0x200000))
    a("s_mov_b32 s%d, 0x00020000" % (sW + 3))
    a("s_lshl_b32 s%d, s%d, 8" % (sWsC, sPair))
    a("s_add_u32 s%d, s%d, 0x100000" % (sWsC, sWsC))
    a("s_mov_b32 s%d, 0" % sAtc)
    a("s_mov_b32 s%d, s%d" % (sQ, sPtr))
    a("s_and_b32 s%d, s%d, 0xffff" % (sQ + 1, sPtr + 1))
    a("s_mov_b32 s%d, %d" % (sQ + 2, NH * ROWB))
    a("s_mov_b32 s%d, 0x00020000" % (sQ + 3))
    a("s_lshl_b32 s%d, s%d, 10" % (sT0, sPair))

    PADDR = MBOX - 4
    a("s_cmp_eq_u32 s%d, %d" % (sWave, W))
    a("s_cbranch_scc1 L_helper")
    for s in range(NS):
        if s > 0:
            set_off(sTk + s)
        load_tile(Kreg, s, sK, vKoff)
        if s == 0:
            a("buffer_load_dwordx4 %s, v%d, %s, s%d offen" % (vr(vQ), vT + 5, sr(sQ), sT0))
            a("buffer_load_dwordx4 %s, v%d, %s, s%d offen offset:256" % (vr(vQ + 4), vT + 5, sr(sQ), sT0))
            a("buffer_load_dwordx4 %s, v%d, %s, s%d offen offset:512" % (vr(vQ2), vT + 5, sr(sQ), sT0))
            a("buffer_load_dwordx4 %s, v%d, %s, s%d offen offset:768" % (vr(vQ2 + 4), vT + 5, sr(sQ), sT0))
        load_tile(Vreg, s, sV, vVoff)
    a("s_mov_b32 s%d, s%d" % (sW, sPtr + 10))
    a("s_and_b32 s%d, s%d, 0xffff" % (sW + 1, sPtr + 11))
    a("s_mov_b32 s%d, %d" % (sW + 2, 0x200000))
    a("s_mov_b32 s%d, 0x00020000" % (sW + 3))
    a("s_mov_b32 s%d, s%d" % (sO, sPtr + 6))
    a("s_and_b32 s%d, s%d, 0xffff" % (sO + 1, sPtr + 7))
    a("s_mov_b32 s%d, %d" % (sO + 2, NH * ROWB))
    a("s_mov_b32 s%d, 0x00020000" % (sO + 3))
    a("v_and_b32 v%d, 1, v%d" % (vT, vLane))
    a("v_lshlrev_b32 v%d, 4, v%d" % (vT, vT))
    a("v_mov_b32 v%d, 0xffff" % (vT + 1))
    a("v_lshlrev_b32 v%d, v%d, v%d" % (vT, vT, vT + 1))
    a("v_bfe_u32 v%d, v%d, 1, 2" % (vT + 1, vLane))
    for r in range(4):
        a("v_cmp_eq_u32 vcc, %d, v%d" % (r, vT + 1))
        a("s_nop 1")
        a("v_cndmask_b32 v%d, 0, v%d, vcc" % (vMask + r, vT))
    a("v_mov_b32 v%d, %s" % (vM, NEGBIG))
    a("v_mov_b32 v%d, %s" % (vMc, NEGBIG))
    a("v_mov_b32 v%d, 0" % vL)
    for i in range(8):
        a("v_mov_b32 v%d, 0" % (vO + i))
    a("s_mov_b32 s%d, %s" % (sC, c_hex))
    a("s_mov_b32 s%d, %d" % (sLim, NTH))
    a("v_mov_b32 v%d, %d" % (vMaddr, MBOX + 4 * NS))
    a("v_mov_b32 v%d, %d" % (vPub, PADDR))
    a("v_mov_b32 v%d, 0" % vRnd)
    a("s_barrier")
    if P.diag or P.diag2:
        a("s_waitcnt vmcnt(%d)" % (NS * 2 * NL - NL))
        a("s_memrealtime s[54:55]")

    def loop(tag):
        for s in range(NS):
            t = "%s%d" % (tag, s)
            a.label("L_loop_" + t)
            a("s_cmp_lt_u32 s%d, s%d" % (sTk + s, sLim))
            a("s_cbranch_scc0 L_switch_" + t)
            a("ds_max_u32 v%d, v%d" % (vPub, vRnd))
            a("ds_read_b32 v%d, v%d" % (vTk, vMaddr))
            a("s_waitcnt vmcnt(%d)" % (NL + (NS - 1) * 2 * NL))
            for m in range(MG):
                a("v_mfma_f32_16x16x32_bf16 %s, %s, %s, 0" % (vr(vC + 4 * m), vr(Kreg(s, 2 * m)), vr(vQ)))
            for m in range(MG):
                a("v_mfma_f32_16x16x32_bf16 %s, %s, %s, %s" % (vr(vC + 4 * m), vr(Kreg(s, 2 * m + 1)), vr(vQ + 4), vr(vC + 4 * m)))
            a("s_waitcnt lgkmcnt(0)")
            a("v_readfirstlane_b32 s%d, v%d" % (sTk + s, vTk))
            a("s_cmp_eq_u32 s%d, -1" % (sTk + s))
            a("s_cbranch_scc1 L_poll_" + t)
            a.label("L_have_" + t)
            set_off(sTk + s)
            load_tile(Kreg, s, sK, vKoff)
            a("s_nop 3")
            for m in range(MG):
                a("v_mov_b32_dpp v%d, v%d quad_perm:[0,0,0,0] row_mask:0xf bank_mask:0xf" % (vS + m, vC + 4 * m))
            for r in range(1, 4):
                if MG < 4:
                    a("s_nop 1")
                for m in range(MG):
                    a("v_add_f32_dpp v%d, v%d, v%d quad_perm:[%d,%d,%d,%d] row_mask:0xf bank_mask:0xf" %
                      (vS + m, vC + 4 * m + r, vS + m, r, r, r, r))
            if MG == 4:
                a("v_max3_f32 v%d, v%d, v%d, v%d" % (vT, vS, vS + 1, vS + 2))
                a("v_max3_f32 v%d, v%d, v%d, v%d" % (vT, vT, vS + 3, vM))
            elif MG == 2:
                a("v_max3_f32 v%d, v%d, v%d, v%d" % (vT, vS, vS + 1, vM))
            else:
                a("v_max_f32 v%d, v%d, v%d" % (vT, vS, vM))
            a("v_mov_b32 v%d, v%d" % (vT + 1, vT))
            a("s_nop 1")
            a("v_permlane16_swap_b32 v%d, v%d" % (vT, vT + 1))
            a("s_nop 1")
            a("v_max_f32 v%d, v%d, v%d" % (vT, vT, vT + 1))
            a("v_mov_b32 v%d, v%d" % (vT + 1, vT))
            a("s_nop 1")
            a("v_permlane32_swap_b32 v%d, v%d" % (vT, vT + 1))
            a("s_nop 1")
            a("v_max_f32 v%d, v%d, v%d" % (vM, vT, vT + 1))
            a("v_mul_f32 v%d, s%d, v%d" % (vT, sC, vM))
            a("v_sub_f32 v%d, v%d, v%d" % (vAl, vMc, vT))
            a("v_mov_b32 v%d, v%d" % (vMc, vT))
            a("v_exp_f32 v%d, v%d" % (vAl, vAl))
            for m in range(MG):
                a("v_fma_f32 v%d, v%d, s%d, -v%d" % (vS + m, vS + m, sC, vMc))
            for m in range(MG):
                a("v_exp_f32 v%d, v%d" % (vS + m, vS + m))
            a("v_mul_f32 v%d, v%d, v%d" % (vL, vL, vAl))
            for i in range(8):
                a("v_mul_f32 v%d, v%d, v%d" % (vO + i, vO + i, vAl))
            for m in range(MG):
                a("v_add_f32 v%d, v%d, v%d" % (vL, vL, vS + m))
            for m in range(MG):
                a("v_cvt_pk_bf16_f32 v%d, v%d, v%d" % (vS + m, vS + m, vS + m))
            for m in range(MG):
                for r in range(4):
                    a("v_and_b32 v%d, v%d, v%d" % (vC + 4 * m + r, vS + m, vMask + r))
            a("v_add_u32 v%d, 4, v%d" % (vMaddr, vMaddr))
            a("v_add_u32 v%d, 1, v%d" % (vRnd, vRnd))
            a("s_waitcnt vmcnt(%d)" % ((NS - 1) * 2 * NL + NL))
            a("s_nop 1")
            for m in range(MG):
                for h in range(2):
                    a("v_mfma_f32_16x16x32_bf16 %s, %s, %s, %s" % (vr(vO + 4 * h), vr(vC + 4 * m), vr(Vreg(s, 2 * m + h)), vr(vO + 4 * h)))
            load_tile(Vreg, s, sV, vVoff)
        a("s_branch L_loop_%s0" % tag)
        for s in range(NS):
            t = "%s%d" % (tag, s)
            a.label("L_poll_" + t)
            if P.diag:
                a("s_add_u32 s78, s78, 1")
            a("s_sleep 1")
            a("ds_read_b32 v%d, v%d" % (vTk, vMaddr))
            a("s_waitcnt lgkmcnt(0)")
            a("v_readfirstlane_b32 s%d, v%d" % (sTk + s, vTk))
            a("s_cmp_eq_u32 s%d, -1" % (sTk + s))
            a("s_cbranch_scc1 L_poll_" + t)
            a("s_branch L_have_" + t)
            a.label("L_switch_" + t)
            a("s_cmp_eq_u32 s%d, %d" % (sLim, NTICK))
            a("s_cbranch_scc1 L_epi")
            a("s_nop 7")
            for i in range(8):
                a("v_mov_b32 v%d, v%d" % (vOA + i, vO + i))
                a("v_mov_b32 v%d, 0" % (vO + i))
                a("v_mov_b32 v%d, v%d" % (vQ + i, vQ2 + i))
            a("v_mov_b32 v%d, v%d" % (vMcA, vMc))
            a("v_mov_b32 v%d, v%d" % (vLA, vL))
            a("v_mov_b32 v%d, %s" % (vM, NEGBIG))
            a("v_mov_b32 v%d, %s" % (vMc, NEGBIG))
            a("v_mov_b32 v%d, 0" % vL)
            a("s_mov_b32 s%d, %d" % (sLim, NTICK))
            a("s_branch L_loop_" + t)
    loop("c")

    a.label("L_epi")
    if P.diag or P.diag2:
        a("s_memrealtime s[56:57]")
    a("s_nop 7")
    for vl_ in (vLA, vL):
        a("v_mov_b32 v%d, v%d" % (vT + 1, vl_))
        a("s_nop 1")
        a("v_permlane16_swap_b32 v%d, v%d" % (vl_, vT + 1))
        a("s_nop 1")
        a("v_add_f32 v%d, v%d, v%d" % (vl_, vl_, vT + 1))
        a("v_mov_b32 v%d, v%d" % (vT + 1, vl_))
        a("s_nop 1")
        a("v_permlane32_swap_b32 v%d, v%d" % (vl_, vT + 1))
        a("s_nop 1")
        a("v_add_f32 v%d, v%d, v%d" % (vl_, vl_, vT + 1))
    a("v_and_b32 v%d, 15, v%d" % (vT, vLane))
    a("v_lshlrev_b32 v%d, 5, v%d" % (vT, vT))
    a("v_bfe_u32 v%d, v%d, 4, 1" % (vT + 1, vLane))
    a("v_lshl_add_u32 v%d, v%d, 4, v%d" % (vT, vT + 1, vT))
    a("s_lshl_b32 s%d, s%d, 10" % (sT0, sWave))
    a("v_add_u32 v%d, s%d, v%d" % (vT, sT0, vT))
    a("ds_write_b128 v%d, %s" % (vT, vr(vOA)))
    a("ds_write_b128 v%d, %s offset:512" % (vT, vr(vOA + 4)))
    a("ds_write_b128 v%d, %s offset:%d" % (vT, vr(vO), W * 1024))
    a("ds_write_b128 v%d, %s offset:%d" % (vT, vr(vO + 4), W * 1024 + 512))
    a("s_lshl_b32 s%d, s%d, 2" % (sT0, sWave))
    a("v_mov_b32 v%d, s%d" % (vT + 2, sT0))
    a("ds_write_b32 v%d, v%d offset:%d" % (vT + 2, vMcA, ML))
    a("ds_write_b32 v%d, v%d offset:%d" % (vT + 2, vLA, ML + 64))
    a("ds_write_b32 v%d, v%d offset:%d" % (vT + 2, vMc, ML + 128))
    a("ds_write_b32 v%d, v%d offset:%d" % (vT + 2, vL, ML + 192))
    a("s_waitcnt vmcnt(0) lgkmcnt(0)")
    a("s_barrier")
    a("s_cmp_ge_u32 s%d, 2" % sWave)
    a("s_cbranch_scc1 L_fin")
    vm, vl, vo = vBuf, vBuf + 16, vBuf + 32
    a("s_lshl_b32 s%d, s%d, 7" % (sT0, sWave))
    a("v_mov_b32 v%d, s%d" % (vT, sT0))
    for i in range(0, W, 4):
        a("ds_read_b128 %s, v%d offset:%d" % (vr(vm + i), vT, ML + 4 * i))
        a("ds_read_b128 %s, v%d offset:%d" % (vr(vl + i), vT, ML + 64 + 4 * i))
    a("v_lshlrev_b32 v%d, 4, v%d" % (vT + 1, vLane))
    a("s_mul_i32 s%d, s%d, %d" % (sT0, sWave, W * 1024))
    a("v_add_u32 v%d, s%d, v%d" % (vT + 2, sT0, vT + 1))
    for i in range(min(W, 4)):
        a("ds_read_b128 %s, v%d offset:%d" % (vr(vo + 4 * i), vT + 2, i * 1024))
    a("s_waitcnt lgkmcnt(%d)" % min(W, 4))
    a("v_max_f32 v%d, v%d, v%d" % (vMc, vm, vm + 1))
    for i in range(2, W, 2):
        a("v_max3_f32 v%d, v%d, v%d, v%d" % (vMc, vMc, vm + i, vm + i + 1))
    for i in range(W):
        a("v_sub_f32 v%d, v%d, v%d" % (vm + i, vm + i, vMc))
    for i in range(W):
        a("v_exp_f32 v%d, v%d" % (vm + i, vm + i))
    a("s_nop 0")
    a("v_mul_f32 v%d, v%d, v%d" % (vL, vm, vl))
    for i in range(1, W):
        a("v_fmac_f32 v%d, v%d, v%d" % (vL, vm + i, vl + i))
    for i0 in range(0, W, 4):
        if i0 > 0:
            for i in range(4):
                a("ds_read_b128 %s, v%d offset:%d" % (vr(vo + 4 * i), vT + 2, (i0 + i) * 1024))
        for i in range(4):
            a("s_waitcnt lgkmcnt(%d)" % (3 - i))
            for r in range(4):
                if i0 + i == 0:
                    a("v_mul_f32 v%d, v%d, v%d" % (vO + r, vm, vo + r))
                else:
                    a("v_fmac_f32 v%d, v%d, v%d" % (vO + r, vm + i0 + i, vo + 4 * i + r))
    a("s_lshl_b32 s%d, s2, 1" % sT0)
    a("s_add_u32 s%d, s%d, s%d" % (sT0, sT0, sWave))
    a("s_mul_i32 s%d, s%d, %d" % (sT0, sT0, REC))
    a("v_mov_b32 v%d, v%d" % (vT + 2, vMc))
    a("v_mov_b32 v%d, v%d" % (vT + 3, vL))
    a("buffer_store_dwordx4 %s, v%d, %s, s%d offen sc0 sc1" % (vr(vO), vT + 1, sr(sW), sT0))
    a("s_mov_b64 exec, 1")
    a("buffer_store_dwordx2 %s, v%d, %s, s%d offen offset:1024 sc0 sc1" % (vr(vT + 2, 2), vZero, sr(sW), sT0))
    a("s_lshl_b32 s%d, s%d, 1" % (sT2, sPair))
    a("s_add_u32 s%d, s%d, s%d" % (sT2, sT2, sWave))
    a("s_lshl_b32 s%d, s%d, 2" % (sT3, sWave))
    a("s_add_u32 s%d, s%d, s%d" % (sT3, sT3, sWsC))
    a("v_mov_b32 v%d, 1" % (vT + 5))
    a("s_waitcnt vmcnt(0)")
    a("buffer_atomic_add v%d, v%d, %s, s%d offen offset:4 sc0" % (vT + 5, vZero, sr(sW), sT3))
    a("s_waitcnt vmcnt(0)")
    a("v_readfirstlane_b32 s%d, v%d" % (sT1, vT + 5))
    a("s_mov_b64 exec, -1")
    a("s_nop 1")
    a("s_cmp_lg_u32 s%d, %d" % (sT1, S - 1))
    a("s_cbranch_scc1 L_fin")
    a("s_lshl_b32 s%d, s%d, 4" % (sT0, sPair))
    a("s_add_u32 s%d, s%d, s%d" % (sT0, sT0, sWave))
    a("s_mul_i32 s%d, s%d, %d" % (sT0, sT0, REC))
    vml = vBuf
    for i in range(S):
        a("s_add_u32 s%d, s%d, %d" % (sT1, sT0, i * 2 * REC))
        a("buffer_load_dwordx2 %s, v%d, %s, s%d offen offset:1024 sc0 sc1" % (vr(vml + 2 * i, 2), vZero, sr(sW), sT1))
    vo2 = vBuf + 32
    for i in range(S):
        a("s_add_u32 s%d, s%d, %d" % (sT1, sT0, i * 2 * REC))
        a("buffer_load_dwordx4 %s, v%d, %s, s%d offen sc0 sc1" % (vr(vo2 + 4 * i), vT + 1, sr(sW), sT1))
    a("s_waitcnt vmcnt(%d)" % S)
    a("v_max_f32 v%d, v%d, v%d" % (vMc, vml, vml + 2))
    for i in range(2, S):
        a("v_max_f32 v%d, v%d, v%d" % (vMc, vMc, vml + 2 * i))
    for i in range(S):
        a("v_sub_f32 v%d, v%d, v%d" % (vml + 2 * i, vml + 2 * i, vMc))
    for i in range(S):
        a("v_exp_f32 v%d, v%d" % (vml + 2 * i, vml + 2 * i))
    a("s_nop 0")
    a("v_mul_f32 v%d, v%d, v%d" % (vL, vml, vml + 1))
    for i in range(1, S):
        a("v_fmac_f32 v%d, v%d, v%d" % (vL, vml + 2 * i, vml + 2 * i + 1))
    a("v_rcp_f32 v%d, v%d" % (vL, vL))
    for i in range(S):
        a("s_waitcnt vmcnt(%d)" % (S - 1 - i))
        for r in range(4):
            if i == 0:
                a("v_mul_f32 v%d, v%d, v%d" % (vO + r, vml, vo2 + r))
            else:
                a("v_fmac_f32 v%d, v%d, v%d" % (vO + r, vml + 2 * i, vo2 + 4 * i + r))
    for r in range(4):
        a("v_mul_f32 v%d, v%d, v%d" % (vO + r, vO + r, vL))
    a("v_cvt_pk_bf16_f32 v%d, v%d, v%d" % (vO, vO, vO + 1))
    a("v_cvt_pk_bf16_f32 v%d, v%d, v%d" % (vO + 1, vO + 2, vO + 3))
    a("v_lshlrev_b32 v%d, 3, v%d" % (vT + 1, vLane))
    a("s_lshl_b32 s%d, s%d, 9" % (sT0, sT2))
    a("buffer_store_dwordx2 %s, v%d, %s, s%d offen" % (vr(vO, 2), vT + 1, sr(sO), sT0))
    a.label("L_fin")
    if P.diag2:
        a("s_waitcnt vmcnt(0)")
        a("s_memrealtime s[58:59]")
        a("s_waitcnt lgkmcnt(0)")
        a("s_mov_b64 exec, 1")
        a("s_not_b32 s28, s52")
        a("v_mov_b32 v4, s28")
        a("buffer_atomic_umax v4, v%d, %s, 0 offen" % (vZero, sr(sD)))
        a("v_mov_b32 v5, s54")
        a("buffer_atomic_umax v5, v%d, %s, 0 offen offset:4" % (vZero, sr(sD)))
        a("v_mov_b32 v6, s56")
        a("buffer_atomic_umax v6, v%d, %s, 0 offen offset:8" % (vZero, sr(sD)))
        a("v_mov_b32 v7, s58")
        a("buffer_atomic_umax v7, v%d, %s, 0 offen offset:12" % (vZero, sr(sD)))
        a("s_not_b32 s28, s54")
        a("v_mov_b32 v8, s28")
        a("buffer_atomic_umax v8, v%d, %s, 0 offen offset:16" % (vZero, sr(sD)))
        a("s_not_b32 s28, s56")
        a("v_mov_b32 v9, s28")
        a("buffer_atomic_umax v9, v%d, %s, 0 offen offset:20" % (vZero, sr(sD)))
        a("v_mov_b32 v10, s52")
        a("buffer_atomic_umax v10, v%d, %s, 0 offen offset:24" % (vZero, sr(sD)))
        a("s_cmp_lt_u32 s2, 8")
        a("s_cbranch_scc0 L_done")
        a("s_getreg_b32 s29, hwreg(HW_REG_XCC_ID)")
        a("v_mov_b32 v11, s29")
        a("s_lshl_b32 s28, s2, 2")
        a("buffer_store_dword v11, v%d, %s, s28 offen offset:32" % (vZero, sr(sD)))
    if P.diag:
        a("s_waitcnt vmcnt(0)")
        a("s_memrealtime s[58:59]")
        a("s_waitcnt lgkmcnt(0)")
        a("s_add_u32 s60, s%d, 0x40000000" % (sPtr + 10))
        a("s_addc_u32 s61, s%d, 0" % (sPtr + 11))
        a("s_and_b32 s61, s61, 0xffff")
        a("s_mov_b32 s62, 0x1000000")
        a("s_mov_b32 s63, 0x00020000")
        a("s_mul_i32 s28, s2, %d" % W)
        a("s_add_u32 s28, s28, s%d" % sWave)
        a("s_lshl_b32 s28, s28, 5")
        a("s_mov_b64 exec, 1")
        a("v_mov_b32 v4, s52")
        a("v_mov_b32 v5, s54")
        a("v_mov_b32 v6, s56")
        a("v_mov_b32 v7, s58")
        a("s_getreg_b32 s29, hwreg(HW_REG_XCC_ID)")
        a("v_mov_b32 v8, s29")
        a("s_getreg_b32 s29, hwreg(HW_REG_HW_ID)")
        a("v_mov_b32 v9, s29")
        a("v_mov_b32 v10, s78")
        a("v_mov_b32 v12, 0")
        a("v_subrev_u32 v11, %d, v%d" % (MBOX + 4 * NS - (W * 1024 + 128 + 4), vMaddr))
        a("buffer_store_dwordx4 v[4:7], v12, s[60:63], s28 offen")
        a("buffer_store_dwordx4 v[8:11], v12, s[60:63], s28 offen offset:16")
    a.label("L_done")
    a("s_endpgm")
    a.label("L_helper")
    a("s_setprio %d" % P.hprio)
    sNx, sPg, sN, sLast = 72, 73, 82, 83
    R0 = P.r0
    BASE = R0 * S
    POOL = NTICK - BASE
    assert NS <= R0 <= 256
    a("v_mov_b32 v%d, -1" % vT)
    a("v_mov_b32 v%d, -1" % (vT + 1))
    a("v_mov_b32 v%d, -1" % (vT + 2))
    a("v_mov_b32 v%d, -1" % (vT + 3))
    a("v_lshlrev_b32 v%d, 4, v%d" % (vT + 4, vLane))
    for i in range(MBN * 4 // 1024):
        a("ds_write_b128 v%d, %s offset:%d" % (vT + 4, vr(vT), MBOX + 1024 * i))
    a("v_lshlrev_b32 v%d, 3, v%d" % (vT, vLane))
    a("v_add_u32 v%d, s%d, v%d" % (vT, sJ, vT))
    a("v_lshlrev_b32 v%d, 2, v%d" % (vT + 1, vLane))
    for b in range(0, R0, 64):
        if R0 - b < 64:
            a("v_cmp_gt_u32 vcc, %d, v%d" % (R0 - b, vLane))
            a("s_and_saveexec_b64 s[84:85], vcc")
        a("ds_write_b32 v%d, v%d offset:%d" % (vT + 1, vT, MBOX + 4 * b))
        if R0 - b < 64:
            a("s_mov_b64 exec, s[84:85]")
        else:
            a("v_add_u32 v%d, %d, v%d" % (vT, 512, vT))
    a("ds_write_b32 v%d, v%d offset:%d" % (vZero, vZero, PADDR))
    a("v_mov_b32 v%d, %d" % (vPub, PADDR))
    a("s_mov_b32 s%d, %d" % (sNx, R0))
    a("s_mov_b32 s%d, 0" % sLast)
    if P.diag:
        a("s_mov_b32 s79, 0")
        a("s_mov_b32 s80, 0")
        a("s_mov_b32 s81, 0")
    a("s_waitcnt lgkmcnt(0)")
    a("s_barrier")
    a("s_mov_b64 exec, 1")
    a("s_lshl_b32 s%d, s%d, 2" % (sT2, sPair))
    a("s_add_u32 s%d, s%d, 128" % (sT2, sT2))
    a("s_cmp_lg_u32 s%d, 0" % sJ)
    a("s_cbranch_scc1 L_h_flagwait")
    a("v_mov_b32 v%d, 0" % vT)
    a("v_mov_b32 v%d, 0" % (vT + 1))
    a("v_mov_b32 v%d, 0" % (vT + 2))
    a("v_mov_b32 v%d, 0" % (vT + 3))
    a("buffer_store_dwordx4 %s, v%d, %s, s%d offen sc0 sc1" % (vr(vT), vZero, sr(sW), sWsC))
    a("s_waitcnt vmcnt(0)")
    a("v_mov_b32 v%d, 1" % vT)
    a("buffer_store_dword v%d, v%d, %s, s%d offen sc0 sc1" % (vT, vZero, sr(sD), sT2))
    a("s_waitcnt vmcnt(0)")
    a.label("L_h_flagwait")
    a.label("L_h_w0")
    a("ds_read_b32 v%d, v%d" % (vT, vPub))
    a("s_waitcnt lgkmcnt(0)")
    a("v_readfirstlane_b32 s%d, v%d" % (sPg, vT))
    a("s_add_u32 s%d, s%d, %d" % (sPg, sPg, NS + P.la + 2))
    a("s_cmp_le_u32 s%d, s%d" % (sNx, sPg))
    a("s_cbranch_scc1 L_h_flag")
    a("s_sleep 16")
    a("s_branch L_h_w0")
    a.label("L_h_flag")
    a("buffer_load_dword v%d, v%d, %s, s%d offen sc0 sc1" % (vT, vZero, sr(sD), sT2))
    a("s_waitcnt vmcnt(0)")
    a("v_readfirstlane_b32 s%d, v%d" % (sPg, vT))
    a("s_cmp_lg_u32 s%d, 0" % sPg)
    a("s_cbranch_scc1 L_h_loop")
    a("s_sleep 4")
    a("s_branch L_h_flag")
    a.label("L_h_loop")
    a("ds_read_b32 v%d, v%d" % (vT, vPub))
    a("s_waitcnt lgkmcnt(0)")
    a("v_readfirstlane_b32 s%d, v%d" % (sPg, vT))
    a("s_add_u32 s%d, s%d, %d" % (sPg, sPg, NS + P.la))
    a("s_cmp_le_u32 s%d, s%d" % (sNx, sPg))
    a("s_cbranch_scc1 L_h_go")
    if P.diag:
        a("s_add_u32 s78, s78, 1")
    a("s_sleep %d" % P.hsleep)
    a("s_branch L_h_loop")
    a.label("L_h_go")
    if P.diag:
        a("s_memrealtime s[74:75]")
        a("s_waitcnt lgkmcnt(0)")
    a("s_sub_i32 s%d, %d, s%d" % (sN, POOL, sLast))
    a("s_ashr_i32 s%d, s%d, %d" % (sN, sN, P.gdiv))
    a("s_max_i32 s%d, s%d, %d" % (sN, sN, P.nmin))
    a("s_min_i32 s%d, s%d, %d" % (sN, sN, P.nmax))
    a("v_mov_b32 v%d, s%d" % (vT + 1, sN))
    a("buffer_atomic_add v%d, v%d, %s, s%d offen sc0" % (vT + 1, vZero, sr(sW), sWsC))
    a("s_lshl_b32 s%d, s%d, 2" % (sT0, sNx))
    a("s_add_u32 s%d, s%d, %d" % (sT0, sT0, MBOX))
    a("s_add_u32 s%d, s%d, s%d" % (sNx, sNx, sN))
    a("s_waitcnt vmcnt(0)")
    if P.diag:
        a("s_memrealtime s[76:77]")
        a("s_waitcnt lgkmcnt(0)")
        a("s_sub_u32 s76, s76, s74")
        a("s_add_u32 s79, s79, s76")
        a("s_max_u32 s80, s80, s76")
        a("s_add_u32 s81, s81, 1")
    a("v_readfirstlane_b32 s%d, v%d" % (sLast, vT + 1))
    a("s_add_u32 s%d, s%d, s%d" % (sLast, sLast, sN))
    a("s_lshl_b32 s%d, 1, s%d" % (sT1, sN))
    a("s_sub_u32 s%d, s%d, 1" % (sT1, sT1))
    a("s_mov_b32 exec_lo, s%d" % sT1)
    a("s_sub_u32 s%d, s%d, s%d" % (sT1, sLast, sN))
    a("s_add_u32 s%d, s%d, %d" % (sT1, sT1, BASE))
    a("v_add_u32 v%d, s%d, v%d" % (vT + 1, sT1, vLane))
    a("v_lshlrev_b32 v%d, 2, v%d" % (vT + 2, vLane))
    a("v_add_u32 v%d, s%d, v%d" % (vT + 2, sT0, vT + 2))
    a("ds_write_b32 v%d, v%d" % (vT + 2, vT + 1))
    a("s_mov_b64 exec, 1")
    a("s_cmp_lt_u32 s%d, %d" % (sLast, POOL))
    a("s_cbranch_scc1 L_h_loop")
    a("s_mov_b64 exec, 0xff")
    a("s_lshl_b32 s%d, s%d, 2" % (sT0, sNx))
    a("s_add_u32 s%d, s%d, %d" % (sT0, sT0, MBOX))
    a("v_lshlrev_b32 v%d, 2, v%d" % (vT, vLane))
    a("v_add_u32 v%d, s%d, v%d" % (vT, sT0, vT))
    a("v_mov_b32 v%d, %d" % (vT + 1, NTICK))
    a("ds_write_b32 v%d, v%d" % (vT, vT + 1))
    a("s_waitcnt lgkmcnt(0)")
    if P.diag:
        a("s_add_u32 s60, s%d, 0x40100000" % (sPtr + 10))
        a("s_addc_u32 s61, s%d, 0" % (sPtr + 11))
        a("s_and_b32 s61, s61, 0xffff")
        a("s_mov_b32 s62, 0x100000")
        a("s_mov_b32 s63, 0x00020000")
        a("s_lshl_b32 s73, s2, 8")
        a("s_mov_b64 exec, 1")
        a("v_mov_b32 v4, s79")
        a("v_mov_b32 v5, s81")
        a("v_mov_b32 v6, s80")
        a("v_mov_b32 v7, s78")
        a("buffer_store_dwordx4 v[4:7], v%d, s[60:63], s73 offen" % vZero)
    a("s_endpgm")

    lds = max(MBOX + MBN * 4, P.lds)
    out = HEADER
    out += "; @launch grid=(%d,1,1) block=(%d,1,1) lds=%d\n" % (NWG, (W + 1) * 64, lds)
    out += '.amdgcn_target "amdgcn-amd-amdhsa--gfx950"\n.text\n'
    out += ".globl %s_kernel\n.p2align 8\n.type %s_kernel,@function\n%s_kernel:\n" % (NAME, NAME, NAME)
    out += a.text()
    out += '.section .rodata,"a"\n.p2align 6\n.amdhsa_kernel %s_kernel\n' % NAME
    nv = max(nvgpr, vBuf + 64)
    out += "  .amdhsa_next_free_vgpr %d\n  .amdhsa_next_free_sgpr 88\n  .amdhsa_accum_offset %d\n" % (nv, (nv + 3) // 4 * 4)
    out += "  .amdhsa_group_segment_fixed_size 0\n  .amdhsa_kernarg_size 48\n  .amdhsa_user_sgpr_count 2\n"
    out += "  .amdhsa_user_sgpr_kernarg_segment_ptr 1\n  .amdhsa_system_sgpr_workgroup_id_x 1\n.end_amdhsa_kernel\n"
    return out

def parse(argv=None):
    ap = argparse.ArgumentParser()
    ap.add_argument("--waves", type=int, default=4)
    ap.add_argument("--mg", type=int, default=4)
    ap.add_argument("--stages", type=int, default=2)
    ap.add_argument("--policy", default="nt")
    ap.add_argument("--lds", type=int, default=98304)
    ap.add_argument("--diag", type=int, default=0)
    ap.add_argument("--diag2", type=int, default=0)
    ap.add_argument("--la", type=int, default=2)
    ap.add_argument("--r0", type=int, default=52)
    ap.add_argument("--gdiv", type=int, default=4)
    ap.add_argument("--nmin", type=int, default=1)
    ap.add_argument("--nmax", type=int, default=4)
    ap.add_argument("--hprio", type=int, default=3)
    ap.add_argument("--hsleep", type=int, default=2)
    ap.add_argument("--rot", type=int, default=0)
    ap.add_argument("--mul", type=int, default=1)
    ap.add_argument("-o", default="-")
    return ap.parse_args(argv)

if __name__ == "__main__":
    P = parse()
    t = gen(P)
    if P.o == "-":
        sys.stdout.write(t)
    else:
        open(P.o, "w").write(t)
```

```python
import argparse, math, sys, struct

NAME = "standalone__softmax_full_bidir__decode"
B, H, SKV, DH = 4, 16, 16384, 256
NH = B * H
ROWB = DH * 2
HEADB = SKV * ROWB
LOG2E = 1.4426950408889634

HEADER = """; Kernarg layout for this problem (48 bytes, ptrs only, base s[0:1]):
"""

def f32hex(x):
    return "0x%08x" % struct.unpack("<I", struct.pack("<f", x))[0]

class A:
    def __init__(self):
        self.l = []
    def __call__(self, s):
        self.l.append("    " + s)
    def label(self, s):
        self.l.append(s + ":")
    def c(self, s):
        self.l.append("    ; " + s)
    def text(self):
        return "\n".join(self.l) + "\n"

def vr(a, n=4):
    return "v[%d:%d]" % (a, a + n - 1)
def sr(a, n=4):
    return "s[%d:%d]" % (a, a + n - 1)

def gen(P):
    W = P.waves
    S = 8
    NWG = (NH // 2) * S
    MG = P.mg
    NS = P.stages
    TK = 4 * MG
    TB = TK * ROWB
    CK = W * TK
    CB = CK * ROWB
    NTH = SKV // CK
    NTICK = 2 * NTH
    NL = 2 * MG
    pol = (" " + P.policy) if P.policy else ""
    REC = 1024 + 128
    c_hex = f32hex(LOG2E / 16.0)
    ML = 2 * W * 1024
    MBOX = ML + 256
    MBN = NTICK + 64
    MBN = (MBN + 255) // 256 * 256
    NEGBIG = "0xff7fffff"

    a = A()
    sK, sV, sQ, sW = 4, 8, 12, 16
    sOff, sOff2, sLim, sPair, sJ, sWave, sC, sWOff = 20, 21, 22, 23, 24, 25, 26, 27
    sT0, sT1 = 28, 29
    sT2, sT3 = 30, 31
    sPtr = 32
    sO = 44
    sD = 48
    sHOff = 64
    sTk = 66
    sRot = 65
    sWsC, sAtc = 70, 71
    sJ0 = 71
    vKoff, vVoff, vLane = 1, 2, 3
    vQ = 4
    vMask = 12
    vM, vL, vMc, vAl = 16, 17, 18, 19
    vO = 20
    vC = 28
    vS = 44
    vT = 48
    vTk, vMaddr, vPub, vZero = 54, 55, 56, 57
    vRnd = 58
    vQ2 = 64
    vOA = 72
    vMcA, vLA = 80, 81
    vBuf = 84
    def Kreg(s, i): return vBuf + s * 8 * NL + 4 * i
    def Vreg(s, i): return vBuf + s * 8 * NL + 4 * NL + 4 * i
    nvgpr = vBuf + NS * 8 * NL
    assert MG <= 4 and NS <= 4

    def load_tile(base_fn, s, srd, voff):
        for m in range(MG):
            for j in range(2):
                off = m * 2048 + j * 256
                so = sOff
                if off >= 4096:
                    off -= 4096
                    so = sOff2
                a("buffer_load_dwordx4 %s, v%d, %s, s%d offen offset:%d%s" %
                  (vr(base_fn(s, m * 2 + j)), voff, sr(srd), so, off, pol))

    def set_off(src):
        if P.rot or P.mul != 1:
            a("s_mul_i32 s%d, s%d, %d" % (sOff, src, P.mul))
            a("s_add_u32 s%d, s%d, s%d" % (sOff, sOff, sRot))
            a("s_and_b32 s%d, s%d, %d" % (sOff, sOff, NTH - 1))
            a("s_andn2_b32 s%d, s%d, %d" % (sOff2, src, NTH - 1))
            a("s_or_b32 s%d, s%d, s%d" % (sOff, sOff, sOff2))
            a("s_mul_i32 s%d, s%d, %d" % (sOff, sOff, CB))
        else:
            a("s_mul_i32 s%d, s%d, %d" % (sOff, src, CB))
        a("s_add_u32 s%d, s%d, s%d" % (sOff, sOff, sWOff))
        a("s_add_u32 s%d, s%d, 4096" % (sOff2, sOff))

    if P.diag or P.diag2:
        a("s_memrealtime s[52:53]")
        a("s_mov_b32 s78, 0")
    a.c("uniform exit for workgroups past the data")
    a("s_cmp_ge_u32 s2, %d" % NWG)
    a("s_cbranch_scc1 L_done")
    a("s_load_dwordx4 %s, s[0:1], 0" % sr(sPtr))
    a("s_load_dwordx4 %s, s[0:1], 16" % sr(sPtr + 4))
    a("s_load_dwordx4 %s, s[0:1], 32" % sr(sPtr + 8))
    a("v_and_b32 v%d, 63, v0" % vLane)
    a("v_lshrrev_b32 v%d, 6, v0" % vT)
    a("v_lshrrev_b32 v%d, 4, v%d" % (vT + 1, vLane))
    a("v_readfirstlane_b32 s%d, v%d" % (sWave, vT))
    a("s_lshr_b32 s%d, s2, 3" % sPair)
    a("s_and_b32 s%d, s2, 7" % sJ)
    a("v_bfe_u32 v%d, v%d, 2, 2" % (vT + 2, vLane))
    a("v_lshlrev_b32 v%d, 9, v%d" % (vT + 2, vT + 2))
    a("v_lshl_add_u32 v%d, v%d, 6, v%d" % (vT + 2, vT + 1, vT + 2))
    a("v_and_b32 v%d, 3, v%d" % (vT + 3, vLane))
    a("v_lshl_add_u32 v%d, v%d, 4, v%d" % (vKoff, vT + 3, vT + 2))
    a("v_and_b32 v%d, 15, v%d" % (vT + 4, vLane))
    a("v_lshlrev_b32 v%d, 4, v%d" % (vT + 4, vT + 4))
    a("v_lshl_add_u32 v%d, v%d, 9, v%d" % (vVoff, vT + 1, vT + 4))
    a("v_lshlrev_b32 v%d, 4, v%d" % (vT + 3, vT + 3))
    a("v_lshl_add_u32 v%d, v%d, 6, v%d" % (vT + 5, vT + 1, vT + 3))
    a("v_mov_b32 v%d, 0" % vZero)
    a("s_lshr_b32 s%d, s%d, %d" % (sT1, sPair, 32 - 24))
    a("s_lshl_b32 s%d, s%d, 24" % (sT0, sPair))
    a("s_mul_i32 s%d, s%d, %d" % (sWOff, sWave, TB))
    a("s_lshl_b32 s%d, s%d, 3" % (sHOff, sPair))
    a("s_mul_i32 s%d, s%d, %d" % (sRot, sPair, P.rot))
    if P.contig:
        a("s_mul_i32 s%d, s%d, %d" % (sJ0, sJ, P.r0))
        for s in range(NS):
            a("s_add_u32 s%d, s%d, %d" % (sTk + s, sJ0, s))
    else:
        for s in range(NS):
            a("s_add_u32 s%d, s%d, %d" % (sTk + s, sJ, s * S))
    set_off(sTk)
    a("s_waitcnt lgkmcnt(0)")
    for (srd, p) in ((sK, sPtr + 2), (sV, sPtr + 4)):
        a("s_add_u32 s%d, s%d, s%d" % (srd, p, sT0))
        a("s_addc_u32 s%d, s%d, s%d" % (srd + 1, p + 1, sT1))
        a("s_and_b32 s%d, s%d, 0xffff" % (srd + 1, srd + 1))
        a("s_mov_b32 s%d, %d" % (srd + 2, 2 * HEADB))
        a("s_mov_b32 s%d, 0x00020000" % (srd + 3))
    a("s_mov_b32 s%d, s%d" % (sD, sPtr + 8))
    a("s_and_b32 s%d, s%d, 0xffff" % (sD + 1, sPtr + 9))
    a("s_mov_b32 s%d, 256" % (sD + 2))
    a("s_mov_b32 s%d, 0x00020000" % (sD + 3))
    a("s_mov_b32 s%d, s%d" % (sW, sPtr + 10))
    a("s_and_b32 s%d, s%d, 0xffff" % (sW + 1, sPtr + 11))
    a("s_mov_b32 s%d, %d" % (sW + 2, 0x200000))
    a("s_mov_b32 s%d, 0x00020000" % (sW + 3))
    a("s_mul_i32 s%d, s%d, %d" % (sWsC, sPair, P.cstride))
    a("s_add_u32 s%d, s%d, 0x100000" % (sWsC, sWsC))
    a("s_mov_b32 s%d, s%d" % (sQ, sPtr))
    a("s_and_b32 s%d, s%d, 0xffff" % (sQ + 1, sPtr + 1))
    a("s_mov_b32 s%d, %d" % (sQ + 2, NH * ROWB))
    a("s_mov_b32 s%d, 0x00020000" % (sQ + 3))
    a("s_lshl_b32 s%d, s%d, 10" % (sT0, sPair))

    PADDR = MBOX - 4
    a("s_cmp_eq_u32 s%d, %d" % (sWave, W))
    a("s_cbranch_scc1 L_helper")
    for s in range(NS):
        if s > 0:
            set_off(sTk + s)
        load_tile(Kreg, s, sK, vKoff)
        if s == 0:
            a("buffer_load_dwordx4 %s, v%d, %s, s%d offen" % (vr(vQ), vT + 5, sr(sQ), sT0))
            a("buffer_load_dwordx4 %s, v%d, %s, s%d offen offset:256" % (vr(vQ + 4), vT + 5, sr(sQ), sT0))
            a("buffer_load_dwordx4 %s, v%d, %s, s%d offen offset:512" % (vr(vQ2), vT + 5, sr(sQ), sT0))
            a("buffer_load_dwordx4 %s, v%d, %s, s%d offen offset:768" % (vr(vQ2 + 4), vT + 5, sr(sQ), sT0))
        load_tile(Vreg, s, sV, vVoff)
    a("s_mov_b32 s%d, s%d" % (sW, sPtr + 10))
    a("s_and_b32 s%d, s%d, 0xffff" % (sW + 1, sPtr + 11))
    a("s_mov_b32 s%d, %d" % (sW + 2, 0x200000))
    a("s_mov_b32 s%d, 0x00020000" % (sW + 3))
    a("s_mov_b32 s%d, s%d" % (sO, sPtr + 6))
    a("s_and_b32 s%d, s%d, 0xffff" % (sO + 1, sPtr + 7))
    a("s_mov_b32 s%d, %d" % (sO + 2, NH * ROWB))
    a("s_mov_b32 s%d, 0x00020000" % (sO + 3))
    a("v_and_b32 v%d, 1, v%d" % (vT, vLane))
    a("v_lshlrev_b32 v%d, 4, v%d" % (vT, vT))
    a("v_mov_b32 v%d, 0xffff" % (vT + 1))
    a("v_lshlrev_b32 v%d, v%d, v%d" % (vT, vT, vT + 1))
    a("v_bfe_u32 v%d, v%d, 1, 2" % (vT + 1, vLane))
    for r in range(4):
        a("v_cmp_eq_u32 vcc, %d, v%d" % (r, vT + 1))
        a("s_nop 1")
        a("v_cndmask_b32 v%d, 0, v%d, vcc" % (vMask + r, vT))
    a("v_mov_b32 v%d, %s" % (vM, NEGBIG))
    a("v_mov_b32 v%d, %s" % (vMc, NEGBIG))
    a("v_mov_b32 v%d, 0" % vL)
    for i in range(8):
        a("v_mov_b32 v%d, 0" % (vO + i))
    a("s_mov_b32 s%d, %s" % (sC, c_hex))
    a("s_mov_b32 s%d, %d" % (sLim, NTH))
    a("v_mov_b32 v%d, %d" % (vMaddr, MBOX + 4 * NS))
    a("v_mov_b32 v%d, %d" % (vPub, PADDR))
    a("v_mov_b32 v%d, 0" % vRnd)
    a("s_barrier")
    if P.diag or P.diag2:
        a("s_waitcnt vmcnt(%d)" % (NS * 2 * NL - NL))
        a("s_memrealtime s[54:55]")

    def loop(tag):
        for s in range(NS):
            t = "%s%d" % (tag, s)
            a.label("L_loop_" + t)
            a("s_cmp_lt_u32 s%d, s%d" % (sTk + s, sLim))
            a("s_cbranch_scc0 L_switch_" + t)
            a("ds_max_u32 v%d, v%d" % (vPub, vRnd))
            a("ds_read_b32 v%d, v%d" % (vTk, vMaddr))
            a("s_waitcnt vmcnt(%d)" % (NL + (NS - 1) * 2 * NL))
            for m in range(MG):
                a("v_mfma_f32_16x16x32_bf16 %s, %s, %s, 0" % (vr(vC + 4 * m), vr(Kreg(s, 2 * m)), vr(vQ)))
            for m in range(MG):
                a("v_mfma_f32_16x16x32_bf16 %s, %s, %s, %s" % (vr(vC + 4 * m), vr(Kreg(s, 2 * m + 1)), vr(vQ + 4), vr(vC + 4 * m)))
            a("s_waitcnt lgkmcnt(0)")
            a("v_readfirstlane_b32 s%d, v%d" % (sTk + s, vTk))
            a("s_cmp_eq_u32 s%d, -1" % (sTk + s))
            a("s_cbranch_scc1 L_poll_" + t)
            a.label("L_have_" + t)
            set_off(sTk + s)
            load_tile(Kreg, s, sK, vKoff)
            a("s_nop 3")
            for m in range(MG):
                a("v_mov_b32_dpp v%d, v%d quad_perm:[0,0,0,0] row_mask:0xf bank_mask:0xf" % (vS + m, vC + 4 * m))
            for r in range(1, 4):
                if MG < 4:
                    a("s_nop 1")
                for m in range(MG):
                    a("v_add_f32_dpp v%d, v%d, v%d quad_perm:[%d,%d,%d,%d] row_mask:0xf bank_mask:0xf" %
                      (vS + m, vC + 4 * m + r, vS + m, r, r, r, r))
            if MG == 4:
                a("v_max3_f32 v%d, v%d, v%d, v%d" % (vT, vS, vS + 1, vS + 2))
                a("v_max3_f32 v%d, v%d, v%d, v%d" % (vT, vT, vS + 3, vM))
            elif MG == 2:
                a("v_max3_f32 v%d, v%d, v%d, v%d" % (vT, vS, vS + 1, vM))
            else:
                a("v_max_f32 v%d, v%d, v%d" % (vT, vS, vM))
            a("v_mov_b32 v%d, v%d" % (vT + 1, vT))
            a("s_nop 1")
            a("v_permlane16_swap_b32 v%d, v%d" % (vT, vT + 1))
            a("s_nop 1")
            a("v_max_f32 v%d, v%d, v%d" % (vT, vT, vT + 1))
            a("v_mov_b32 v%d, v%d" % (vT + 1, vT))
            a("s_nop 1")
            a("v_permlane32_swap_b32 v%d, v%d" % (vT, vT + 1))
            a("s_nop 1")
            a("v_max_f32 v%d, v%d, v%d" % (vM, vT, vT + 1))
            a("v_mul_f32 v%d, s%d, v%d" % (vT, sC, vM))
            a("v_sub_f32 v%d, v%d, v%d" % (vAl, vMc, vT))
            a("v_mov_b32 v%d, v%d" % (vMc, vT))
            a("v_exp_f32 v%d, v%d" % (vAl, vAl))
            for m in range(MG):
                a("v_fma_f32 v%d, v%d, s%d, -v%d" % (vS + m, vS + m, sC, vMc))
            for m in range(MG):
                a("v_exp_f32 v%d, v%d" % (vS + m, vS + m))
            a("v_mul_f32 v%d, v%d, v%d" % (vL, vL, vAl))
            for i in range(8):
                a("v_mul_f32 v%d, v%d, v%d" % (vO + i, vO + i, vAl))
            for m in range(MG):
                a("v_add_f32 v%d, v%d, v%d" % (vL, vL, vS + m))
            for m in range(MG):
                a("v_cvt_pk_bf16_f32 v%d, v%d, v%d" % (vS + m, vS + m, vS + m))
            for m in range(MG):
                for r in range(4):
                    a("v_and_b32 v%d, v%d, v%d" % (vC + 4 * m + r, vS + m, vMask + r))
            a("v_add_u32 v%d, 4, v%d" % (vMaddr, vMaddr))
            a("v_add_u32 v%d, 1, v%d" % (vRnd, vRnd))
            a("s_waitcnt vmcnt(%d)" % ((NS - 1) * 2 * NL + NL))
            a("s_nop 1")
            for m in range(MG):
                for h in range(2):
                    a("v_mfma_f32_16x16x32_bf16 %s, %s, %s, %s" % (vr(vO + 4 * h), vr(vC + 4 * m), vr(Vreg(s, 2 * m + h)), vr(vO + 4 * h)))
            load_tile(Vreg, s, sV, vVoff)
        a("s_branch L_loop_%s0" % tag)
        for s in range(NS):
            t = "%s%d" % (tag, s)
            a.label("L_poll_" + t)
            if P.diag:
                a("s_add_u32 s78, s78, 1")
            a("s_sleep 1")
            a("ds_read_b32 v%d, v%d" % (vTk, vMaddr))
            a("s_waitcnt lgkmcnt(0)")
            a("v_readfirstlane_b32 s%d, v%d" % (sTk + s, vTk))
            a("s_cmp_eq_u32 s%d, -1" % (sTk + s))
            a("s_cbranch_scc1 L_poll_" + t)
            a("s_branch L_have_" + t)
            a.label("L_switch_" + t)
            a("s_cmp_eq_u32 s%d, %d" % (sLim, NTICK))
            a("s_cbranch_scc1 L_epi")
            a("s_waitcnt vmcnt(%d)" % (NL + (NS - 1) * 2 * NL))
            a("s_nop 7")
            for i in range(8):
                a("v_mov_b32 v%d, v%d" % (vOA + i, vO + i))
                a("v_mov_b32 v%d, 0" % (vO + i))
                a("v_mov_b32 v%d, v%d" % (vQ + i, vQ2 + i))
            a("v_mov_b32 v%d, v%d" % (vMcA, vMc))
            a("v_mov_b32 v%d, v%d" % (vLA, vL))
            a("v_mov_b32 v%d, %s" % (vM, NEGBIG))
            a("v_mov_b32 v%d, %s" % (vMc, NEGBIG))
            a("v_mov_b32 v%d, 0" % vL)
            a("s_mov_b32 s%d, %d" % (sLim, NTICK))
            a("s_branch L_loop_" + t)
    loop("c")

    a.label("L_epi")
    if P.diag or P.diag2:
        a("s_memrealtime s[56:57]")
    a("s_nop 7")
    for vl_ in (vLA, vL):
        a("v_mov_b32 v%d, v%d" % (vT + 1, vl_))
        a("s_nop 1")
        a("v_permlane16_swap_b32 v%d, v%d" % (vl_, vT + 1))
        a("s_nop 1")
        a("v_add_f32 v%d, v%d, v%d" % (vl_, vl_, vT + 1))
        a("v_mov_b32 v%d, v%d" % (vT + 1, vl_))
        a("s_nop 1")
        a("v_permlane32_swap_b32 v%d, v%d" % (vl_, vT + 1))
        a("s_nop 1")
        a("v_add_f32 v%d, v%d, v%d" % (vl_, vl_, vT + 1))
    a("v_and_b32 v%d, 15, v%d" % (vT, vLane))
    a("v_lshlrev_b32 v%d, 5, v%d" % (vT, vT))
    a("v_bfe_u32 v%d, v%d, 4, 1" % (vT + 1, vLane))
    a("v_lshl_add_u32 v%d, v%d, 4, v%d" % (vT, vT + 1, vT))
    a("s_lshl_b32 s%d, s%d, 10" % (sT0, sWave))
    a("v_add_u32 v%d, s%d, v%d" % (vT, sT0, vT))
    a("ds_write_b128 v%d, %s" % (vT, vr(vOA)))
    a("ds_write_b128 v%d, %s offset:512" % (vT, vr(vOA + 4)))
    a("ds_write_b128 v%d, %s offset:%d" % (vT, vr(vO), W * 1024))
    a("ds_write_b128 v%d, %s offset:%d" % (vT, vr(vO + 4), W * 1024 + 512))
    a("s_lshl_b32 s%d, s%d, 2" % (sT0, sWave))
    a("v_mov_b32 v%d, s%d" % (vT + 2, sT0))
    a("ds_write_b32 v%d, v%d offset:%d" % (vT + 2, vMcA, ML))
    a("ds_write_b32 v%d, v%d offset:%d" % (vT + 2, vLA, ML + 64))
    a("ds_write_b32 v%d, v%d offset:%d" % (vT + 2, vMc, ML + 128))
    a("ds_write_b32 v%d, v%d offset:%d" % (vT + 2, vL, ML + 192))
    a("s_waitcnt vmcnt(0) lgkmcnt(0)")
    a("s_barrier")
    a("s_cmp_ge_u32 s%d, 2" % sWave)
    a("s_cbranch_scc1 L_fin")
    vm, vl, vo = vBuf, vBuf + 16, vBuf + 32
    a("s_lshl_b32 s%d, s%d, 7" % (sT0, sWave))
    a("v_mov_b32 v%d, s%d" % (vT, sT0))
    for i in range(0, W, 4):
        a("ds_read_b128 %s, v%d offset:%d" % (vr(vm + i), vT, ML + 4 * i))
        a("ds_read_b128 %s, v%d offset:%d" % (vr(vl + i), vT, ML + 64 + 4 * i))
    a("v_lshlrev_b32 v%d, 4, v%d" % (vT + 1, vLane))
    a("s_mul_i32 s%d, s%d, %d" % (sT0, sWave, W * 1024))
    a("v_add_u32 v%d, s%d, v%d" % (vT + 2, sT0, vT + 1))
    for i in range(min(W, 4)):
        a("ds_read_b128 %s, v%d offset:%d" % (vr(vo + 4 * i), vT + 2, i * 1024))
    a("s_waitcnt lgkmcnt(%d)" % min(W, 4))
    a("v_max_f32 v%d, v%d, v%d" % (vMc, vm, vm + 1))
    for i in range(2, W, 2):
        a("v_max3_f32 v%d, v%d, v%d, v%d" % (vMc, vMc, vm + i, vm + i + 1))
    for i in range(W):
        a("v_sub_f32 v%d, v%d, v%d" % (vm + i, vm + i, vMc))
    for i in range(W):
        a("v_exp_f32 v%d, v%d" % (vm + i, vm + i))
    a("s_nop 0")
    a("v_mul_f32 v%d, v%d, v%d" % (vL, vm, vl))
    for i in range(1, W):
        a("v_fmac_f32 v%d, v%d, v%d" % (vL, vm + i, vl + i))
    for i0 in range(0, W, 4):
        if i0 > 0:
            for i in range(4):
                a("ds_read_b128 %s, v%d offset:%d" % (vr(vo + 4 * i), vT + 2, (i0 + i) * 1024))
        for i in range(4):
            a("s_waitcnt lgkmcnt(%d)" % (3 - i))
            for r in range(4):
                if i0 + i == 0:
                    a("v_mul_f32 v%d, v%d, v%d" % (vO + r, vm, vo + r))
                else:
                    a("v_fmac_f32 v%d, v%d, v%d" % (vO + r, vm + i0 + i, vo + 4 * i + r))
    a("s_lshl_b32 s%d, s2, 1" % sT0)
    a("s_add_u32 s%d, s%d, s%d" % (sT0, sT0, sWave))
    a("s_mul_i32 s%d, s%d, %d" % (sT0, sT0, REC))
    a("v_mov_b32 v%d, v%d" % (vT + 2, vMc))
    a("v_mov_b32 v%d, v%d" % (vT + 3, vL))
    a("buffer_store_dwordx4 %s, v%d, %s, s%d offen sc0 sc1" % (vr(vO), vT + 1, sr(sW), sT0))
    a("s_mov_b64 exec, 1")
    a("buffer_store_dwordx2 %s, v%d, %s, s%d offen offset:1024 sc0 sc1" % (vr(vT + 2, 2), vZero, sr(sW), sT0))
    a("s_lshl_b32 s%d, s%d, 1" % (sT2, sPair))
    a("s_add_u32 s%d, s%d, s%d" % (sT2, sT2, sWave))
    a("s_lshl_b32 s%d, s%d, 2" % (sT3, sWave))
    a("s_add_u32 s%d, s%d, s%d" % (sT3, sT3, sWsC))
    a("v_mov_b32 v%d, 1" % (vT + 5))
    a("s_waitcnt vmcnt(0)")
    a("buffer_atomic_add v%d, v%d, %s, s%d offen offset:4 sc0" % (vT + 5, vZero, sr(sW), sT3))
    a("s_waitcnt vmcnt(0)")
    a("v_readfirstlane_b32 s%d, v%d" % (sT1, vT + 5))
    a("s_mov_b64 exec, -1")
    a("s_nop 1")
    a("s_cmp_lg_u32 s%d, %d" % (sT1, S - 1))
    a("s_cbranch_scc1 L_fin")
    a("s_lshl_b32 s%d, s%d, 4" % (sT0, sPair))
    a("s_add_u32 s%d, s%d, s%d" % (sT0, sT0, sWave))
    a("s_mul_i32 s%d, s%d, %d" % (sT0, sT0, REC))
    vml = vBuf
    for i in range(S):
        a("s_add_u32 s%d, s%d, %d" % (sT1, sT0, i * 2 * REC))
        a("buffer_load_dwordx2 %s, v%d, %s, s%d offen offset:1024 sc0 sc1" % (vr(vml + 2 * i, 2), vZero, sr(sW), sT1))
    vo2 = vBuf + 32
    for i in range(S):
        a("s_add_u32 s%d, s%d, %d" % (sT1, sT0, i * 2 * REC))
        a("buffer_load_dwordx4 %s, v%d, %s, s%d offen sc0 sc1" % (vr(vo2 + 4 * i), vT + 1, sr(sW), sT1))
    a("s_waitcnt vmcnt(%d)" % S)
    a("v_max_f32 v%d, v%d, v%d" % (vMc, vml, vml + 2))
    for i in range(2, S):
        a("v_max_f32 v%d, v%d, v%d" % (vMc, vMc, vml + 2 * i))
    for i in range(S):
        a("v_sub_f32 v%d, v%d, v%d" % (vml + 2 * i, vml + 2 * i, vMc))
    for i in range(S):
        a("v_exp_f32 v%d, v%d" % (vml + 2 * i, vml + 2 * i))
    a("s_nop 0")
    a("v_mul_f32 v%d, v%d, v%d" % (vL, vml, vml + 1))
    for i in range(1, S):
        a("v_fmac_f32 v%d, v%d, v%d" % (vL, vml + 2 * i, vml + 2 * i + 1))
    a("v_rcp_f32 v%d, v%d" % (vL, vL))
    for i in range(S):
        a("s_waitcnt vmcnt(%d)" % (S - 1 - i))
        for r in range(4):
            if i == 0:
                a("v_mul_f32 v%d, v%d, v%d" % (vO + r, vml, vo2 + r))
            else:
                a("v_fmac_f32 v%d, v%d, v%d" % (vO + r, vml + 2 * i, vo2 + 4 * i + r))
    for r in range(4):
        a("v_mul_f32 v%d, v%d, v%d" % (vO + r, vO + r, vL))
    a("v_cvt_pk_bf16_f32 v%d, v%d, v%d" % (vO, vO, vO + 1))
    a("v_cvt_pk_bf16_f32 v%d, v%d, v%d" % (vO + 1, vO + 2, vO + 3))
    a("v_lshlrev_b32 v%d, 3, v%d" % (vT + 1, vLane))
    a("s_lshl_b32 s%d, s%d, 9" % (sT0, sT2))
    a("buffer_store_dwordx2 %s, v%d, %s, s%d offen" % (vr(vO, 2), vT + 1, sr(sO), sT0))
    a.label("L_fin")
    if P.diag2:
        a("s_waitcnt vmcnt(0)")
        a("s_memrealtime s[58:59]")
        a("s_waitcnt lgkmcnt(0)")
        a("s_mov_b64 exec, 1")
        a("s_not_b32 s28, s52")
        a("v_mov_b32 v4, s28")
        a("buffer_atomic_umax v4, v%d, %s, 0 offen" % (vZero, sr(sD)))
        a("v_mov_b32 v5, s54")
        a("buffer_atomic_umax v5, v%d, %s, 0 offen offset:4" % (vZero, sr(sD)))
        a("v_mov_b32 v6, s56")
        a("buffer_atomic_umax v6, v%d, %s, 0 offen offset:8" % (vZero, sr(sD)))
        a("v_mov_b32 v7, s58")
        a("buffer_atomic_umax v7, v%d, %s, 0 offen offset:12" % (vZero, sr(sD)))
        a("s_not_b32 s28, s54")
        a("v_mov_b32 v8, s28")
        a("buffer_atomic_umax v8, v%d, %s, 0 offen offset:16" % (vZero, sr(sD)))
        a("s_not_b32 s28, s56")
        a("v_mov_b32 v9, s28")
        a("buffer_atomic_umax v9, v%d, %s, 0 offen offset:20" % (vZero, sr(sD)))
        a("v_mov_b32 v10, s52")
        a("buffer_atomic_umax v10, v%d, %s, 0 offen offset:24" % (vZero, sr(sD)))
        a("s_cmp_lt_u32 s2, 8")
        a("s_cbranch_scc0 L_done")
        a("s_getreg_b32 s29, hwreg(HW_REG_XCC_ID)")
        a("v_mov_b32 v11, s29")
        a("s_lshl_b32 s28, s2, 2")
        a("buffer_store_dword v11, v%d, %s, s28 offen offset:32" % (vZero, sr(sD)))
    if P.diag:
        a("s_waitcnt vmcnt(0)")
        a("s_memrealtime s[58:59]")
        a("s_waitcnt lgkmcnt(0)")
        a("s_add_u32 s60, s%d, 0x40000000" % (sPtr + 10))
        a("s_addc_u32 s61, s%d, 0" % (sPtr + 11))
        a("s_and_b32 s61, s61, 0xffff")
        a("s_mov_b32 s62, 0x1000000")
        a("s_mov_b32 s63, 0x00020000")
        a("s_mul_i32 s28, s2, %d" % W)
        a("s_add_u32 s28, s28, s%d" % sWave)
        a("s_lshl_b32 s28, s28, 5")
        a("s_mov_b64 exec, 1")
        a("v_mov_b32 v4, s52")
        a("v_mov_b32 v5, s54")
        a("v_mov_b32 v6, s56")
        a("v_mov_b32 v7, s58")
        a("s_getreg_b32 s29, hwreg(HW_REG_XCC_ID)")
        a("v_mov_b32 v8, s29")
        a("s_getreg_b32 s29, hwreg(HW_REG_HW_ID)")
        a("v_mov_b32 v9, s29")
        a("v_mov_b32 v10, s78")
        a("v_mov_b32 v12, 0")
        a("v_subrev_u32 v11, %d, v%d" % (MBOX + 4 * NS - (W * 1024 + 128 + 4), vMaddr))
        a("buffer_store_dwordx4 v[4:7], v12, s[60:63], s28 offen")
        a("buffer_store_dwordx4 v[8:11], v12, s[60:63], s28 offen offset:16")
    a.label("L_done")
    a("s_endpgm")
    a.label("L_helper")
    a("s_setprio %d" % P.hprio)
    sNx, sPg, sN, sLast = 72, 73, 82, 83
    R0 = P.r0
    BASE = R0 * S
    POOL = NTICK - BASE
    assert NS <= R0 <= 256
    a("v_mov_b32 v%d, -1" % vT)
    a("v_mov_b32 v%d, -1" % (vT + 1))
    a("v_mov_b32 v%d, -1" % (vT + 2))
    a("v_mov_b32 v%d, -1" % (vT + 3))
    a("v_lshlrev_b32 v%d, 4, v%d" % (vT + 4, vLane))
    for i in range(MBN * 4 // 1024):
        a("ds_write_b128 v%d, %s offset:%d" % (vT + 4, vr(vT), MBOX + 1024 * i))
    if P.contig:
        a("v_add_u32 v%d, s%d, v%d" % (vT, sJ0, vLane))
    else:
        a("v_lshlrev_b32 v%d, 3, v%d" % (vT, vLane))
        a("v_add_u32 v%d, s%d, v%d" % (vT, sJ, vT))
    a("v_lshlrev_b32 v%d, 2, v%d" % (vT + 1, vLane))
    for b in range(0, R0, 64):
        if R0 - b < 64:
            a("v_cmp_gt_u32 vcc, %d, v%d" % (R0 - b, vLane))
            a("s_and_saveexec_b64 s[84:85], vcc")
        a("ds_write_b32 v%d, v%d offset:%d" % (vT + 1, vT, MBOX + 4 * b))
        if R0 - b < 64:
            a("s_mov_b64 exec, s[84:85]")
        else:
            a("v_add_u32 v%d, %d, v%d" % (vT, 64 if P.contig else 512, vT))
    a("ds_write_b32 v%d, v%d offset:%d" % (vZero, vZero, PADDR))
    a("v_mov_b32 v%d, %d" % (vPub, PADDR))
    a("s_mov_b32 s%d, %d" % (sNx, R0))
    a("s_mov_b32 s%d, 0" % sLast)
    if P.diag:
        a("s_mov_b32 s79, 0")
        a("s_mov_b32 s80, 0")
        a("s_mov_b32 s81, 0")
    a("s_waitcnt lgkmcnt(0)")
    a("s_barrier")
    if P.tlb:
        step = 512 * 1024
        nown = (R0 * CB + step - 1) // step + 1
        npool = (POOL * CB + step - 1) // step + 1
        a("s_mul_i32 s%d, s%d, %d" % (sT0, sJ0, CB))
        a("v_lshlrev_b32 v%d, 19, v%d" % (vT, vLane))
        a("v_add_u32 v%d, s%d, v%d" % (vT + 1, sT0, vT))
        a("v_add_u32 v%d, %d, v%d" % (vT + 2, (BASE * CB - nown * step) & 0xffffffff, vT))
        a("v_cmp_gt_u32 vcc, %d, v%d" % (nown, vLane))
        a("s_nop 1")
        a("v_cndmask_b32 v%d, v%d, v%d, vcc" % (vT, vT + 2, vT + 1))
        a("s_mov_b64 exec, %d" % ((1 << (nown + npool)) - 1))
        a("buffer_load_dword v%d, v%d, %s, 0 offen nt" % (vT + 3, vT, sr(sK)))
        a("buffer_load_dword v%d, v%d, %s, 0 offen nt" % (vT + 4, vT, sr(sV)))
        a("s_waitcnt vmcnt(0)")
    a("s_mov_b64 exec, 1")
    a("s_lshl_b32 s%d, s%d, 2" % (sT2, sPair))
    a("s_add_u32 s%d, s%d, 128" % (sT2, sT2))
    a("s_cmp_lg_u32 s%d, 0" % sJ)
    a("s_cbranch_scc1 L_h_flagwait")
    a("v_mov_b32 v%d, 0" % vT)
    a("v_mov_b32 v%d, 0" % (vT + 1))
    a("v_mov_b32 v%d, 0" % (vT + 2))
    a("v_mov_b32 v%d, 0" % (vT + 3))
    a("buffer_store_dwordx4 %s, v%d, %s, s%d offen sc0 sc1" % (vr(vT), vZero, sr(sW), sWsC))
    a("s_waitcnt vmcnt(0)")
    a("v_mov_b32 v%d, 1" % vT)
    a("buffer_store_dword v%d, v%d, %s, s%d offen sc0 sc1" % (vT, vZero, sr(sD), sT2))
    a("s_waitcnt vmcnt(0)")
    a.label("L_h_flagwait")
    a.label("L_h_w0")
    a("ds_read_b32 v%d, v%d" % (vT, vPub))
    a("s_waitcnt lgkmcnt(0)")
    a("v_readfirstlane_b32 s%d, v%d" % (sPg, vT))
    a("s_add_u32 s%d, s%d, %d" % (sPg, sPg, NS + P.la + 2))
    a("s_cmp_le_u32 s%d, s%d" % (sNx, sPg))
    a("s_cbranch_scc1 L_h_flag")
    a("s_sleep 16")
    a("s_branch L_h_w0")
    a.label("L_h_flag")
    a("buffer_load_dword v%d, v%d, %s, s%d offen sc0 sc1" % (vT, vZero, sr(sD), sT2))
    a("s_waitcnt vmcnt(0)")
    a("v_readfirstlane_b32 s%d, v%d" % (sPg, vT))
    a("s_cmp_lg_u32 s%d, 0" % sPg)
    a("s_cbranch_scc1 L_h_loop")
    a("s_sleep 4")
    a("s_branch L_h_flag")
    a.label("L_h_loop")
    a("ds_read_b32 v%d, v%d" % (vT, vPub))
    a("s_waitcnt lgkmcnt(0)")
    a("v_readfirstlane_b32 s%d, v%d" % (sPg, vT))
    a("s_add_u32 s%d, s%d, %d" % (sPg, sPg, NS + P.la))
    a("s_cmp_le_u32 s%d, s%d" % (sNx, sPg))
    a("s_cbranch_scc1 L_h_go")
    if P.diag:
        a("s_add_u32 s78, s78, 1")
    a("s_sleep %d" % P.hsleep)
    a("s_branch L_h_loop")
    a.label("L_h_go")
    if P.diag:
        a("s_memrealtime s[74:75]")
        a("s_waitcnt lgkmcnt(0)")
    a("s_sub_i32 s%d, %d, s%d" % (sN, POOL, sLast))
    a("s_ashr_i32 s%d, s%d, %d" % (sN, sN, P.gdiv))
    a("s_max_i32 s%d, s%d, %d" % (sN, sN, P.nmin))
    a("s_min_i32 s%d, s%d, %d" % (sN, sN, P.nmax))
    a("v_mov_b32 v%d, s%d" % (vT + 1, sN))
    a("buffer_atomic_add v%d, v%d, %s, s%d offen sc0" % (vT + 1, vZero, sr(sW), sWsC))
    a("s_lshl_b32 s%d, s%d, 2" % (sT0, sNx))
    a("s_add_u32 s%d, s%d, %d" % (sT0, sT0, MBOX))
    a("s_add_u32 s%d, s%d, s%d" % (sNx, sNx, sN))
    a("s_waitcnt vmcnt(0)")
    if P.diag:
        a("s_memrealtime s[76:77]")
        a("s_waitcnt lgkmcnt(0)")
        a("s_sub_u32 s76, s76, s74")
        a("s_add_u32 s79, s79, s76")
        a("s_max_u32 s80, s80, s76")
        a("s_add_u32 s81, s81, 1")
    a("v_readfirstlane_b32 s%d, v%d" % (sLast, vT + 1))
    a("s_add_u32 s%d, s%d, s%d" % (sLast, sLast, sN))
    a("s_lshl_b32 s%d, 1, s%d" % (sT1, sN))
    a("s_sub_u32 s%d, s%d, 1" % (sT1, sT1))
    a("s_mov_b32 exec_lo, s%d" % sT1)
    a("s_sub_u32 s%d, s%d, s%d" % (sT1, sLast, sN))
    a("s_add_u32 s%d, s%d, %d" % (sT1, sT1, BASE))
    a("v_add_u32 v%d, s%d, v%d" % (vT + 1, sT1, vLane))
    a("v_lshlrev_b32 v%d, 2, v%d" % (vT + 2, vLane))
    a("v_add_u32 v%d, s%d, v%d" % (vT + 2, sT0, vT + 2))
    a("ds_write_b32 v%d, v%d" % (vT + 2, vT + 1))
    a("s_mov_b64 exec, 1")
    a("s_cmp_lt_u32 s%d, %d" % (sLast, POOL))
    a("s_cbranch_scc1 L_h_loop")
    a("s_mov_b64 exec, 0xff")
    a("s_lshl_b32 s%d, s%d, 2" % (sT0, sNx))
    a("s_add_u32 s%d, s%d, %d" % (sT0, sT0, MBOX))
    a("v_lshlrev_b32 v%d, 2, v%d" % (vT, vLane))
    a("v_add_u32 v%d, s%d, v%d" % (vT, sT0, vT))
    a("v_mov_b32 v%d, %d" % (vT + 1, NTICK))
    a("ds_write_b32 v%d, v%d" % (vT, vT + 1))
    a("s_waitcnt lgkmcnt(0)")
    if P.diag:
        a("s_add_u32 s60, s%d, 0x40100000" % (sPtr + 10))
        a("s_addc_u32 s61, s%d, 0" % (sPtr + 11))
        a("s_and_b32 s61, s61, 0xffff")
        a("s_mov_b32 s62, 0x100000")
        a("s_mov_b32 s63, 0x00020000")
        a("s_lshl_b32 s73, s2, 8")
        a("s_mov_b64 exec, 1")
        a("v_mov_b32 v4, s79")
        a("v_mov_b32 v5, s81")
        a("v_mov_b32 v6, s80")
        a("v_mov_b32 v7, s78")
        a("buffer_store_dwordx4 v[4:7], v%d, s[60:63], s73 offen" % vZero)
    a("s_endpgm")

    lds = max(MBOX + MBN * 4, P.lds)
    out = HEADER
    out += "; @launch grid=(%d,1,1) block=(%d,1,1) lds=%d\n" % (NWG, (W + 1) * 64, lds)
    out += '.amdgcn_target "amdgcn-amd-amdhsa--gfx950"\n.text\n'
    out += ".globl %s_kernel\n.p2align 8\n.type %s_kernel,@function\n%s_kernel:\n" % (NAME, NAME, NAME)
    out += a.text()
    out += '.section .rodata,"a"\n.p2align 6\n.amdhsa_kernel %s_kernel\n' % NAME
    nv = max(nvgpr, vBuf + 64)
    out += "  .amdhsa_next_free_vgpr %d\n  .amdhsa_next_free_sgpr 88\n  .amdhsa_accum_offset %d\n" % (nv, (nv + 3) // 4 * 4)
    out += "  .amdhsa_group_segment_fixed_size 0\n  .amdhsa_kernarg_size 48\n  .amdhsa_user_sgpr_count 2\n"
    out += "  .amdhsa_user_sgpr_kernarg_segment_ptr 1\n  .amdhsa_system_sgpr_workgroup_id_x 1\n.end_amdhsa_kernel\n"
    return out

def parse(argv=None):
    ap = argparse.ArgumentParser()
    ap.add_argument("--waves", type=int, default=4)
    ap.add_argument("--mg", type=int, default=4)
    ap.add_argument("--stages", type=int, default=2)
    ap.add_argument("--policy", default="nt")
    ap.add_argument("--lds", type=int, default=98304)
    ap.add_argument("--diag", type=int, default=0)
    ap.add_argument("--contig", type=int, default=1)
    ap.add_argument("--tlb", type=int, default=0)
    ap.add_argument("--cstride", type=int, default=256)
    ap.add_argument("--diag2", type=int, default=0)
    ap.add_argument("--la", type=int, default=2)
    ap.add_argument("--r0", type=int, default=52)
    ap.add_argument("--gdiv", type=int, default=4)
    ap.add_argument("--nmin", type=int, default=1)
    ap.add_argument("--nmax", type=int, default=4)
    ap.add_argument("--hprio", type=int, default=3)
    ap.add_argument("--hsleep", type=int, default=2)
    ap.add_argument("--rot", type=int, default=0)
    ap.add_argument("--mul", type=int, default=1)
    ap.add_argument("-o", default="-")
    return ap.parse_args(argv)

if __name__ == "__main__":
    P = parse()
    t = gen(P)
    if P.o == "-":
        sys.stdout.write(t)
    else:
        open(P.o, "w").write(t)
```

```python
import argparse, math, sys, struct

NAME = "standalone__softmax_full_bidir__decode"
B, H, SKV, DH = 4, 16, 16384, 256
NH = B * H
ROWB = DH * 2
HEADB = SKV * ROWB
LOG2E = 1.4426950408889634

HEADER = """; Kernarg layout for this problem (48 bytes, ptrs only, base s[0:1]):
"""

def f32hex(x):
    return "0x%08x" % struct.unpack("<I", struct.pack("<f", x))[0]

class A:
    def __init__(self):
        self.l = []
    def __call__(self, s):
        self.l.append("    " + s)
    def label(self, s):
        self.l.append(s + ":")
    def c(self, s):
        self.l.append("    ; " + s)
    def text(self):
        return "\n".join(self.l) + "\n"

def vr(a, n=4):
    return "v[%d:%d]" % (a, a + n - 1)
def sr(a, n=4):
    return "s[%d:%d]" % (a, a + n - 1)

def gen(P):
    W = P.waves
    S = 8
    NWG = (NH // 2) * S
    MG = P.mg
    NS = P.stages
    TK = 4 * MG
    TB = TK * ROWB
    CK = W * TK
    CB = CK * ROWB
    NTH = SKV // CK
    NTICK = 2 * NTH
    NL = 2 * MG
    pol = (" " + P.policy) if P.policy else ""
    REC = 1024 + 128
    c_hex = f32hex(LOG2E / 16.0)
    ML = 2 * W * 1024
    MBOX = ML + 256
    MBN = NTICK + 64
    MBN = (MBN + 255) // 256 * 256
    NEGBIG = "0xff7fffff"

    a = A()
    sK, sV, sQ, sW = 4, 8, 12, 16
    sOff, sOff2, sLim, sPair, sJ, sWave, sC, sWOff = 20, 21, 22, 23, 24, 25, 26, 27
    sT0, sT1 = 28, 29
    sT2, sT3 = 30, 31
    sPtr = 32
    sO = 44
    sD = 48
    sHOff = 64
    sTk = 66
    sRot = 65
    sWsC, sAtc = 70, 71
    sJ0 = 71
    vKoff, vVoff, vLane = 1, 2, 3
    vQ = 4
    vMask = 12
    vM, vL, vMc, vAl = 16, 17, 18, 19
    vO = 20
    vC = 28
    vS = 44
    vT = 48
    vTk, vMaddr, vPub, vZero = 54, 55, 56, 57
    vRnd = 58
    vQ2 = 64
    vOA = 72
    vMcA, vLA = 80, 81
    vBuf = 84
    def Kreg(s, i): return vBuf + s * 8 * NL + 4 * i
    def Vreg(s, i): return vBuf + s * 8 * NL + 4 * NL + 4 * i
    nvgpr = vBuf + NS * 8 * NL
    assert MG <= 4 and NS <= 4

    def load_tile(base_fn, s, srd, voff):
        for m in range(MG):
            for j in range(2):
                off = m * 2048 + j * 256
                so = sOff
                if off >= 4096:
                    off -= 4096
                    so = sOff2
                a("buffer_load_dwordx4 %s, v%d, %s, s%d offen offset:%d%s" %
                  (vr(base_fn(s, m * 2 + j)), voff, sr(srd), so, off, pol))

    def set_off(src):
        if P.rot or P.mul != 1:
            a("s_mul_i32 s%d, s%d, %d" % (sOff, src, P.mul))
            a("s_add_u32 s%d, s%d, s%d" % (sOff, sOff, sRot))
            a("s_and_b32 s%d, s%d, %d" % (sOff, sOff, NTH - 1))
            a("s_andn2_b32 s%d, s%d, %d" % (sOff2, src, NTH - 1))
            a("s_or_b32 s%d, s%d, s%d" % (sOff, sOff, sOff2))
            a("s_mul_i32 s%d, s%d, %d" % (sOff, sOff, CB))
        else:
            a("s_mul_i32 s%d, s%d, %d" % (sOff, src, CB))
        a("s_add_u32 s%d, s%d, s%d" % (sOff, sOff, sWOff))
        a("s_add_u32 s%d, s%d, 4096" % (sOff2, sOff))

    if P.diag or P.diag2:
        a("s_memrealtime s[52:53]")
        a("s_mov_b32 s78, 0")
    a.c("uniform exit for workgroups past the data")
    a("s_cmp_ge_u32 s2, %d" % NWG)
    a("s_cbranch_scc1 L_done")
    a("s_load_dwordx4 %s, s[0:1], 0" % sr(sPtr))
    a("s_load_dwordx4 %s, s[0:1], 16" % sr(sPtr + 4))
    a("s_load_dwordx4 %s, s[0:1], 32" % sr(sPtr + 8))
    a("v_and_b32 v%d, 63, v0" % vLane)
    a("v_lshrrev_b32 v%d, 6, v0" % vT)
    a("v_lshrrev_b32 v%d, 4, v%d" % (vT + 1, vLane))
    a("v_readfirstlane_b32 s%d, v%d" % (sWave, vT))
    a("s_lshr_b32 s%d, s2, 3" % sPair)
    a("s_and_b32 s%d, s2, 7" % sJ)
    a("v_bfe_u32 v%d, v%d, 2, 2" % (vT + 2, vLane))
    a("v_lshlrev_b32 v%d, 9, v%d" % (vT + 2, vT + 2))
    a("v_lshl_add_u32 v%d, v%d, 6, v%d" % (vT + 2, vT + 1, vT + 2))
    a("v_and_b32 v%d, 3, v%d" % (vT + 3, vLane))
    a("v_lshl_add_u32 v%d, v%d, 4, v%d" % (vKoff, vT + 3, vT + 2))
    a("v_and_b32 v%d, 15, v%d" % (vT + 4, vLane))
    a("v_lshlrev_b32 v%d, 4, v%d" % (vT + 4, vT + 4))
    a("v_lshl_add_u32 v%d, v%d, 9, v%d" % (vVoff, vT + 1, vT + 4))
    a("v_lshlrev_b32 v%d, 4, v%d" % (vT + 3, vT + 3))
    a("v_lshl_add_u32 v%d, v%d, 6, v%d" % (vT + 5, vT + 1, vT + 3))
    a("v_mov_b32 v%d, 0" % vZero)
    a("s_lshr_b32 s%d, s%d, %d" % (sT1, sPair, 32 - 24))
    a("s_lshl_b32 s%d, s%d, 24" % (sT0, sPair))
    a("s_mul_i32 s%d, s%d, %d" % (sWOff, sWave, TB))
    a("s_lshl_b32 s%d, s%d, 3" % (sHOff, sPair))
    a("s_mul_i32 s%d, s%d, %d" % (sRot, sPair, P.rot))
    if P.contig:
        a("s_mul_i32 s%d, s%d, %d" % (sJ0, sJ, P.r0))
        for s in range(NS):
            a("s_add_u32 s%d, s%d, %d" % (sTk + s, sJ0, s))
    else:
        for s in range(NS):
            a("s_add_u32 s%d, s%d, %d" % (sTk + s, sJ, s * S))
    set_off(sTk)
    a("s_waitcnt lgkmcnt(0)")
    for (srd, p) in ((sK, sPtr + 2), (sV, sPtr + 4)):
        a("s_add_u32 s%d, s%d, s%d" % (srd, p, sT0))
        a("s_addc_u32 s%d, s%d, s%d" % (srd + 1, p + 1, sT1))
        a("s_and_b32 s%d, s%d, 0xffff" % (srd + 1, srd + 1))
        a("s_mov_b32 s%d, %d" % (srd + 2, 2 * HEADB))
        a("s_mov_b32 s%d, 0x00020000" % (srd + 3))
    a("s_mov_b32 s%d, s%d" % (sD, sPtr + 8))
    a("s_and_b32 s%d, s%d, 0xffff" % (sD + 1, sPtr + 9))
    a("s_mov_b32 s%d, 256" % (sD + 2))
    a("s_mov_b32 s%d, 0x00020000" % (sD + 3))
    a("s_mov_b32 s%d, s%d" % (sW, sPtr + 10))
    a("s_and_b32 s%d, s%d, 0xffff" % (sW + 1, sPtr + 11))
    a("s_mov_b32 s%d, %d" % (sW + 2, 0x200000))
    a("s_mov_b32 s%d, 0x00020000" % (sW + 3))
    a("s_mul_i32 s%d, s%d, %d" % (sWsC, sPair, P.cstride))
    a("s_add_u32 s%d, s%d, 0x100000" % (sWsC, sWsC))
    a("s_mov_b32 s%d, s%d" % (sQ, sPtr))
    a("s_and_b32 s%d, s%d, 0xffff" % (sQ + 1, sPtr + 1))
    a("s_mov_b32 s%d, %d" % (sQ + 2, NH * ROWB))
    a("s_mov_b32 s%d, 0x00020000" % (sQ + 3))
    a("s_lshl_b32 s%d, s%d, 10" % (sT0, sPair))

    PADDR = MBOX - 4
    a("s_cmp_eq_u32 s%d, %d" % (sWave, W))
    a("s_cbranch_scc1 L_helper")
    for s in range(NS):
        if s > 0:
            set_off(sTk + s)
        load_tile(Kreg, s, sK, vKoff)
        if s == 0:
            a("buffer_load_dwordx4 %s, v%d, %s, s%d offen" % (vr(vQ), vT + 5, sr(sQ), sT0))
            a("buffer_load_dwordx4 %s, v%d, %s, s%d offen offset:256" % (vr(vQ + 4), vT + 5, sr(sQ), sT0))
            a("buffer_load_dwordx4 %s, v%d, %s, s%d offen offset:512" % (vr(vQ2), vT + 5, sr(sQ), sT0))
            a("buffer_load_dwordx4 %s, v%d, %s, s%d offen offset:768" % (vr(vQ2 + 4), vT + 5, sr(sQ), sT0))
        load_tile(Vreg, s, sV, vVoff)
    a("s_mov_b32 s%d, s%d" % (sW, sPtr + 10))
    a("s_and_b32 s%d, s%d, 0xffff" % (sW + 1, sPtr + 11))
    a("s_mov_b32 s%d, %d" % (sW + 2, 0x200000))
    a("s_mov_b32 s%d, 0x00020000" % (sW + 3))
    a("s_mov_b32 s%d, s%d" % (sO, sPtr + 6))
    a("s_and_b32 s%d, s%d, 0xffff" % (sO + 1, sPtr + 7))
    a("s_mov_b32 s%d, %d" % (sO + 2, NH * ROWB))
    a("s_mov_b32 s%d, 0x00020000" % (sO + 3))
    a("v_and_b32 v%d, 1, v%d" % (vT, vLane))
    a("v_lshlrev_b32 v%d, 4, v%d" % (vT, vT))
    a("v_mov_b32 v%d, 0xffff" % (vT + 1))
    a("v_lshlrev_b32 v%d, v%d, v%d" % (vT, vT, vT + 1))
    a("v_bfe_u32 v%d, v%d, 1, 2" % (vT + 1, vLane))
    for r in range(4):
        a("v_cmp_eq_u32 vcc, %d, v%d" % (r, vT + 1))
        a("s_nop 1")
        a("v_cndmask_b32 v%d, 0, v%d, vcc" % (vMask + r, vT))
    a("v_mov_b32 v%d, %s" % (vM, NEGBIG))
    a("v_mov_b32 v%d, %s" % (vMc, NEGBIG))
    a("v_mov_b32 v%d, 0" % vL)
    for i in range(8):
        a("v_mov_b32 v%d, 0" % (vO + i))
    a("s_mov_b32 s%d, %s" % (sC, c_hex))
    a("s_mov_b32 s%d, %d" % (sLim, NTH))
    a("v_mov_b32 v%d, %d" % (vMaddr, MBOX + 4 * NS))
    a("v_mov_b32 v%d, %d" % (vPub, PADDR))
    a("v_mov_b32 v%d, 0" % vRnd)
    a("s_barrier")
    if P.diag or P.diag2:
        a("s_waitcnt vmcnt(%d)" % (NS * 2 * NL - NL))
        a("s_memrealtime s[54:55]")

    def loop(tag):
        for s in range(NS):
            t = "%s%d" % (tag, s)
            a.label("L_loop_" + t)
            a("s_cmp_lt_u32 s%d, s%d" % (sTk + s, sLim))
            a("s_cbranch_scc0 L_switch_" + t)
            a("ds_max_u32 v%d, v%d" % (vPub, vRnd))
            a("ds_read_b32 v%d, v%d" % (vTk, vMaddr))
            a("s_waitcnt vmcnt(%d)" % (NL + (NS - 1) * 2 * NL))
            for m in range(MG):
                a("v_mfma_f32_16x16x32_bf16 %s, %s, %s, 0" % (vr(vC + 4 * m), vr(Kreg(s, 2 * m)), vr(vQ)))
            for m in range(MG):
                a("v_mfma_f32_16x16x32_bf16 %s, %s, %s, %s" % (vr(vC + 4 * m), vr(Kreg(s, 2 * m + 1)), vr(vQ + 4), vr(vC + 4 * m)))
            a("s_waitcnt lgkmcnt(0)")
            a("v_readfirstlane_b32 s%d, v%d" % (sTk + s, vTk))
            a("s_cmp_eq_u32 s%d, -1" % (sTk + s))
            a("s_cbranch_scc1 L_poll_" + t)
            a.label("L_have_" + t)
            set_off(sTk + s)
            load_tile(Kreg, s, sK, vKoff)
            a("s_nop 3")
            for m in range(MG):
                a("v_mov_b32_dpp v%d, v%d quad_perm:[0,0,0,0] row_mask:0xf bank_mask:0xf" % (vS + m, vC + 4 * m))
            for r in range(1, 4):
                if MG < 4:
                    a("s_nop 1")
                for m in range(MG):
                    a("v_add_f32_dpp v%d, v%d, v%d quad_perm:[%d,%d,%d,%d] row_mask:0xf bank_mask:0xf" %
                      (vS + m, vC + 4 * m + r, vS + m, r, r, r, r))
            if MG == 4:
                a("v_max3_f32 v%d, v%d, v%d, v%d" % (vT, vS, vS + 1, vS + 2))
                a("v_max3_f32 v%d, v%d, v%d, v%d" % (vT, vT, vS + 3, vM))
            elif MG == 2:
                a("v_max3_f32 v%d, v%d, v%d, v%d" % (vT, vS, vS + 1, vM))
            else:
                a("v_max_f32 v%d, v%d, v%d" % (vT, vS, vM))
            a("v_mov_b32 v%d, v%d" % (vT + 1, vT))
            a("s_nop 1")
            a("v_permlane16_swap_b32 v%d, v%d" % (vT, vT + 1))
            a("s_nop 1")
            a("v_max_f32 v%d, v%d, v%d" % (vT, vT, vT + 1))
            a("v_mov_b32 v%d, v%d" % (vT + 1, vT))
            a("s_nop 1")
            a("v_permlane32_swap_b32 v%d, v%d" % (vT, vT + 1))
            a("s_nop 1")
            a("v_max_f32 v%d, v%d, v%d" % (vM, vT, vT + 1))
            a("v_mul_f32 v%d, s%d, v%d" % (vT, sC, vM))
            a("v_sub_f32 v%d, v%d, v%d" % (vAl, vMc, vT))
            a("v_mov_b32 v%d, v%d" % (vMc, vT))
            a("v_exp_f32 v%d, v%d" % (vAl, vAl))
            for m in range(MG):
                a("v_fma_f32 v%d, v%d, s%d, -v%d" % (vS + m, vS + m, sC, vMc))
            for m in range(MG):
                a("v_exp_f32 v%d, v%d" % (vS + m, vS + m))
            a("v_mul_f32 v%d, v%d, v%d" % (vL, vL, vAl))
            for i in range(8):
                a("v_mul_f32 v%d, v%d, v%d" % (vO + i, vO + i, vAl))
            for m in range(MG):
                a("v_add_f32 v%d, v%d, v%d" % (vL, vL, vS + m))
            for m in range(MG):
                a("v_cvt_pk_bf16_f32 v%d, v%d, v%d" % (vS + m, vS + m, vS + m))
            for m in range(MG):
                for r in range(4):
                    a("v_and_b32 v%d, v%d, v%d" % (vC + 4 * m + r, vS + m, vMask + r))
            a("v_add_u32 v%d, 4, v%d" % (vMaddr, vMaddr))
            a("v_add_u32 v%d, 1, v%d" % (vRnd, vRnd))
            a("s_waitcnt vmcnt(%d)" % ((NS - 1) * 2 * NL + NL))
            a("s_nop 1")
            for m in range(MG):
                for h in range(2):
                    a("v_mfma_f32_16x16x32_bf16 %s, %s, %s, %s" % (vr(vO + 4 * h), vr(vC + 4 * m), vr(Vreg(s, 2 * m + h)), vr(vO + 4 * h)))
            load_tile(Vreg, s, sV, vVoff)
        a("s_branch L_loop_%s0" % tag)
        for s in range(NS):
            t = "%s%d" % (tag, s)
            a.label("L_poll_" + t)
            if P.diag:
                a("s_add_u32 s78, s78, 1")
            a("s_sleep 1")
            a("ds_read_b32 v%d, v%d" % (vTk, vMaddr))
            a("s_waitcnt lgkmcnt(0)")
            a("v_readfirstlane_b32 s%d, v%d" % (sTk + s, vTk))
            a("s_cmp_eq_u32 s%d, -1" % (sTk + s))
            a("s_cbranch_scc1 L_poll_" + t)
            a("s_branch L_have_" + t)
            a.label("L_switch_" + t)
            a("s_cmp_eq_u32 s%d, %d" % (sLim, NTICK))
            a("s_cbranch_scc1 L_epi")
            a("s_waitcnt vmcnt(%d)" % (NL + (NS - 1) * 2 * NL))
            a("s_nop 7")
            for i in range(8):
                a("v_mov_b32 v%d, v%d" % (vOA + i, vO + i))
                a("v_mov_b32 v%d, 0" % (vO + i))
                a("v_mov_b32 v%d, v%d" % (vQ + i, vQ2 + i))
            a("v_mov_b32 v%d, v%d" % (vMcA, vMc))
            a("v_mov_b32 v%d, v%d" % (vLA, vL))
            a("v_mov_b32 v%d, %s" % (vM, NEGBIG))
            a("v_mov_b32 v%d, %s" % (vMc, NEGBIG))
            a("v_mov_b32 v%d, 0" % vL)
            a("s_mov_b32 s%d, %d" % (sLim, NTICK))
            a("s_branch L_loop_" + t)
    loop("c")

    a.label("L_epi")
    if P.diag or P.diag2:
        a("s_memrealtime s[56:57]")
    a("s_nop 7")
    for vl_ in (vLA, vL):
        a("v_mov_b32 v%d, v%d" % (vT + 1, vl_))
        a("s_nop 1")
        a("v_permlane16_swap_b32 v%d, v%d" % (vl_, vT + 1))
        a("s_nop 1")
        a("v_add_f32 v%d, v%d, v%d" % (vl_, vl_, vT + 1))
        a("v_mov_b32 v%d, v%d" % (vT + 1, vl_))
        a("s_nop 1")
        a("v_permlane32_swap_b32 v%d, v%d" % (vl_, vT + 1))
        a("s_nop 1")
        a("v_add_f32 v%d, v%d, v%d" % (vl_, vl_, vT + 1))
    a("v_and_b32 v%d, 15, v%d" % (vT, vLane))
    a("v_lshlrev_b32 v%d, 5, v%d" % (vT, vT))
    a("v_bfe_u32 v%d, v%d, 4, 1" % (vT + 1, vLane))
    a("v_lshl_add_u32 v%d, v%d, 4, v%d" % (vT, vT + 1, vT))
    a("s_lshl_b32 s%d, s%d, 10" % (sT0, sWave))
    a("v_add_u32 v%d, s%d, v%d" % (vT, sT0, vT))
    a("ds_write_b128 v%d, %s" % (vT, vr(vOA)))
    a("ds_write_b128 v%d, %s offset:512" % (vT, vr(vOA + 4)))
    a("ds_write_b128 v%d, %s offset:%d" % (vT, vr(vO), W * 1024))
    a("ds_write_b128 v%d, %s offset:%d" % (vT, vr(vO + 4), W * 1024 + 512))
    a("s_lshl_b32 s%d, s%d, 2" % (sT0, sWave))
    a("v_mov_b32 v%d, s%d" % (vT + 2, sT0))
    a("ds_write_b32 v%d, v%d offset:%d" % (vT + 2, vMcA, ML))
    a("ds_write_b32 v%d, v%d offset:%d" % (vT + 2, vLA, ML + 64))
    a("ds_write_b32 v%d, v%d offset:%d" % (vT + 2, vMc, ML + 128))
    a("ds_write_b32 v%d, v%d offset:%d" % (vT + 2, vL, ML + 192))
    a("s_waitcnt vmcnt(0) lgkmcnt(0)")
    a("s_barrier")
    a("s_cmp_ge_u32 s%d, 2" % sWave)
    a("s_cbranch_scc1 L_fin")
    vm, vl, vo = vBuf, vBuf + 16, vBuf + 32
    a("s_lshl_b32 s%d, s%d, 7" % (sT0, sWave))
    a("v_mov_b32 v%d, s%d" % (vT, sT0))
    for i in range(0, W, 4):
        a("ds_read_b128 %s, v%d offset:%d" % (vr(vm + i), vT, ML + 4 * i))
        a("ds_read_b128 %s, v%d offset:%d" % (vr(vl + i), vT, ML + 64 + 4 * i))
    a("v_lshlrev_b32 v%d, 4, v%d" % (vT + 1, vLane))
    a("s_mul_i32 s%d, s%d, %d" % (sT0, sWave, W * 1024))
    a("v_add_u32 v%d, s%d, v%d" % (vT + 2, sT0, vT + 1))
    for i in range(min(W, 4)):
        a("ds_read_b128 %s, v%d offset:%d" % (vr(vo + 4 * i), vT + 2, i * 1024))
    a("s_waitcnt lgkmcnt(%d)" % min(W, 4))
    a("v_max_f32 v%d, v%d, v%d" % (vMc, vm, vm + 1))
    for i in range(2, W, 2):
        a("v_max3_f32 v%d, v%d, v%d, v%d" % (vMc, vMc, vm + i, vm + i + 1))
    for i in range(W):
        a("v_sub_f32 v%d, v%d, v%d" % (vm + i, vm + i, vMc))
    for i in range(W):
        a("v_exp_f32 v%d, v%d" % (vm + i, vm + i))
    a("s_nop 0")
    a("v_mul_f32 v%d, v%d, v%d" % (vL, vm, vl))
    for i in range(1, W):
        a("v_fmac_f32 v%d, v%d, v%d" % (vL, vm + i, vl + i))
    for i0 in range(0, W, 4):
        if i0 > 0:
            for i in range(4):
                a("ds_read_b128 %s, v%d offset:%d" % (vr(vo + 4 * i), vT + 2, (i0 + i) * 1024))
        for i in range(4):
            a("s_waitcnt lgkmcnt(%d)" % (3 - i))
            for r in range(4):
                if i0 + i == 0:
                    a("v_mul_f32 v%d, v%d, v%d" % (vO + r, vm, vo + r))
                else:
                    a("v_fmac_f32 v%d, v%d, v%d" % (vO + r, vm + i0 + i, vo + 4 * i + r))
    a("s_lshl_b32 s%d, s2, 1" % sT0)
    a("s_add_u32 s%d, s%d, s%d" % (sT0, sT0, sWave))
    a("s_mul_i32 s%d, s%d, %d" % (sT0, sT0, REC))
    a("v_mov_b32 v%d, v%d" % (vT + 2, vMc))
    a("v_mov_b32 v%d, v%d" % (vT + 3, vL))
    a("buffer_store_dwordx4 %s, v%d, %s, s%d offen sc0 sc1" % (vr(vO), vT + 1, sr(sW), sT0))
    a("s_mov_b64 exec, 1")
    a("buffer_store_dwordx2 %s, v%d, %s, s%d offen offset:1024 sc0 sc1" % (vr(vT + 2, 2), vZero, sr(sW), sT0))
    a("s_lshl_b32 s%d, s%d, 1" % (sT2, sPair))
    a("s_add_u32 s%d, s%d, s%d" % (sT2, sT2, sWave))
    a("s_lshl_b32 s%d, s%d, 2" % (sT3, sWave))
    a("s_add_u32 s%d, s%d, s%d" % (sT3, sT3, sWsC))
    if P.scomp:
        a("s_add_u32 s86, s%d, s%d" % (sPtr + 10, sT3))
        a("s_addc_u32 s87, s%d, 0" % (sPtr + 11))
        a("s_mov_b32 s%d, 1" % sT1)
        a("s_waitcnt vmcnt(0)")
        a("s_atomic_add s%d, s[86:87], 0x4 glc" % sT1)
        a("s_mov_b64 exec, -1")
        a("s_waitcnt lgkmcnt(0)")
    else:
        a("v_mov_b32 v%d, 1" % (vT + 5))
        a("s_waitcnt vmcnt(0)")
        a("buffer_atomic_add v%d, v%d, %s, s%d offen offset:4 sc0" % (vT + 5, vZero, sr(sW), sT3))
        a("s_waitcnt vmcnt(0)")
        a("v_readfirstlane_b32 s%d, v%d" % (sT1, vT + 5))
        a("s_mov_b64 exec, -1")
        a("s_nop 1")
    a("s_cmp_lg_u32 s%d, %d" % (sT1, S - 1))
    a("s_cbranch_scc1 L_fin")
    a("s_lshl_b32 s%d, s%d, 4" % (sT0, sPair))
    a("s_add_u32 s%d, s%d, s%d" % (sT0, sT0, sWave))
    a("s_mul_i32 s%d, s%d, %d" % (sT0, sT0, REC))
    vml = vBuf
    for i in range(S):
        a("s_add_u32 s%d, s%d, %d" % (sT1, sT0, i * 2 * REC))
        a("buffer_load_dwordx2 %s, v%d, %s, s%d offen offset:1024 sc0 sc1" % (vr(vml + 2 * i, 2), vZero, sr(sW), sT1))
    vo2 = vBuf + 32
    for i in range(S):
        a("s_add_u32 s%d, s%d, %d" % (sT1, sT0, i * 2 * REC))
        a("buffer_load_dwordx4 %s, v%d, %s, s%d offen sc0 sc1" % (vr(vo2 + 4 * i), vT + 1, sr(sW), sT1))
    a("s_waitcnt vmcnt(%d)" % S)
    a("v_max_f32 v%d, v%d, v%d" % (vMc, vml, vml + 2))
    for i in range(2, S):
        a("v_max_f32 v%d, v%d, v%d" % (vMc, vMc, vml + 2 * i))
    for i in range(S):
        a("v_sub_f32 v%d, v%d, v%d" % (vml + 2 * i, vml + 2 * i, vMc))
    for i in range(S):
        a("v_exp_f32 v%d, v%d" % (vml + 2 * i, vml + 2 * i))
    a("s_nop 0")
    a("v_mul_f32 v%d, v%d, v%d" % (vL, vml, vml + 1))
    for i in range(1, S):
        a("v_fmac_f32 v%d, v%d, v%d" % (vL, vml + 2 * i, vml + 2 * i + 1))
    a("v_rcp_f32 v%d, v%d" % (vL, vL))
    for i in range(S):
        a("s_waitcnt vmcnt(%d)" % (S - 1 - i))
        for r in range(4):
            if i == 0:
                a("v_mul_f32 v%d, v%d, v%d" % (vO + r, vml, vo2 + r))
            else:
                a("v_fmac_f32 v%d, v%d, v%d" % (vO + r, vml + 2 * i, vo2 + 4 * i + r))
    for r in range(4):
        a("v_mul_f32 v%d, v%d, v%d" % (vO + r, vO + r, vL))
    a("v_cvt_pk_bf16_f32 v%d, v%d, v%d" % (vO, vO, vO + 1))
    a("v_cvt_pk_bf16_f32 v%d, v%d, v%d" % (vO + 1, vO + 2, vO + 3))
    a("v_lshlrev_b32 v%d, 3, v%d" % (vT + 1, vLane))
    a("s_lshl_b32 s%d, s%d, 9" % (sT0, sT2))
    a("buffer_store_dwordx2 %s, v%d, %s, s%d offen%s" % (vr(vO, 2), vT + 1, sr(sO), sT0, " sc0 sc1" if P.outwt else ""))
    a.label("L_fin")
    if P.diag2:
        a("s_waitcnt vmcnt(0)")
        a("s_memrealtime s[58:59]")
        a("s_waitcnt lgkmcnt(0)")
        a("s_mov_b64 exec, 1")
        a("s_not_b32 s28, s52")
        a("v_mov_b32 v4, s28")
        a("buffer_atomic_umax v4, v%d, %s, 0 offen" % (vZero, sr(sD)))
        a("v_mov_b32 v5, s54")
        a("buffer_atomic_umax v5, v%d, %s, 0 offen offset:4" % (vZero, sr(sD)))
        a("v_mov_b32 v6, s56")
        a("buffer_atomic_umax v6, v%d, %s, 0 offen offset:8" % (vZero, sr(sD)))
        a("v_mov_b32 v7, s58")
        a("buffer_atomic_umax v7, v%d, %s, 0 offen offset:12" % (vZero, sr(sD)))
        a("s_not_b32 s28, s54")
        a("v_mov_b32 v8, s28")
        a("buffer_atomic_umax v8, v%d, %s, 0 offen offset:16" % (vZero, sr(sD)))
        a("s_not_b32 s28, s56")
        a("v_mov_b32 v9, s28")
        a("buffer_atomic_umax v9, v%d, %s, 0 offen offset:20" % (vZero, sr(sD)))
        a("v_mov_b32 v10, s52")
        a("buffer_atomic_umax v10, v%d, %s, 0 offen offset:24" % (vZero, sr(sD)))
        a("s_cmp_lt_u32 s2, 8")
        a("s_cbranch_scc0 L_done")
        a("s_getreg_b32 s29, hwreg(HW_REG_XCC_ID)")
        a("v_mov_b32 v11, s29")
        a("s_lshl_b32 s28, s2, 2")
        a("buffer_store_dword v11, v%d, %s, s28 offen offset:32" % (vZero, sr(sD)))
    if P.diag:
        a("s_waitcnt vmcnt(0)")
        a("s_memrealtime s[58:59]")
        a("s_waitcnt lgkmcnt(0)")
        a("s_add_u32 s60, s%d, 0x40000000" % (sPtr + 10))
        a("s_addc_u32 s61, s%d, 0" % (sPtr + 11))
        a("s_and_b32 s61, s61, 0xffff")
        a("s_mov_b32 s62, 0x1000000")
        a("s_mov_b32 s63, 0x00020000")
        a("s_mul_i32 s28, s2, %d" % W)
        a("s_add_u32 s28, s28, s%d" % sWave)
        a("s_lshl_b32 s28, s28, 5")
        a("s_mov_b64 exec, 1")
        a("v_mov_b32 v4, s52")
        a("v_mov_b32 v5, s54")
        a("v_mov_b32 v6, s56")
        a("v_mov_b32 v7, s58")
        a("s_getreg_b32 s29, hwreg(HW_REG_XCC_ID)")
        a("v_mov_b32 v8, s29")
        a("s_getreg_b32 s29, hwreg(HW_REG_HW_ID)")
        a("v_mov_b32 v9, s29")
        a("v_mov_b32 v10, s78")
        a("v_mov_b32 v12, 0")
        a("v_subrev_u32 v11, %d, v%d" % (MBOX + 4 * NS - (W * 1024 + 128 + 4), vMaddr))
        a("buffer_store_dwordx4 v[4:7], v12, s[60:63], s28 offen")
        a("buffer_store_dwordx4 v[8:11], v12, s[60:63], s28 offen offset:16")
    a.label("L_done")
    a("s_endpgm")
    a.label("L_helper")
    a("s_setprio %d" % P.hprio)
    sNx, sPg, sN, sLast = 72, 73, 82, 83
    R0 = P.r0
    BASE = R0 * S
    POOL = NTICK - BASE
    assert NS <= R0 <= 256
    a("v_mov_b32 v%d, -1" % vT)
    a("v_mov_b32 v%d, -1" % (vT + 1))
    a("v_mov_b32 v%d, -1" % (vT + 2))
    a("v_mov_b32 v%d, -1" % (vT + 3))
    a("v_lshlrev_b32 v%d, 4, v%d" % (vT + 4, vLane))
    for i in range(MBN * 4 // 1024):
        a("ds_write_b128 v%d, %s offset:%d" % (vT + 4, vr(vT), MBOX + 1024 * i))
    if P.contig:
        a("v_add_u32 v%d, s%d, v%d" % (vT, sJ0, vLane))
    else:
        a("v_lshlrev_b32 v%d, 3, v%d" % (vT, vLane))
        a("v_add_u32 v%d, s%d, v%d" % (vT, sJ, vT))
    a("v_lshlrev_b32 v%d, 2, v%d" % (vT + 1, vLane))
    for b in range(0, R0, 64):
        if R0 - b < 64:
            a("v_cmp_gt_u32 vcc, %d, v%d" % (R0 - b, vLane))
            a("s_and_saveexec_b64 s[84:85], vcc")
        a("ds_write_b32 v%d, v%d offset:%d" % (vT + 1, vT, MBOX + 4 * b))
        if R0 - b < 64:
            a("s_mov_b64 exec, s[84:85]")
        else:
            a("v_add_u32 v%d, %d, v%d" % (vT, 64 if P.contig else 512, vT))
    a("ds_write_b32 v%d, v%d offset:%d" % (vZero, vZero, PADDR))
    a("v_mov_b32 v%d, %d" % (vPub, PADDR))
    a("s_mov_b32 s%d, %d" % (sNx, R0))
    a("s_mov_b32 s%d, 0" % sLast)
    a("s_add_u32 s86, s%d, s%d" % (sPtr + 10, sWsC))
    a("s_addc_u32 s87, s%d, 0" % (sPtr + 11))
    if P.diag:
        a("s_mov_b32 s79, 0")
        a("s_mov_b32 s80, 0")
        a("s_mov_b32 s81, 0")
    a("s_waitcnt lgkmcnt(0)")
    a("s_barrier")
    if P.tlb:
        step = 512 * 1024
        nown = (R0 * CB + step - 1) // step + 1
        npool = (POOL * CB + step - 1) // step + 1
        a("s_mul_i32 s%d, s%d, %d" % (sT0, sJ0, CB))
        a("v_lshlrev_b32 v%d, 19, v%d" % (vT, vLane))
        a("v_add_u32 v%d, s%d, v%d" % (vT + 1, sT0, vT))
        a("v_add_u32 v%d, %d, v%d" % (vT + 2, (BASE * CB - nown * step) & 0xffffffff, vT))
        a("v_cmp_gt_u32 vcc, %d, v%d" % (nown, vLane))
        a("s_nop 1")
        a("v_cndmask_b32 v%d, v%d, v%d, vcc" % (vT, vT + 2, vT + 1))
        a("s_mov_b64 exec, %d" % ((1 << (nown + npool)) - 1))
        a("buffer_load_dword v%d, v%d, %s, 0 offen nt" % (vT + 3, vT, sr(sK)))
        a("buffer_load_dword v%d, v%d, %s, 0 offen nt" % (vT + 4, vT, sr(sV)))
        a("s_waitcnt vmcnt(0)")
    a("s_mov_b64 exec, 1")
    a("s_lshl_b32 s%d, s%d, 2" % (sT2, sPair))
    a("s_add_u32 s%d, s%d, 128" % (sT2, sT2))
    a("s_cmp_lg_u32 s%d, 0" % sJ)
    a("s_cbranch_scc1 L_h_flagwait")
    a("v_mov_b32 v%d, 0" % vT)
    a("v_mov_b32 v%d, 0" % (vT + 1))
    a("v_mov_b32 v%d, 0" % (vT + 2))
    a("v_mov_b32 v%d, 0" % (vT + 3))
    a("buffer_store_dwordx4 %s, v%d, %s, s%d offen sc0 sc1" % (vr(vT), vZero, sr(sW), sWsC))
    a("s_waitcnt vmcnt(0)")
    a("v_mov_b32 v%d, 1" % vT)
    a("buffer_store_dword v%d, v%d, %s, s%d offen sc0 sc1" % (vT, vZero, sr(sD), sT2))
    a("s_waitcnt vmcnt(0)")
    a.label("L_h_flagwait")
    a.label("L_h_w0")
    a("ds_read_b32 v%d, v%d" % (vT, vPub))
    a("s_waitcnt lgkmcnt(0)")
    a("v_readfirstlane_b32 s%d, v%d" % (sPg, vT))
    a("s_add_u32 s%d, s%d, %d" % (sPg, sPg, NS + P.la + 2))
    a("s_cmp_le_u32 s%d, s%d" % (sNx, sPg))
    a("s_cbranch_scc1 L_h_flag")
    a("s_sleep 16")
    a("s_branch L_h_w0")
    a.label("L_h_flag")
    a("buffer_load_dword v%d, v%d, %s, s%d offen sc0 sc1" % (vT, vZero, sr(sD), sT2))
    a("s_waitcnt vmcnt(0)")
    a("v_readfirstlane_b32 s%d, v%d" % (sPg, vT))
    a("s_cmp_lg_u32 s%d, 0" % sPg)
    a("s_cbranch_scc1 L_h_loop")
    a("s_sleep 4")
    a("s_branch L_h_flag")
    a.label("L_h_loop")
    a("ds_read_b32 v%d, v%d" % (vT, vPub))
    a("s_waitcnt lgkmcnt(0)")
    a("v_readfirstlane_b32 s%d, v%d" % (sPg, vT))
    a("s_add_u32 s%d, s%d, %d" % (sPg, sPg, NS + P.la))
    a("s_cmp_le_u32 s%d, s%d" % (sNx, sPg))
    a("s_cbranch_scc1 L_h_go")
    if P.diag:
        a("s_add_u32 s78, s78, 1")
    a("s_sleep %d" % P.hsleep)
    a("s_branch L_h_loop")
    a.label("L_h_go")
    if P.diag:
        a("s_memrealtime s[74:75]")
        a("s_waitcnt lgkmcnt(0)")
    a("s_sub_i32 s%d, %d, s%d" % (sN, POOL, sLast))
    a("s_ashr_i32 s%d, s%d, %d" % (sN, sN, P.gdiv))
    a("s_max_i32 s%d, s%d, %d" % (sN, sN, P.nmin))
    a("s_min_i32 s%d, s%d, %d" % (sN, sN, P.nmax))
    if P.satom:
        a("s_mov_b32 s%d, s%d" % (sLast, sN))
        a("s_atomic_add s%d, s[86:87], 0x0 glc" % sLast)
    else:
        a("v_mov_b32 v%d, s%d" % (vT + 1, sN))
        a("buffer_atomic_add v%d, v%d, %s, s%d offen sc0" % (vT + 1, vZero, sr(sW), sWsC))
    a("s_lshl_b32 s%d, s%d, 2" % (sT0, sNx))
    a("s_add_u32 s%d, s%d, %d" % (sT0, sT0, MBOX))
    a("s_add_u32 s%d, s%d, s%d" % (sNx, sNx, sN))
    a("s_waitcnt vmcnt(0) lgkmcnt(0)")
    if P.diag:
        a("s_memrealtime s[76:77]")
        a("s_waitcnt lgkmcnt(0)")
        a("s_sub_u32 s76, s76, s74")
        a("s_add_u32 s79, s79, s76")
        a("s_max_u32 s80, s80, s76")
        a("s_add_u32 s81, s81, 1")
    if not P.satom:
        a("v_readfirstlane_b32 s%d, v%d" % (sLast, vT + 1))
    a("s_add_u32 s%d, s%d, s%d" % (sLast, sLast, sN))
    a("s_lshl_b32 s%d, 1, s%d" % (sT1, sN))
    a("s_sub_u32 s%d, s%d, 1" % (sT1, sT1))
    a("s_mov_b32 exec_lo, s%d" % sT1)
    a("s_sub_u32 s%d, s%d, s%d" % (sT1, sLast, sN))
    a("s_add_u32 s%d, s%d, %d" % (sT1, sT1, BASE))
    a("v_add_u32 v%d, s%d, v%d" % (vT + 1, sT1, vLane))
    a("v_lshlrev_b32 v%d, 2, v%d" % (vT + 2, vLane))
    a("v_add_u32 v%d, s%d, v%d" % (vT + 2, sT0, vT + 2))
    a("ds_write_b32 v%d, v%d" % (vT + 2, vT + 1))
    a("s_mov_b64 exec, 1")
    a("s_cmp_lt_u32 s%d, %d" % (sLast, POOL))
    a("s_cbranch_scc1 L_h_loop")
    a("s_mov_b64 exec, 0xff")
    a("s_lshl_b32 s%d, s%d, 2" % (sT0, sNx))
    a("s_add_u32 s%d, s%d, %d" % (sT0, sT0, MBOX))
    a("v_lshlrev_b32 v%d, 2, v%d" % (vT, vLane))
    a("v_add_u32 v%d, s%d, v%d" % (vT, sT0, vT))
    a("v_mov_b32 v%d, %d" % (vT + 1, NTICK))
    a("ds_write_b32 v%d, v%d" % (vT, vT + 1))
    a("s_waitcnt lgkmcnt(0)")
    if P.diag:
        a("s_add_u32 s60, s%d, 0x40100000" % (sPtr + 10))
        a("s_addc_u32 s61, s%d, 0" % (sPtr + 11))
        a("s_and_b32 s61, s61, 0xffff")
        a("s_mov_b32 s62, 0x100000")
        a("s_mov_b32 s63, 0x00020000")
        a("s_lshl_b32 s73, s2, 8")
        a("s_mov_b64 exec, 1")
        a("v_mov_b32 v4, s79")
        a("v_mov_b32 v5, s81")
        a("v_mov_b32 v6, s80")
        a("v_mov_b32 v7, s78")
        a("buffer_store_dwordx4 v[4:7], v%d, s[60:63], s73 offen" % vZero)
    a("s_endpgm")

    lds = max(MBOX + MBN * 4, P.lds)
    out = HEADER
    out += "; @launch grid=(%d,1,1) block=(%d,1,1) lds=%d\n" % (NWG, (W + 1) * 64, lds)
    out += '.amdgcn_target "amdgcn-amd-amdhsa--gfx950"\n.text\n'
    out += ".globl %s_kernel\n.p2align 8\n.type %s_kernel,@function\n%s_kernel:\n" % (NAME, NAME, NAME)
    out += a.text()
    out += '.section .rodata,"a"\n.p2align 6\n.amdhsa_kernel %s_kernel\n' % NAME
    nv = max(nvgpr, vBuf + 64)
    out += "  .amdhsa_next_free_vgpr %d\n  .amdhsa_next_free_sgpr 90\n  .amdhsa_accum_offset %d\n" % (nv, (nv + 3) // 4 * 4)
    out += "  .amdhsa_group_segment_fixed_size 0\n  .amdhsa_kernarg_size 48\n  .amdhsa_user_sgpr_count 2\n"
    out += "  .amdhsa_user_sgpr_kernarg_segment_ptr 1\n  .amdhsa_system_sgpr_workgroup_id_x 1\n.end_amdhsa_kernel\n"
    return out

def parse(argv=None):
    ap = argparse.ArgumentParser()
    ap.add_argument("--waves", type=int, default=4)
    ap.add_argument("--mg", type=int, default=4)
    ap.add_argument("--stages", type=int, default=2)
    ap.add_argument("--policy", default="nt")
    ap.add_argument("--lds", type=int, default=98304)
    ap.add_argument("--diag", type=int, default=0)
    ap.add_argument("--scomp", type=int, default=0)
    ap.add_argument("--outwt", type=int, default=0)
    ap.add_argument("--satom", type=int, default=0)
    ap.add_argument("--contig", type=int, default=1)
    ap.add_argument("--tlb", type=int, default=0)
    ap.add_argument("--cstride", type=int, default=256)
    ap.add_argument("--diag2", type=int, default=0)
    ap.add_argument("--la", type=int, default=2)
    ap.add_argument("--r0", type=int, default=52)
    ap.add_argument("--gdiv", type=int, default=4)
    ap.add_argument("--nmin", type=int, default=1)
    ap.add_argument("--nmax", type=int, default=4)
    ap.add_argument("--hprio", type=int, default=3)
    ap.add_argument("--hsleep", type=int, default=2)
    ap.add_argument("--rot", type=int, default=0)
    ap.add_argument("--mul", type=int, default=1)
    ap.add_argument("-o", default="-")
    return ap.parse_args(argv)

if __name__ == "__main__":
    P = parse()
    t = gen(P)
    if P.o == "-":
        sys.stdout.write(t)
    else:
        open(P.o, "w").write(t)
```

```python
import argparse, struct, sys

NAME = "standalone__softmax_full_bidir__decode"
NH, SKV, DH = 64, 16384, 256
ROWB = DH * 2
HEADB = SKV * ROWB
LOG2E = 1.4426950408889634

HEADER = """; Kernarg layout for this problem (48 bytes, ptrs only, base s[0:1]):
"""

DOC = """;
;  - a round = {CK} keys ({TK} per worker wave); rounds 0..{R0m1} of a workgroup are static and contiguous,
"""

def f32hex(x):
    return "0x%08x" % struct.unpack("<I", struct.pack("<f", x))[0]

class A:
    def __init__(self): self.l = []
    def __call__(self, s, c=None):
        self.l.append("    " + s + ("" if c is None else (" " * max(1, 64 - len(s)) + "; " + c)))
    def label(self, s): self.l.append(s + ":")
    def c(self, s): self.l.append("    ; " + s)
    def text(self): return "\n".join(self.l) + "\n"

def vr(a, n=4): return "v[%d:%d]" % (a, a + n - 1)
def sr(a, n=4): return "s[%d:%d]" % (a, a + n - 1)

def gen(P):
    W, S = 4, 8
    NWG = (NH // 2) * S
    MG, NS, R0, LA = P.mg, P.stages, P.r0, P.la
    TK = 4 * MG; TB = TK * ROWB; CK = W * TK; CB = CK * ROWB
    assert SKV % CK == 0
    NTH = SKV // CK; NTICK = 2 * NTH
    NL = 2 * MG
    BASE = R0 * S; POOL = NTICK - BASE
    assert NS <= R0 and POOL > 0 and P.nmax <= 8
    REC = 1024 + 128
    CTRL = 0x100000
    ML = 2 * W * 1024
    MBOX = ML + 256
    PADDR = MBOX - 4
    MBN = (R0 + POOL + NS + 16 + 255) // 256 * 256
    NEG = "0xff7fffff"
    pol = " nt"
    KW = NL + (NS - 1) * 2 * NL
    D = P.diag

    a = A()
    sK, sV, sQ, sW, sO, sD = 4, 8, 12, 16, 44, 48
    sOff, sOff2, sLim, sPair, sJ, sWave, sC, sWOff = 20, 21, 22, 23, 24, 25, 26, 27
    sT0, sT1, sT2, sT3 = 28, 29, 30, 31
    sPtr = 32
    sTk = 64
    sCtl, sJ0 = 70, 71
    sNx, sPg, sN, sLast = 72, 73, 74, 75
    sSave = 76
    sAt = 78
    vKoff, vVoff, vLane = 1, 2, 3
    vQ, vMask = 4, 12
    vM, vL, vMc, vAl = 16, 17, 18, 19
    vO, vC, vS, vT = 20, 28, 44, 48
    vTk, vMaddr, vPub, vZero, vRnd = 54, 55, 56, 57, 58
    vQ2, vOA, vMcA, vLA = 64, 72, 80, 81
    vBuf = 84
    Kreg = lambda s, i: vBuf + s * 8 * NL + 4 * i
    Vreg = lambda s, i: vBuf + s * 8 * NL + 4 * NL + 4 * i
    nv = max(vBuf + NS * 8 * NL, vBuf + 64)
    assert MG <= 4 and NS <= 4 and nv <= 256

    def load_tile(fn, s, srd, voff):
        for m in range(MG):
            for j in range(2):
                off, so = m * 2048 + j * 256, sOff
                if off >= 4096: off, so = off - 4096, sOff2
                a("buffer_load_dwordx4 %s, v%d, %s, s%d offen offset:%d%s" % (vr(fn(s, 2 * m + j)), voff, sr(srd), so, off, pol))
    def set_off(src):
        a("s_mul_i32 s%d, s%d, %d" % (sOff, src, CB), "byte offset of this wave's tile = ticket*CB + wave*TB")
        a("s_add_u32 s%d, s%d, s%d" % (sOff, sOff, sWOff))
        if MG > 2: a("s_add_u32 s%d, s%d, 4096" % (sOff2, sOff))
    def srd(dst, lo, size):
        a("s_mov_b32 s%d, s%d" % (dst, lo)); a("s_and_b32 s%d, s%d, 0xffff" % (dst + 1, lo + 1))
        a("s_mov_b32 s%d, %d" % (dst + 2, size)); a("s_mov_b32 s%d, 0x00020000" % (dst + 3))
    def xrow(v, op):
        for sw in ("v_permlane16_swap_b32", "v_permlane32_swap_b32"):
            a("v_mov_b32 v%d, v%d" % (vT + 1, v)); a("s_nop 1")
            a("%s v%d, v%d" % (sw, v, vT + 1)); a("s_nop 1")
            a("%s v%d, v%d, v%d" % (op, v, v, vT + 1))

    if D: a("s_memrealtime s[52:53]"); a("s_mov_b32 s82, 0")
    a("s_cmp_ge_u32 s2, %d" % NWG, "workgroups past the data leave at once")
    a("s_cbranch_scc1 L_done")
    a("s_load_dwordx4 %s, s[0:1], 0" % sr(sPtr), "q, k")
    a("s_load_dwordx4 %s, s[0:1], 16" % sr(sPtr + 4), "v, out")
    a("s_load_dwordx4 %s, s[0:1], 32" % sr(sPtr + 8), "debug, ws")
    a("v_and_b32 v%d, 63, v0" % vLane)
    a("v_lshrrev_b32 v%d, 6, v0" % vT)
    a("v_lshrrev_b32 v%d, 4, v%d" % (vT + 1, vLane), "g = lane>>4")
    a("v_readfirstlane_b32 s%d, v%d" % (sWave, vT))
    a("s_lshr_b32 s%d, s2, 3" % sPair, "group = head pair")
    a("s_and_b32 s%d, s2, 7" % sJ, "member of the group")
    a.c("K fragment (A operand): lane(i=4*key+p, g) reads key row 'key', 16 bytes at g*64 + p*16 (+256 for the 2nd half)")
    a("v_bfe_u32 v%d, v%d, 2, 2" % (vT + 2, vLane))
    a("v_lshlrev_b32 v%d, 9, v%d" % (vT + 2, vT + 2))
    a("v_lshl_add_u32 v%d, v%d, 6, v%d" % (vT + 2, vT + 1, vT + 2))
    a("v_and_b32 v%d, 3, v%d" % (vT + 3, vLane))
    a("v_lshl_add_u32 v%d, v%d, 4, v%d" % (vKoff, vT + 3, vT + 2))
    a.c("V fragment (B operand): lane(j, g) reads key row g, 16 bytes at j*16 (+256 for the 2nd half)")
    a("v_and_b32 v%d, 15, v%d" % (vT + 4, vLane))
    a("v_lshlrev_b32 v%d, 4, v%d" % (vT + 4, vT + 4))
    a("v_lshl_add_u32 v%d, v%d, 9, v%d" % (vVoff, vT + 1, vT + 4))
    a.c("q fragment (B operand): lane(n, g) holds the q chunk that matches K chunk g*64 + (n&3)*16")
    a("v_lshlrev_b32 v%d, 4, v%d" % (vT + 3, vT + 3))
    a("v_lshl_add_u32 v%d, v%d, 6, v%d" % (vT + 5, vT + 1, vT + 3))
    a("v_mov_b32 v%d, 0" % vZero)
    a("s_lshr_b32 s%d, s%d, 8" % (sT1, sPair))
    a("s_lshl_b32 s%d, s%d, 24" % (sT0, sPair), "pair * 16 MiB")
    a("s_mul_i32 s%d, s%d, %d" % (sWOff, sWave, TB))
    a("s_mul_i32 s%d, s%d, %d" % (sJ0, sJ, R0), "first static ticket")
    for s in range(NS): a("s_add_u32 s%d, s%d, %d" % (sTk + s, sJ0, s))
    set_off(sTk)
    a("s_lshl_b32 s%d, s%d, 8" % (sCtl, sPair))
    a("s_add_u32 s%d, s%d, 0x%x" % (sCtl, sCtl, CTRL), "control line of the group (offset in d_ws)")
    a("s_cmp_eq_u32 s%d, %d" % (sWave, W))
    a("s_waitcnt lgkmcnt(0)")
    a("s_cbranch_scc1 L_helper")
    for (d, p) in ((sK, sPtr + 2), (sV, sPtr + 4)):
        a("s_add_u32 s%d, s%d, s%d" % (d, p, sT0)); a("s_addc_u32 s%d, s%d, s%d" % (d + 1, p + 1, sT1))
        a("s_and_b32 s%d, s%d, 0xffff" % (d + 1, d + 1))
        a("s_mov_b32 s%d, %d" % (d + 2, 2 * HEADB), "tickets past the pair's range read nothing")
        a("s_mov_b32 s%d, 0x00020000" % (d + 3))
    load_tile(Kreg, 0, sK, vKoff)
    srd(sQ, sPtr, NH * ROWB)
    a("s_lshl_b32 s%d, s%d, 10" % (sT0, sPair))
    for i, dst in enumerate((vQ, vQ + 4, vQ2, vQ2 + 4)):
        a("buffer_load_dwordx4 %s, v%d, %s, s%d offen offset:%d" % (vr(dst), vT + 5, sr(sQ), sT0, 256 * i))
    load_tile(Vreg, 0, sV, vVoff)
    for s in range(1, NS):
        set_off(sTk + s); load_tile(Kreg, s, sK, vKoff); load_tile(Vreg, s, sV, vVoff)
    srd(sW, sPtr + 10, 0x200000)
    srd(sO, sPtr + 6, NH * ROWB)
    a.c("P operand masks: element e=(lane&7) of the 8-wide k slab is the only live one")
    a("v_and_b32 v%d, 1, v%d" % (vT, vLane))
    a("v_lshlrev_b32 v%d, 4, v%d" % (vT, vT))
    a("v_mov_b32 v%d, 0xffff" % (vT + 1))
    a("v_lshlrev_b32 v%d, v%d, v%d" % (vT, vT, vT + 1))
    a("v_bfe_u32 v%d, v%d, 1, 2" % (vT + 1, vLane))
    for r in range(4):
        a("v_cmp_eq_u32 vcc, %d, v%d" % (r, vT + 1)); a("s_nop 1")
        a("v_cndmask_b32 v%d, 0, v%d, vcc" % (vMask + r, vT))
    a("v_mov_b32 v%d, %s" % (vM, NEG)); a("v_mov_b32 v%d, %s" % (vMc, NEG)); a("v_mov_b32 v%d, 0" % vL)
    for i in range(8): a("v_mov_b32 v%d, 0" % (vO + i))
    a("s_mov_b32 s%d, %s" % (sC, f32hex(LOG2E / 16.0)), "log2(e) / sqrt(256)")
    a("s_mov_b32 s%d, %d" % (sLim, NTH), "tickets below this belong to the first head")
    a("v_mov_b32 v%d, %d" % (vMaddr, MBOX + 4 * NS))
    a("v_mov_b32 v%d, %d" % (vPub, PADDR))
    a("v_mov_b32 v%d, 0" % vRnd)
    a("s_barrier", "mailbox initialised by the ticket wave")
    if D: a("s_waitcnt vmcnt(%d)" % KW); a("s_memrealtime s[54:55]")

    for s in range(NS):
        t = "%d" % s
        a.label("L_loop_" + t)
        a("s_cmp_lt_u32 s%d, s%d" % (sTk + s, sLim))
        a("s_cbranch_scc0 L_switch_" + t)
        a("ds_max_u32 v%d, v%d" % (vPub, vRnd), "publish progress")
        a("ds_read_b32 v%d, v%d" % (vTk, vMaddr), "ticket of round k+NS")
        a("s_waitcnt vmcnt(%d)" % KW, "K tile")
        for j in range(2):
            for m in range(MG):
                a("v_mfma_f32_16x16x32_bf16 %s, %s, %s, %s" % (vr(vC + 4 * m), vr(Kreg(s, 2 * m + j)), vr(vQ + 4 * j), "0" if j == 0 else vr(vC + 4 * m)))
        a("s_waitcnt lgkmcnt(0)")
        a("v_readfirstlane_b32 s%d, v%d" % (sTk + s, vTk))
        a("s_cmp_eq_u32 s%d, -1" % (sTk + s))
        a("s_cbranch_scc1 L_poll_" + t)
        a.label("L_have_" + t)
        set_off(sTk + s)
        load_tile(Kreg, s, sK, vKoff)
        a("s_nop 3")
        a.c("score of key (4m + row) = sum over r of C[r] taken from quad lane r")
        for m in range(MG):
            a("v_mov_b32_dpp v%d, v%d quad_perm:[0,0,0,0] row_mask:0xf bank_mask:0xf" % (vS + m, vC + 4 * m))
        for r in range(1, 4):
            if MG < 4: a("s_nop 1")
            for m in range(MG):
                a("v_add_f32_dpp v%d, v%d, v%d quad_perm:[%d,%d,%d,%d] row_mask:0xf bank_mask:0xf" % (vS + m, vC + 4 * m + r, vS + m, r, r, r, r))
        if MG == 4:
            a("v_max3_f32 v%d, v%d, v%d, v%d" % (vT, vS, vS + 1, vS + 2)); a("v_max3_f32 v%d, v%d, v%d, v%d" % (vT, vT, vS + 3, vM))
        elif MG == 2: a("v_max3_f32 v%d, v%d, v%d, v%d" % (vT, vS, vS + 1, vM))
        else: a("v_max_f32 v%d, v%d, v%d" % (vT, vS, vM))
        xrow(vT, "v_max_f32")
        a("v_mov_b32 v%d, v%d" % (vM, vT), "running max")
        a("v_mul_f32 v%d, s%d, v%d" % (vT, sC, vT))
        a("v_sub_f32 v%d, v%d, v%d" % (vAl, vMc, vT))
        a("v_mov_b32 v%d, v%d" % (vMc, vT))
        a("v_exp_f32 v%d, v%d" % (vAl, vAl), "rescale factor")
        for m in range(MG): a("v_fma_f32 v%d, v%d, s%d, -v%d" % (vS + m, vS + m, sC, vMc))
        for m in range(MG): a("v_exp_f32 v%d, v%d" % (vS + m, vS + m))
        a("v_mul_f32 v%d, v%d, v%d" % (vL, vL, vAl))
        for i in range(8): a("v_mul_f32 v%d, v%d, v%d" % (vO + i, vO + i, vAl))
        for m in range(MG): a("v_add_f32 v%d, v%d, v%d" % (vL, vL, vS + m))
        for m in range(MG): a("v_cvt_pk_bf16_f32 v%d, v%d, v%d" % (vS + m, vS + m, vS + m))
        for m in range(MG):
            for r in range(4): a("v_and_b32 v%d, v%d, v%d" % (vC + 4 * m + r, vS + m, vMask + r))
        a("v_add_u32 v%d, 4, v%d" % (vMaddr, vMaddr))
        a("v_add_u32 v%d, 1, v%d" % (vRnd, vRnd))
        a("s_waitcnt vmcnt(%d)" % KW, "V tile")
        a("s_nop 1")
        for m in range(MG):
            for h in range(2):
                a("v_mfma_f32_16x16x32_bf16 %s, %s, %s, %s" % (vr(vO + 4 * h), vr(vC + 4 * m), vr(Vreg(s, 2 * m + h)), vr(vO + 4 * h)))
        load_tile(Vreg, s, sV, vVoff)
    a("s_branch L_loop_0")
    for s in range(NS):
        t = "%d" % s
        a.label("L_poll_" + t)
        if D: a("s_add_u32 s82, s82, 1")
        a("s_sleep 1")
        a("ds_read_b32 v%d, v%d" % (vTk, vMaddr))
        a("s_waitcnt lgkmcnt(0)")
        a("v_readfirstlane_b32 s%d, v%d" % (sTk + s, vTk))
        a("s_cmp_eq_u32 s%d, -1" % (sTk + s))
        a("s_cbranch_scc1 L_poll_" + t)
        a("s_branch L_have_" + t)
        a.label("L_switch_" + t)
        a("s_cmp_eq_u32 s%d, %d" % (sLim, NTICK))
        a("s_cbranch_scc1 L_epi", "past the second head: done")
        a("s_waitcnt vmcnt(%d)" % KW, "q of the second head has landed")
        a("s_nop 7")
        for i in range(8):
            a("v_mov_b32 v%d, v%d" % (vOA + i, vO + i)); a("v_mov_b32 v%d, 0" % (vO + i)); a("v_mov_b32 v%d, v%d" % (vQ + i, vQ2 + i))
        a("v_mov_b32 v%d, v%d" % (vMcA, vMc)); a("v_mov_b32 v%d, v%d" % (vLA, vL))
        a("v_mov_b32 v%d, %s" % (vM, NEG)); a("v_mov_b32 v%d, %s" % (vMc, NEG)); a("v_mov_b32 v%d, 0" % vL)
        a("s_mov_b32 s%d, %d" % (sLim, NTICK))
        a("s_branch L_loop_" + t)

    a.label("L_epi")
    if D: a("s_memrealtime s[56:57]")
    a("s_nop 7")
    xrow(vLA, "v_add_f32"); xrow(vL, "v_add_f32")
    a.c("accumulator lane(n, g) reg r holds O[h*128 + n*8 + (g&1)*4 + r]")
    a("v_and_b32 v%d, 15, v%d" % (vT, vLane)); a("v_lshlrev_b32 v%d, 5, v%d" % (vT, vT))
    a("v_bfe_u32 v%d, v%d, 4, 1" % (vT + 1, vLane)); a("v_lshl_add_u32 v%d, v%d, 4, v%d" % (vT, vT + 1, vT))
    a("s_lshl_b32 s%d, s%d, 10" % (sT0, sWave)); a("v_add_u32 v%d, s%d, v%d" % (vT, sT0, vT))
    a("ds_write_b128 v%d, %s" % (vT, vr(vOA))); a("ds_write_b128 v%d, %s offset:512" % (vT, vr(vOA + 4)))
    a("ds_write_b128 v%d, %s offset:%d" % (vT, vr(vO), W * 1024)); a("ds_write_b128 v%d, %s offset:%d" % (vT, vr(vO + 4), W * 1024 + 512))
    a("s_lshl_b32 s%d, s%d, 2" % (sT0, sWave)); a("v_mov_b32 v%d, s%d" % (vT + 2, sT0))
    for i, v in enumerate((vMcA, vLA, vMc, vL)):
        a("ds_write_b32 v%d, v%d offset:%d" % (vT + 2, v, ML + 64 * i))
    a("s_waitcnt vmcnt(0) lgkmcnt(0)")
    a("s_barrier")
    a("s_cmp_ge_u32 s%d, 2" % sWave)
    a("s_cbranch_scc1 L_fin")
    a.c("wave 0 merges the first head of the pair, wave 1 the second")
    vm, vl, vo = vBuf, vBuf + 16, vBuf + 32
    a("s_lshl_b32 s%d, s%d, 7" % (sT0, sWave)); a("v_mov_b32 v%d, s%d" % (vT, sT0))
    a("ds_read_b128 %s, v%d offset:%d" % (vr(vm), vT, ML)); a("ds_read_b128 %s, v%d offset:%d" % (vr(vl), vT, ML + 64))
    a("v_lshlrev_b32 v%d, 4, v%d" % (vT + 1, vLane))
    a("s_lshl_b32 s%d, s%d, 12" % (sT0, sWave)); a("v_add_u32 v%d, s%d, v%d" % (vT + 2, sT0, vT + 1))
    for i in range(4): a("ds_read_b128 %s, v%d offset:%d" % (vr(vo + 4 * i), vT + 2, i * 1024))
    a("s_lshl_b32 s%d, s2, 1" % sT0); a("s_add_u32 s%d, s%d, s%d" % (sT0, sT0, sWave)); a("s_mul_i32 s%d, s%d, %d" % (sT0, sT0, REC), "record = 2*wg + wave")
    a("s_lshl_b32 s%d, s%d, 1" % (sT2, sPair)); a("s_add_u32 s%d, s%d, s%d" % (sT2, sT2, sWave), "head")
    a("s_lshl_b32 s%d, s%d, 2" % (sT3, sWave)); a("s_add_u32 s%d, s%d, s%d" % (sT3, sT3, sCtl))
    a("s_add_u32 s%d, s%d, s%d" % (sAt, sPtr + 10, sT3)); a("s_addc_u32 s%d, s%d, 0" % (sAt + 1, sPtr + 11))
    a("s_waitcnt lgkmcnt(4)")
    a("v_max_f32 v%d, v%d, v%d" % (vMc, vm, vm + 1)); a("v_max3_f32 v%d, v%d, v%d, v%d" % (vMc, vMc, vm + 2, vm + 3))
    for i in range(4): a("v_sub_f32 v%d, v%d, v%d" % (vm + i, vm + i, vMc))
    for i in range(4): a("v_exp_f32 v%d, v%d" % (vm + i, vm + i))
    a("s_nop 0")
    a("v_mul_f32 v%d, v%d, v%d" % (vL, vm, vl))
    for i in range(1, 4): a("v_fmac_f32 v%d, v%d, v%d" % (vL, vm + i, vl + i))
    for i in range(4):
        a("s_waitcnt lgkmcnt(%d)" % (3 - i))
        for r in range(4):
            a(("v_mul_f32 v%d, v%d, v%d" if i == 0 else "v_fmac_f32 v%d, v%d, v%d") % (vO + r, vm + i, vo + 4 * i + r))
    a("v_mov_b32 v%d, v%d" % (vT + 2, vMc)); a("v_mov_b32 v%d, v%d" % (vT + 3, vL))
    a("buffer_store_dwordx4 %s, v%d, %s, s%d offen sc0 sc1" % (vr(vO), vT + 1, sr(sW), sT0))
    a("s_mov_b64 exec, 1")
    a("buffer_store_dwordx2 %s, v%d, %s, s%d offen offset:1024 sc0 sc1" % (vr(vT + 2, 2), vZero, sr(sW), sT0))
    a("s_mov_b32 s%d, 1" % sT1)
    a("s_waitcnt vmcnt(0)", "record written through before it is counted")
    a("s_atomic_add s%d, %s, 0x4 glc" % (sT1, sr(sAt, 2)))
    a("s_mov_b64 exec, -1")
    a("s_lshl_b32 s%d, s%d, 4" % (sT0, sPair)); a("s_add_u32 s%d, s%d, s%d" % (sT0, sT0, sWave)); a("s_mul_i32 s%d, s%d, %d" % (sT0, sT0, REC))
    a("s_waitcnt lgkmcnt(0)")
    a("s_cmp_lg_u32 s%d, %d" % (sT1, S - 1))
    a("s_cbranch_scc1 L_fin")
    a.c("last arriver of this head: merge the group's 8 records and write the output row")
    vml, vo2 = vBuf, vBuf + 32
    for i in range(S):
        a("s_add_u32 s%d, s%d, %d" % (sT1, sT0, i * 2 * REC))
        a("buffer_load_dwordx2 %s, v%d, %s, s%d offen offset:1024 sc0 sc1" % (vr(vml + 2 * i, 2), vZero, sr(sW), sT1))
    for i in range(S):
        a("s_add_u32 s%d, s%d, %d" % (sT1, sT0, i * 2 * REC))
        a("buffer_load_dwordx4 %s, v%d, %s, s%d offen sc0 sc1" % (vr(vo2 + 4 * i), vT + 1, sr(sW), sT1))
    a("s_waitcnt vmcnt(%d)" % S)
    a("v_max3_f32 v%d, v%d, v%d, v%d" % (vMc, vml, vml + 2, vml + 4))
    a("v_max3_f32 v%d, v%d, v%d, v%d" % (vMc, vMc, vml + 6, vml + 8))
    a("v_max3_f32 v%d, v%d, v%d, v%d" % (vMc, vMc, vml + 10, vml + 12))
    a("v_max_f32 v%d, v%d, v%d" % (vMc, vMc, vml + 14))
    for i in range(S): a("v_sub_f32 v%d, v%d, v%d" % (vml + 2 * i, vml + 2 * i, vMc))
    for i in range(S): a("v_exp_f32 v%d, v%d" % (vml + 2 * i, vml + 2 * i))
    a("s_nop 0")
    a("v_mul_f32 v%d, v%d, v%d" % (vL, vml, vml + 1))
    for i in range(1, S): a("v_fmac_f32 v%d, v%d, v%d" % (vL, vml + 2 * i, vml + 2 * i + 1))
    a("v_rcp_f32 v%d, v%d" % (vL, vL))
    for i in range(S):
        a("s_waitcnt vmcnt(%d)" % (S - 1 - i))
        for r in range(4):
            a(("v_mul_f32 v%d, v%d, v%d" if i == 0 else "v_fmac_f32 v%d, v%d, v%d") % (vO + r, vml + 2 * i, vo2 + 4 * i + r))
    for r in range(4): a("v_mul_f32 v%d, v%d, v%d" % (vO + r, vO + r, vL))
    a("v_cvt_pk_bf16_f32 v%d, v%d, v%d" % (vO, vO, vO + 1)); a("v_cvt_pk_bf16_f32 v%d, v%d, v%d" % (vO + 1, vO + 2, vO + 3))
    a("v_lshlrev_b32 v%d, 3, v%d" % (vT + 1, vLane)); a("s_lshl_b32 s%d, s%d, 9" % (sT0, sT2))
    a("buffer_store_dwordx2 %s, v%d, %s, s%d offen" % (vr(vO, 2), vT + 1, sr(sO), sT0))
    a.label("L_fin")
    if D:
        a("s_waitcnt vmcnt(0)"); a("s_memrealtime s[58:59]"); a("s_waitcnt lgkmcnt(0)")
        a("s_add_u32 s60, s%d, 0x40000000" % (sPtr + 10)); a("s_addc_u32 s61, s%d, 0" % (sPtr + 11)); a("s_and_b32 s61, s61, 0xffff")
        a("s_mov_b32 s62, 0x1000000"); a("s_mov_b32 s63, 0x00020000")
        a("s_mul_i32 s28, s2, %d" % W); a("s_add_u32 s28, s28, s%d" % sWave); a("s_lshl_b32 s28, s28, 5"); a("s_mov_b64 exec, 1")
        for i, r in enumerate((52, 54, 56, 58)): a("v_mov_b32 v%d, s%d" % (4 + i, r))
        a("s_getreg_b32 s29, hwreg(HW_REG_XCC_ID)"); a("v_mov_b32 v8, s29"); a("s_getreg_b32 s29, hwreg(HW_REG_HW_ID)"); a("v_mov_b32 v9, s29")
        a("v_mov_b32 v10, s82"); a("v_mov_b32 v12, 0")
        a("v_subrev_u32 v11, %d, v%d" % (MBOX + 4 * NS - (W * 1024 + 128 + 4), vMaddr))
        a("buffer_store_dwordx4 v[4:7], v12, s[60:63], s28 offen"); a("buffer_store_dwordx4 v[8:11], v12, s[60:63], s28 offen offset:16")
    a.label("L_done")
    a("s_endpgm")

    a.label("L_helper")
    a("s_setprio 3")
    a.c("mailbox: M[k] = j*R0 + k for the static rounds, EMPTY (-1) after them; progress word = 0")
    for i in range(4): a("v_mov_b32 v%d, -1" % (vT + i))
    a("v_lshlrev_b32 v%d, 4, v%d" % (vT + 4, vLane))
    for i in range(MBN * 4 // 1024): a("ds_write_b128 v%d, %s offset:%d" % (vT + 4, vr(vT), MBOX + 1024 * i))
    a("v_add_u32 v%d, s%d, v%d" % (vT, sJ0, vLane)); a("v_lshlrev_b32 v%d, 2, v%d" % (vT + 1, vLane))
    for b in range(0, R0, 64):
        part = R0 - b < 64
        if part:
            a("v_cmp_gt_u32 vcc, %d, v%d" % (R0 - b, vLane)); a("s_and_saveexec_b64 %s, vcc" % sr(sSave, 2))
        a("ds_write_b32 v%d, v%d offset:%d" % (vT + 1, vT, MBOX + 4 * b))
        if part: a("s_mov_b64 exec, %s" % sr(sSave, 2))
        else: a("v_add_u32 v%d, 64, v%d" % (vT, vT))
    a("ds_write_b32 v%d, v%d offset:%d" % (vZero, vZero, PADDR))
    a("v_mov_b32 v%d, %d" % (vPub, PADDR))
    a("s_waitcnt lgkmcnt(0)")
    a("s_barrier")
    srd(sW, sPtr + 10, 0x200000)
    srd(sD, sPtr + 8, 256)
    a("s_add_u32 s%d, s%d, s%d" % (sAt, sPtr + 10, sCtl)); a("s_addc_u32 s%d, s%d, 0" % (sAt + 1, sPtr + 11))
    a("s_mov_b32 s%d, %d" % (sNx, R0), "next mailbox slot to fill")
    a("s_mov_b32 s%d, 0" % sLast, "pool counter as last seen")
    a("s_mov_b64 exec, 1")
    a("s_lshl_b32 s%d, s%d, 2" % (sT2, sPair)); a("s_add_u32 s%d, s%d, 128" % (sT2, sT2), "flag word of the group in d_debug")
    a("s_cmp_lg_u32 s%d, 0" % sJ)
    a("s_cbranch_scc1 L_h_w0")
    a.c("member 0 clears the group's control line (pool counter, two completion counters), then raises the flag")
    for i in range(4): a("v_mov_b32 v%d, 0" % (vT + i))
    a("buffer_store_dwordx4 %s, v%d, %s, s%d offen sc0 sc1" % (vr(vT), vZero, sr(sW), sCtl))
    a("s_waitcnt vmcnt(0)")
    a("v_mov_b32 v%d, 1" % vT)
    a("buffer_store_dword v%d, v%d, %s, s%d offen sc0 sc1" % (vT, vZero, sr(sD), sT2))
    a("s_waitcnt vmcnt(0)")
    a.label("L_h_w0")
    a("ds_read_b32 v%d, v%d" % (vT, vPub)); a("s_waitcnt lgkmcnt(0)")
    a("v_readfirstlane_b32 s%d, v%d" % (sPg, vT))
    a("s_add_u32 s%d, s%d, %d" % (sPg, sPg, NS + LA + 2))
    a("s_cmp_le_u32 s%d, s%d" % (sNx, sPg))
    a("s_cbranch_scc1 L_h_flag")
    a("s_sleep 16", "workers are still far from the end of their static rounds")
    a("s_branch L_h_w0")
    a.label("L_h_flag")
    a("buffer_load_dword v%d, v%d, %s, s%d offen sc0 sc1" % (vT, vZero, sr(sD), sT2)); a("s_waitcnt vmcnt(0)")
    a("v_readfirstlane_b32 s%d, v%d" % (sPg, vT))
    a("s_cmp_lg_u32 s%d, 0" % sPg)
    a("s_cbranch_scc1 L_h_loop")
    a("s_sleep 4")
    a("s_branch L_h_flag")
    a.label("L_h_loop")
    a("ds_read_b32 v%d, v%d" % (vT, vPub)); a("s_waitcnt lgkmcnt(0)")
    a("v_readfirstlane_b32 s%d, v%d" % (sPg, vT))
    a("s_add_u32 s%d, s%d, %d" % (sPg, sPg, NS + LA))
    a("s_cmp_le_u32 s%d, s%d" % (sNx, sPg))
    a("s_cbranch_scc1 L_h_go")
    a("s_sleep 1")
    a("s_branch L_h_loop")
    a.label("L_h_go")
    a("s_sub_i32 s%d, %d, s%d" % (sN, POOL, sLast), "batch = clamp(remaining >> %d, 1, %d)" % (P.gdiv, P.nmax))
    a("s_ashr_i32 s%d, s%d, %d" % (sN, sN, P.gdiv))
    a("s_max_i32 s%d, s%d, 1" % (sN, sN)); a("s_min_i32 s%d, s%d, %d" % (sN, sN, P.nmax))
    a("s_mov_b32 s%d, s%d" % (sLast, sN))
    a("s_atomic_add s%d, %s, 0x0 glc" % (sLast, sr(sAt, 2)))
    a("s_lshl_b32 s%d, s%d, 2" % (sT0, sNx)); a("s_add_u32 s%d, s%d, %d" % (sT0, sT0, MBOX))
    a("s_add_u32 s%d, s%d, s%d" % (sNx, sNx, sN))
    a("s_lshl_b32 s%d, 1, s%d" % (sT1, sN)); a("s_sub_u32 s%d, s%d, 1" % (sT1, sT1))
    a("s_waitcnt lgkmcnt(0)")
    a("s_mov_b32 exec_lo, s%d" % sT1, "lanes 0..n-1 publish one ticket each")
    a("s_add_u32 s%d, s%d, %d" % (sT1, sLast, BASE))
    a("s_add_u32 s%d, s%d, s%d" % (sLast, sLast, sN))
    a("v_add_u32 v%d, s%d, v%d" % (vT + 1, sT1, vLane))
    a("v_lshlrev_b32 v%d, 2, v%d" % (vT + 2, vLane)); a("v_add_u32 v%d, s%d, v%d" % (vT + 2, sT0, vT + 2))
    a("ds_write_b32 v%d, v%d" % (vT + 2, vT + 1))
    a("s_mov_b64 exec, 1")
    a("s_cmp_lt_u32 s%d, %d" % (sLast, POOL))
    a("s_cbranch_scc1 L_h_loop")
    a.c("pool exhausted: the next slots read as 'no more work'")
    a("s_mov_b64 exec, 0xff")
    a("s_lshl_b32 s%d, s%d, 2" % (sT0, sNx)); a("s_add_u32 s%d, s%d, %d" % (sT0, sT0, MBOX))
    a("v_lshlrev_b32 v%d, 2, v%d" % (vT, vLane)); a("v_add_u32 v%d, s%d, v%d" % (vT, sT0, vT))
    a("v_mov_b32 v%d, %d" % (vT + 1, NTICK))
    a("ds_write_b32 v%d, v%d" % (vT, vT + 1))
    a("s_waitcnt lgkmcnt(0)")
    a("s_endpgm")

    lds = max(MBOX + MBN * 4, P.lds)
    out = HEADER + "; @launch grid=(%d,1,1) block=(%d,1,1) lds=%d\n" % (NWG, (W + 1) * 64, lds)
    out += DOC.format(CK=CK, TK=TK, R0m1=R0 - 1)
    out += '.amdgcn_target "amdgcn-amd-amdhsa--gfx950"\n.text\n'
    out += ".globl %s_kernel\n.p2align 8\n.type %s_kernel,@function\n%s_kernel:\n" % (NAME, NAME, NAME)
    out += a.text()
    out += '.section .rodata,"a"\n.p2align 6\n.amdhsa_kernel %s_kernel\n' % NAME
    out += "  .amdhsa_next_free_vgpr %d\n  .amdhsa_next_free_sgpr 84\n  .amdhsa_accum_offset %d\n" % (nv, (nv + 3) // 4 * 4)
    out += "  .amdhsa_group_segment_fixed_size 0\n  .amdhsa_kernarg_size 48\n  .amdhsa_user_sgpr_count 2\n"
    out += "  .amdhsa_user_sgpr_kernarg_segment_ptr 1\n  .amdhsa_system_sgpr_workgroup_id_x 1\n.end_amdhsa_kernel\n"
    return out

if __name__ == "__main__":
    ap = argparse.ArgumentParser()
    ap.add_argument("--mg", type=int, default=2); ap.add_argument("--stages", type=int, default=2)
    ap.add_argument("--r0", type=int, default=96); ap.add_argument("--la", type=int, default=1)
    ap.add_argument("--gdiv", type=int, default=5); ap.add_argument("--nmax", type=int, default=8)
    ap.add_argument("--lds", type=int, default=98304); ap.add_argument("--diag", type=int, default=0)
    ap.add_argument("-o", default="-")
    P = ap.parse_args(); t = gen(P)
    (sys.stdout if P.o == "-" else open(P.o, "w")).write(t)
```

```python
import argparse, struct, sys

NAME = "standalone__softmax_full_bidir__decode"
NH, SKV, DH = 64, 16384, 256
ROWB = DH * 2
HEADB = SKV * ROWB
LOG2E = 1.4426950408889634

HEADER = """; Kernarg layout for this problem (48 bytes, ptrs only, base s[0:1]):
"""

DOC = """;
;  - a round = {CK} keys ({TK} per worker wave); rounds 0..{R0m1} of a workgroup are static and contiguous,
"""

def f32hex(x):
    return "0x%08x" % struct.unpack("<I", struct.pack("<f", x))[0]

class A:
    def __init__(self): self.l = []
    def __call__(self, s, c=None):
        self.l.append("    " + s + ("" if c is None else (" " * max(1, 64 - len(s)) + "; " + c)))
    def label(self, s): self.l.append(s + ":")
    def c(self, s): self.l.append("    ; " + s)
    def text(self): return "\n".join(self.l) + "\n"

def vr(a, n=4): return "v[%d:%d]" % (a, a + n - 1)
def sr(a, n=4): return "s[%d:%d]" % (a, a + n - 1)

def gen(P):
    W, S = 4, 8
    NWG = (NH // 2) * S
    MG, NS, R0, LA = P.mg, P.stages, P.r0, P.la
    TK = 4 * MG; TB = TK * ROWB; CK = W * TK; CB = CK * ROWB
    assert SKV % CK == 0
    NTH = SKV // CK; NTICK = 2 * NTH
    NL = 2 * MG
    BASE = R0 * S; POOL = NTICK - BASE
    assert NS <= R0 and POOL > 0 and P.nmax <= 8
    REC = 1024 + 128
    CTRL = 0x100000
    ML = 2 * W * 1024
    MBOX = ML + 256
    PADDR = MBOX - 4
    MBN = (R0 + POOL + NS + 16 + 255) // 256 * 256
    NEG = "0xff7fffff"
    pol = " " + P.policy
    KW = NL + (NS - 1) * 2 * NL
    D = P.diag

    a = A()
    sK, sV, sQ, sW, sO, sD = 4, 8, 12, 16, 44, 48
    sOff, sOff2, sLim, sPair, sJ, sWave, sC, sWOff = 20, 21, 22, 23, 24, 25, 26, 27
    sT0, sT1, sT2, sT3 = 28, 29, 30, 31
    sPtr = 32
    sTk = 64
    sCtl, sJ0 = 70, 71
    sNx, sPg, sN, sLast = 72, 73, 74, 75
    sSave = 76
    sAt = 78
    vKoff, vVoff, vLane = 1, 2, 3
    vQ, vMask = 4, 12
    vM, vL, vMc, vAl = 16, 17, 18, 19
    vO, vC, vS, vT = 20, 28, 44, 48
    vTk, vMaddr, vPub, vZero, vRnd = 54, 55, 56, 57, 58
    vQ2, vOA, vMcA, vLA = 64, 72, 80, 81
    vBuf = 84
    Kreg = lambda s, i: vBuf + s * 8 * NL + 4 * i
    Vreg = lambda s, i: vBuf + s * 8 * NL + 4 * NL + 4 * i
    nv = max(vBuf + NS * 8 * NL, vBuf + 64)
    assert MG <= 4 and NS <= 4 and nv <= 256

    def load_tile(fn, s, srd, voff):
        for m in range(MG):
            for j in range(2):
                off, so = m * 2048 + j * 256, sOff
                if off >= 4096: off, so = off - 4096, sOff2
                a("buffer_load_dwordx4 %s, v%d, %s, s%d offen offset:%d%s" % (vr(fn(s, 2 * m + j)), voff, sr(srd), so, off, pol))
    def set_off(src):
        a("s_mul_i32 s%d, s%d, %d" % (sOff, src, CB), "byte offset of this wave's tile = ticket*CB + wave*TB")
        a("s_add_u32 s%d, s%d, s%d" % (sOff, sOff, sWOff))
        if MG > 2: a("s_add_u32 s%d, s%d, 4096" % (sOff2, sOff))
    def srd(dst, lo, size):
        a("s_mov_b32 s%d, s%d" % (dst, lo)); a("s_and_b32 s%d, s%d, 0xffff" % (dst + 1, lo + 1))
        a("s_mov_b32 s%d, %d" % (dst + 2, size)); a("s_mov_b32 s%d, 0x00020000" % (dst + 3))
    def xrow(v, op):
        for sw in ("v_permlane16_swap_b32", "v_permlane32_swap_b32"):
            a("v_mov_b32 v%d, v%d" % (vT + 1, v)); a("s_nop 1")
            a("%s v%d, v%d" % (sw, v, vT + 1)); a("s_nop 1")
            a("%s v%d, v%d, v%d" % (op, v, v, vT + 1))

    if D: a("s_memrealtime s[52:53]"); a("s_mov_b32 s82, 0")
    a("s_cmp_ge_u32 s2, %d" % NWG, "workgroups past the data leave at once")
    a("s_cbranch_scc1 L_done")
    a("s_load_dwordx4 %s, s[0:1], 0" % sr(sPtr), "q, k")
    a("s_load_dwordx4 %s, s[0:1], 16" % sr(sPtr + 4), "v, out")
    a("s_load_dwordx4 %s, s[0:1], 32" % sr(sPtr + 8), "debug, ws")
    a("v_and_b32 v%d, 63, v0" % vLane)
    a("v_lshrrev_b32 v%d, 6, v0" % vT)
    a("v_lshrrev_b32 v%d, 4, v%d" % (vT + 1, vLane), "g = lane>>4")
    a("v_readfirstlane_b32 s%d, v%d" % (sWave, vT))
    a("s_lshr_b32 s%d, s2, 3" % sPair, "group = head pair")
    a("s_and_b32 s%d, s2, 7" % sJ, "member of the group")
    a.c("K fragment (A operand): lane(i=4*key+p, g) reads key row 'key', 16 bytes at g*64 + p*16 (+256 for the 2nd half)")
    a("v_bfe_u32 v%d, v%d, 2, 2" % (vT + 2, vLane))
    a("v_lshlrev_b32 v%d, 9, v%d" % (vT + 2, vT + 2))
    a("v_lshl_add_u32 v%d, v%d, 6, v%d" % (vT + 2, vT + 1, vT + 2))
    a("v_and_b32 v%d, 3, v%d" % (vT + 3, vLane))
    a("v_lshl_add_u32 v%d, v%d, 4, v%d" % (vKoff, vT + 3, vT + 2))
    a.c("V fragment (B operand): lane(j, g) reads key row g, 16 bytes at j*16 (+256 for the 2nd half)")
    a("v_and_b32 v%d, 15, v%d" % (vT + 4, vLane))
    a("v_lshlrev_b32 v%d, 4, v%d" % (vT + 4, vT + 4))
    a("v_lshl_add_u32 v%d, v%d, 9, v%d" % (vVoff, vT + 1, vT + 4))
    a.c("q fragment (B operand): lane(n, g) holds the q chunk that matches K chunk g*64 + (n&3)*16")
    a("v_lshlrev_b32 v%d, 4, v%d" % (vT + 3, vT + 3))
    a("v_lshl_add_u32 v%d, v%d, 6, v%d" % (vT + 5, vT + 1, vT + 3))
    a("v_mov_b32 v%d, 0" % vZero)
    a("s_lshr_b32 s%d, s%d, 8" % (sT1, sPair))
    a("s_lshl_b32 s%d, s%d, 24" % (sT0, sPair), "pair * 16 MiB")
    a("s_mul_i32 s%d, s%d, %d" % (sWOff, sWave, TB))
    a("s_mul_i32 s%d, s%d, %d" % (sJ0, sJ, R0), "first static ticket")
    for s in range(NS): a("s_add_u32 s%d, s%d, %d" % (sTk + s, sJ0, s))
    set_off(sTk)
    a("s_lshl_b32 s%d, s%d, 8" % (sCtl, sPair))
    a("s_add_u32 s%d, s%d, 0x%x" % (sCtl, sCtl, CTRL), "control line of the group (offset in d_ws)")
    a("s_cmp_eq_u32 s%d, %d" % (sWave, W))
    a("s_waitcnt lgkmcnt(0)")
    a("s_cbranch_scc1 L_helper")
    for (d, p) in ((sK, sPtr + 2), (sV, sPtr + 4)):
        a("s_add_u32 s%d, s%d, s%d" % (d, p, sT0)); a("s_addc_u32 s%d, s%d, s%d" % (d + 1, p + 1, sT1))
        if P.vshift and d == sV:
            a("s_add_u32 s%d, s%d, %d" % (d, d, P.vshift)); a("s_addc_u32 s%d, s%d, 0" % (d + 1, d + 1))
        a("s_and_b32 s%d, s%d, 0xffff" % (d + 1, d + 1))
        a("s_mov_b32 s%d, %d" % (d + 2, 2 * HEADB - (P.vshift if d == sV else 0)), "tickets past the pair's range read nothing")
        a("s_mov_b32 s%d, 0x00020000" % (d + 3))
    load_tile(Kreg, 0, sK, vKoff)
    srd(sQ, sPtr, NH * ROWB)
    a("s_lshl_b32 s%d, s%d, 10" % (sT0, sPair))
    for i, dst in enumerate((vQ, vQ + 4, vQ2, vQ2 + 4)):
        a("buffer_load_dwordx4 %s, v%d, %s, s%d offen offset:%d" % (vr(dst), vT + 5, sr(sQ), sT0, 256 * i))
    load_tile(Vreg, 0, sV, vVoff)
    for s in range(1, NS):
        set_off(sTk + s); load_tile(Kreg, s, sK, vKoff); load_tile(Vreg, s, sV, vVoff)
    srd(sW, sPtr + 10, 0x200000)
    srd(sO, sPtr + 6, NH * ROWB)
    a.c("P operand masks: element e=(lane&7) of the 8-wide k slab is the only live one")
    a("v_and_b32 v%d, 1, v%d" % (vT, vLane))
    a("v_lshlrev_b32 v%d, 4, v%d" % (vT, vT))
    a("v_mov_b32 v%d, 0xffff" % (vT + 1))
    a("v_lshlrev_b32 v%d, v%d, v%d" % (vT, vT, vT + 1))
    a("v_bfe_u32 v%d, v%d, 1, 2" % (vT + 1, vLane))
    for r in range(4):
        a("v_cmp_eq_u32 vcc, %d, v%d" % (r, vT + 1)); a("s_nop 1")
        a("v_cndmask_b32 v%d, 0, v%d, vcc" % (vMask + r, vT))
    a("v_mov_b32 v%d, %s" % (vM, NEG)); a("v_mov_b32 v%d, %s" % (vMc, NEG)); a("v_mov_b32 v%d, 0" % vL)
    for i in range(8): a("v_mov_b32 v%d, 0" % (vO + i))
    a("s_mov_b32 s%d, %s" % (sC, f32hex(LOG2E / 16.0)), "log2(e) / sqrt(256)")
    a("s_mov_b32 s%d, %d" % (sLim, NTH), "tickets below this belong to the first head")
    a("v_mov_b32 v%d, %d" % (vMaddr, MBOX + 4 * NS))
    a("v_mov_b32 v%d, %d" % (vPub, PADDR))
    a("v_mov_b32 v%d, 0" % vRnd)
    a("s_barrier", "mailbox initialised by the ticket wave")
    if D: a("s_waitcnt vmcnt(%d)" % KW); a("s_memrealtime s[54:55]")

    for s in range(NS):
        t = "%d" % s
        a.label("L_loop_" + t)
        a("s_cmp_lt_u32 s%d, s%d" % (sTk + s, sLim))
        a("s_cbranch_scc0 L_switch_" + t)
        a("ds_max_u32 v%d, v%d" % (vPub, vRnd), "publish progress")
        a("ds_read_b32 v%d, v%d" % (vTk, vMaddr), "ticket of round k+NS")
        a("s_waitcnt vmcnt(%d)" % KW, "K tile")
        for j in range(2):
            for m in range(MG):
                a("v_mfma_f32_16x16x32_bf16 %s, %s, %s, %s" % (vr(vC + 4 * m), vr(Kreg(s, 2 * m + j)), vr(vQ + 4 * j), "0" if j == 0 else vr(vC + 4 * m)))
        a("s_waitcnt lgkmcnt(0)")
        a("v_readfirstlane_b32 s%d, v%d" % (sTk + s, vTk))
        a("s_cmp_eq_u32 s%d, -1" % (sTk + s))
        a("s_cbranch_scc1 L_poll_" + t)
        a.label("L_have_" + t)
        set_off(sTk + s)
        load_tile(Kreg, s, sK, vKoff)
        a("s_nop 3")
        a.c("score of key (4m + row) = sum over r of C[r] taken from quad lane r")
        for m in range(MG):
            a("v_mov_b32_dpp v%d, v%d quad_perm:[0,0,0,0] row_mask:0xf bank_mask:0xf" % (vS + m, vC + 4 * m))
        for r in range(1, 4):
            if MG < 4: a("s_nop 1")
            for m in range(MG):
                a("v_add_f32_dpp v%d, v%d, v%d quad_perm:[%d,%d,%d,%d] row_mask:0xf bank_mask:0xf" % (vS + m, vC + 4 * m + r, vS + m, r, r, r, r))
        if MG == 4:
            a("v_max3_f32 v%d, v%d, v%d, v%d" % (vT, vS, vS + 1, vS + 2)); a("v_max3_f32 v%d, v%d, v%d, v%d" % (vT, vT, vS + 3, vM))
        elif MG == 2: a("v_max3_f32 v%d, v%d, v%d, v%d" % (vT, vS, vS + 1, vM))
        else: a("v_max_f32 v%d, v%d, v%d" % (vT, vS, vM))
        xrow(vT, "v_max_f32")
        a("v_mov_b32 v%d, v%d" % (vM, vT), "running max")
        a("v_mul_f32 v%d, s%d, v%d" % (vT, sC, vT))
        a("v_sub_f32 v%d, v%d, v%d" % (vAl, vMc, vT))
        a("v_mov_b32 v%d, v%d" % (vMc, vT))
        a("v_exp_f32 v%d, v%d" % (vAl, vAl), "rescale factor")
        for m in range(MG): a("v_fma_f32 v%d, v%d, s%d, -v%d" % (vS + m, vS + m, sC, vMc))
        for m in range(MG): a("v_exp_f32 v%d, v%d" % (vS + m, vS + m))
        a("v_mul_f32 v%d, v%d, v%d" % (vL, vL, vAl))
        for i in range(8): a("v_mul_f32 v%d, v%d, v%d" % (vO + i, vO + i, vAl))
        for m in range(MG): a("v_add_f32 v%d, v%d, v%d" % (vL, vL, vS + m))
        for m in range(MG): a("v_cvt_pk_bf16_f32 v%d, v%d, v%d" % (vS + m, vS + m, vS + m))
        for m in range(MG):
            for r in range(4): a("v_and_b32 v%d, v%d, v%d" % (vC + 4 * m + r, vS + m, vMask + r))
        a("v_add_u32 v%d, 4, v%d" % (vMaddr, vMaddr))
        a("v_add_u32 v%d, 1, v%d" % (vRnd, vRnd))
        a("s_waitcnt vmcnt(%d)" % KW, "V tile")
        a("s_nop 1")
        for m in range(MG):
            for h in range(2):
                a("v_mfma_f32_16x16x32_bf16 %s, %s, %s, %s" % (vr(vO + 4 * h), vr(vC + 4 * m), vr(Vreg(s, 2 * m + h)), vr(vO + 4 * h)))
        load_tile(Vreg, s, sV, vVoff)
    a("s_branch L_loop_0")
    for s in range(NS):
        t = "%d" % s
        a.label("L_poll_" + t)
        if D: a("s_add_u32 s82, s82, 1")
        a("s_sleep 1")
        a("ds_read_b32 v%d, v%d" % (vTk, vMaddr))
        a("s_waitcnt lgkmcnt(0)")
        a("v_readfirstlane_b32 s%d, v%d" % (sTk + s, vTk))
        a("s_cmp_eq_u32 s%d, -1" % (sTk + s))
        a("s_cbranch_scc1 L_poll_" + t)
        a("s_branch L_have_" + t)
        a.label("L_switch_" + t)
        a("s_cmp_eq_u32 s%d, %d" % (sLim, NTICK))
        a("s_cbranch_scc1 L_epi", "past the second head: done")
        a("s_waitcnt vmcnt(%d)" % KW, "q of the second head has landed")
        a("s_nop 7")
        for i in range(8):
            a("v_mov_b32 v%d, v%d" % (vOA + i, vO + i)); a("v_mov_b32 v%d, 0" % (vO + i)); a("v_mov_b32 v%d, v%d" % (vQ + i, vQ2 + i))
        a("v_mov_b32 v%d, v%d" % (vMcA, vMc)); a("v_mov_b32 v%d, v%d" % (vLA, vL))
        a("v_mov_b32 v%d, %s" % (vM, NEG)); a("v_mov_b32 v%d, %s" % (vMc, NEG)); a("v_mov_b32 v%d, 0" % vL)
        a("s_mov_b32 s%d, %d" % (sLim, NTICK))
        a("s_branch L_loop_" + t)

    a.label("L_epi")
    if D: a("s_memrealtime s[56:57]")
    a("s_nop 7")
    xrow(vLA, "v_add_f32"); xrow(vL, "v_add_f32")
    a.c("accumulator lane(n, g) reg r holds O[h*128 + n*8 + (g&1)*4 + r]")
    a("v_and_b32 v%d, 15, v%d" % (vT, vLane)); a("v_lshlrev_b32 v%d, 5, v%d" % (vT, vT))
    a("v_bfe_u32 v%d, v%d, 4, 1" % (vT + 1, vLane)); a("v_lshl_add_u32 v%d, v%d, 4, v%d" % (vT, vT + 1, vT))
    a("s_lshl_b32 s%d, s%d, 10" % (sT0, sWave)); a("v_add_u32 v%d, s%d, v%d" % (vT, sT0, vT))
    a("ds_write_b128 v%d, %s" % (vT, vr(vOA))); a("ds_write_b128 v%d, %s offset:512" % (vT, vr(vOA + 4)))
    a("ds_write_b128 v%d, %s offset:%d" % (vT, vr(vO), W * 1024)); a("ds_write_b128 v%d, %s offset:%d" % (vT, vr(vO + 4), W * 1024 + 512))
    a("s_lshl_b32 s%d, s%d, 2" % (sT0, sWave)); a("v_mov_b32 v%d, s%d" % (vT + 2, sT0))
    for i, v in enumerate((vMcA, vLA, vMc, vL)):
        a("ds_write_b32 v%d, v%d offset:%d" % (vT + 2, v, ML + 64 * i))
    a("s_waitcnt vmcnt(0) lgkmcnt(0)")
    a("s_barrier")
    if D == 2:
        a("s_memrealtime s[84:85]"); a("s_mov_b64 s[86:87], 0"); a("s_mov_b64 s[88:89], 0"); a("s_mov_b64 s[90:91], 0")
    a("s_cmp_ge_u32 s%d, 2" % sWave)
    a("s_cbranch_scc1 L_fin")
    a.c("wave 0 merges the first head of the pair, wave 1 the second")
    vm, vl, vo = vBuf, vBuf + 16, vBuf + 32
    a("s_lshl_b32 s%d, s%d, 7" % (sT0, sWave)); a("v_mov_b32 v%d, s%d" % (vT, sT0))
    a("ds_read_b128 %s, v%d offset:%d" % (vr(vm), vT, ML)); a("ds_read_b128 %s, v%d offset:%d" % (vr(vl), vT, ML + 64))
    a("v_lshlrev_b32 v%d, 4, v%d" % (vT + 1, vLane))
    a("s_lshl_b32 s%d, s%d, 12" % (sT0, sWave)); a("v_add_u32 v%d, s%d, v%d" % (vT + 2, sT0, vT + 1))
    for i in range(4): a("ds_read_b128 %s, v%d offset:%d" % (vr(vo + 4 * i), vT + 2, i * 1024))
    a("s_lshl_b32 s%d, s2, 1" % sT0); a("s_add_u32 s%d, s%d, s%d" % (sT0, sT0, sWave)); a("s_mul_i32 s%d, s%d, %d" % (sT0, sT0, REC), "record = 2*wg + wave")
    a("s_lshl_b32 s%d, s%d, 1" % (sT2, sPair)); a("s_add_u32 s%d, s%d, s%d" % (sT2, sT2, sWave), "head")
    a("s_lshl_b32 s%d, s%d, 2" % (sT3, sWave)); a("s_add_u32 s%d, s%d, s%d" % (sT3, sT3, sCtl))
    a("s_add_u32 s%d, s%d, s%d" % (sAt, sPtr + 10, sT3)); a("s_addc_u32 s%d, s%d, 0" % (sAt + 1, sPtr + 11))
    a("s_waitcnt lgkmcnt(4)")
    a("v_max_f32 v%d, v%d, v%d" % (vMc, vm, vm + 1)); a("v_max3_f32 v%d, v%d, v%d, v%d" % (vMc, vMc, vm + 2, vm + 3))
    for i in range(4): a("v_sub_f32 v%d, v%d, v%d" % (vm + i, vm + i, vMc))
    for i in range(4): a("v_exp_f32 v%d, v%d" % (vm + i, vm + i))
    a("s_nop 0")
    a("v_mul_f32 v%d, v%d, v%d" % (vL, vm, vl))
    for i in range(1, 4): a("v_fmac_f32 v%d, v%d, v%d" % (vL, vm + i, vl + i))
    for i in range(4):
        a("s_waitcnt lgkmcnt(%d)" % (3 - i))
        for r in range(4):
            a(("v_mul_f32 v%d, v%d, v%d" if i == 0 else "v_fmac_f32 v%d, v%d, v%d") % (vO + r, vm + i, vo + 4 * i + r))
    a("v_mov_b32 v%d, v%d" % (vT + 2, vMc)); a("v_mov_b32 v%d, v%d" % (vT + 3, vL))
    a("buffer_store_dwordx4 %s, v%d, %s, s%d offen sc0 sc1" % (vr(vO), vT + 1, sr(sW), sT0))
    a("s_mov_b64 exec, 1")
    a("buffer_store_dwordx2 %s, v%d, %s, s%d offen offset:1024 sc0 sc1" % (vr(vT + 2, 2), vZero, sr(sW), sT0))
    a("s_mov_b32 s%d, 1" % sT1)
    a("s_waitcnt vmcnt(0)", "record written through before it is counted")
    if D == 2: a("s_memrealtime s[86:87]"); a("s_waitcnt lgkmcnt(0)")
    a("s_atomic_add s%d, %s, 0x4 glc" % (sT1, sr(sAt, 2)))
    a("s_mov_b64 exec, -1")
    a("s_lshl_b32 s%d, s%d, 4" % (sT0, sPair)); a("s_add_u32 s%d, s%d, s%d" % (sT0, sT0, sWave)); a("s_mul_i32 s%d, s%d, %d" % (sT0, sT0, REC))
    a("s_waitcnt lgkmcnt(0)")
    if D == 2: a("s_memrealtime s[88:89]"); a("s_waitcnt lgkmcnt(0)")
    a("s_cmp_lg_u32 s%d, %d" % (sT1, S - 1))
    a("s_cbranch_scc1 L_fin")
    a.c("last arriver of this head: merge the group's 8 records and write the output row")
    vml, vo2 = vBuf, vBuf + 32
    for i in range(S):
        a("s_add_u32 s%d, s%d, %d" % (sT1, sT0, i * 2 * REC))
        a("buffer_load_dwordx2 %s, v%d, %s, s%d offen offset:1024 sc0 sc1" % (vr(vml + 2 * i, 2), vZero, sr(sW), sT1))
    for i in range(S):
        a("s_add_u32 s%d, s%d, %d" % (sT1, sT0, i * 2 * REC))
        a("buffer_load_dwordx4 %s, v%d, %s, s%d offen sc0 sc1" % (vr(vo2 + 4 * i), vT + 1, sr(sW), sT1))
    a("s_waitcnt vmcnt(%d)" % S)
    a("v_max3_f32 v%d, v%d, v%d, v%d" % (vMc, vml, vml + 2, vml + 4))
    a("v_max3_f32 v%d, v%d, v%d, v%d" % (vMc, vMc, vml + 6, vml + 8))
    a("v_max3_f32 v%d, v%d, v%d, v%d" % (vMc, vMc, vml + 10, vml + 12))
    a("v_max_f32 v%d, v%d, v%d" % (vMc, vMc, vml + 14))
    for i in range(S): a("v_sub_f32 v%d, v%d, v%d" % (vml + 2 * i, vml + 2 * i, vMc))
    for i in range(S): a("v_exp_f32 v%d, v%d" % (vml + 2 * i, vml + 2 * i))
    a("s_nop 0")
    a("v_mul_f32 v%d, v%d, v%d" % (vL, vml, vml + 1))
    for i in range(1, S): a("v_fmac_f32 v%d, v%d, v%d" % (vL, vml + 2 * i, vml + 2 * i + 1))
    a("v_rcp_f32 v%d, v%d" % (vL, vL))
    for i in range(S):
        a("s_waitcnt vmcnt(%d)" % (S - 1 - i))
        for r in range(4):
            a(("v_mul_f32 v%d, v%d, v%d" if i == 0 else "v_fmac_f32 v%d, v%d, v%d") % (vO + r, vml + 2 * i, vo2 + 4 * i + r))
    if D == 2: a("s_memrealtime s[90:91]"); a("s_waitcnt lgkmcnt(0)")
    for r in range(4): a("v_mul_f32 v%d, v%d, v%d" % (vO + r, vO + r, vL))
    a("v_cvt_pk_bf16_f32 v%d, v%d, v%d" % (vO, vO, vO + 1)); a("v_cvt_pk_bf16_f32 v%d, v%d, v%d" % (vO + 1, vO + 2, vO + 3))
    a("v_lshlrev_b32 v%d, 3, v%d" % (vT + 1, vLane)); a("s_lshl_b32 s%d, s%d, 9" % (sT0, sT2))
    a("buffer_store_dwordx2 %s, v%d, %s, s%d offen" % (vr(vO, 2), vT + 1, sr(sO), sT0))
    a.label("L_fin")
    if D:
        a("s_waitcnt vmcnt(0)"); a("s_memrealtime s[58:59]"); a("s_waitcnt lgkmcnt(0)")
        a("s_add_u32 s60, s%d, 0x40000000" % (sPtr + 10)); a("s_addc_u32 s61, s%d, 0" % (sPtr + 11)); a("s_and_b32 s61, s61, 0xffff")
        a("s_mov_b32 s62, 0x1000000"); a("s_mov_b32 s63, 0x00020000")
        a("s_mul_i32 s28, s2, %d" % W); a("s_add_u32 s28, s28, s%d" % sWave); a("s_lshl_b32 s28, s28, 5"); a("s_mov_b64 exec, 1")
        for i, r in enumerate((52, 54, 56, 58)): a("v_mov_b32 v%d, s%d" % (4 + i, r))
        a("s_getreg_b32 s29, hwreg(HW_REG_XCC_ID)"); a("v_mov_b32 v8, s29"); a("s_getreg_b32 s29, hwreg(HW_REG_HW_ID)"); a("v_mov_b32 v9, s29")
        a("v_mov_b32 v10, s82"); a("v_mov_b32 v12, 0")
        a("v_subrev_u32 v11, %d, v%d" % (MBOX + 4 * NS - (W * 1024 + 128 + 4), vMaddr))
        a("buffer_store_dwordx4 v[4:7], v12, s[60:63], s28 offen"); a("buffer_store_dwordx4 v[8:11], v12, s[60:63], s28 offen offset:16")
        if D == 2:
            a("s_add_u32 s28, s28, 0x80000")
            for i, r in enumerate((84, 86, 88, 90)): a("v_mov_b32 v%d, s%d" % (16 + i, r))
            a("buffer_store_dwordx4 v[16:19], v12, s[60:63], s28 offen")
    a.label("L_done")
    a("s_endpgm")

    a.label("L_helper")
    a("s_setprio 3")
    a.c("mailbox: M[k] = j*R0 + k for the static rounds, EMPTY (-1) after them; progress word = 0")
    for i in range(4): a("v_mov_b32 v%d, -1" % (vT + i))
    a("v_lshlrev_b32 v%d, 4, v%d" % (vT + 4, vLane))
    for i in range(MBN * 4 // 1024): a("ds_write_b128 v%d, %s offset:%d" % (vT + 4, vr(vT), MBOX + 1024 * i))
    a("v_add_u32 v%d, s%d, v%d" % (vT, sJ0, vLane)); a("v_lshlrev_b32 v%d, 2, v%d" % (vT + 1, vLane))
    for b in range(0, R0, 64):
        part = R0 - b < 64
        if part:
            a("v_cmp_gt_u32 vcc, %d, v%d" % (R0 - b, vLane)); a("s_and_saveexec_b64 %s, vcc" % sr(sSave, 2))
        a("ds_write_b32 v%d, v%d offset:%d" % (vT + 1, vT, MBOX + 4 * b))
        if part: a("s_mov_b64 exec, %s" % sr(sSave, 2))
        else: a("v_add_u32 v%d, 64, v%d" % (vT, vT))
    a("ds_write_b32 v%d, v%d offset:%d" % (vZero, vZero, PADDR))
    a("v_mov_b32 v%d, %d" % (vPub, PADDR))
    a("s_waitcnt lgkmcnt(0)")
    a("s_barrier")
    srd(sW, sPtr + 10, 0x200000)
    srd(sD, sPtr + 8, 256)
    a("s_add_u32 s%d, s%d, s%d" % (sAt, sPtr + 10, sCtl)); a("s_addc_u32 s%d, s%d, 0" % (sAt + 1, sPtr + 11))
    a("s_mov_b32 s%d, %d" % (sNx, R0), "next mailbox slot to fill")
    a("s_mov_b32 s%d, 0" % sLast, "pool counter as last seen")
    a("s_mov_b64 exec, 1")
    a("s_lshl_b32 s%d, s%d, 2" % (sT2, sPair)); a("s_add_u32 s%d, s%d, 128" % (sT2, sT2), "flag word of the group in d_debug")
    a("s_cmp_lg_u32 s%d, 0" % sJ)
    a("s_cbranch_scc1 L_h_w0")
    a.c("member 0 clears the group's control line (pool counter, two completion counters), then raises the flag")
    for i in range(4): a("v_mov_b32 v%d, 0" % (vT + i))
    a("buffer_store_dwordx4 %s, v%d, %s, s%d offen sc0 sc1" % (vr(vT), vZero, sr(sW), sCtl))
    a("s_waitcnt vmcnt(0)")
    a("v_mov_b32 v%d, 1" % vT)
    a("buffer_store_dword v%d, v%d, %s, s%d offen sc0 sc1" % (vT, vZero, sr(sD), sT2))
    a("s_waitcnt vmcnt(0)")
    a.label("L_h_w0")
    a("ds_read_b32 v%d, v%d" % (vT, vPub)); a("s_waitcnt lgkmcnt(0)")
    a("v_readfirstlane_b32 s%d, v%d" % (sPg, vT))
    a("s_add_u32 s%d, s%d, %d" % (sPg, sPg, NS + LA + 2))
    a("s_cmp_le_u32 s%d, s%d" % (sNx, sPg))
    a("s_cbranch_scc1 L_h_flag")
    a("s_sleep 16", "workers are still far from the end of their static rounds")
    a("s_branch L_h_w0")
    a.label("L_h_flag")
    a("buffer_load_dword v%d, v%d, %s, s%d offen sc0 sc1" % (vT, vZero, sr(sD), sT2)); a("s_waitcnt vmcnt(0)")
    a("v_readfirstlane_b32 s%d, v%d" % (sPg, vT))
    a("s_cmp_lg_u32 s%d, 0" % sPg)
    a("s_cbranch_scc1 L_h_loop")
    a("s_sleep 4")
    a("s_branch L_h_flag")
    a.label("L_h_loop")
    a("ds_read_b32 v%d, v%d" % (vT, vPub)); a("s_waitcnt lgkmcnt(0)")
    a("v_readfirstlane_b32 s%d, v%d" % (sPg, vT))
    a("s_add_u32 s%d, s%d, %d" % (sPg, sPg, NS + LA))
    a("s_cmp_le_u32 s%d, s%d" % (sNx, sPg))
    a("s_cbranch_scc1 L_h_go")
    a("s_sleep 1")
    a("s_branch L_h_loop")
    a.label("L_h_go")
    a("s_sub_i32 s%d, %d, s%d" % (sN, POOL, sLast), "batch = clamp(remaining >> %d, 1, %d)" % (P.gdiv, P.nmax))
    a("s_ashr_i32 s%d, s%d, %d" % (sN, sN, P.gdiv))
    a("s_max_i32 s%d, s%d, 1" % (sN, sN)); a("s_min_i32 s%d, s%d, %d" % (sN, sN, P.nmax))
    a("s_mov_b32 s%d, s%d" % (sLast, sN))
    a("s_atomic_add s%d, %s, 0x0 glc" % (sLast, sr(sAt, 2)))
    a("s_lshl_b32 s%d, s%d, 2" % (sT0, sNx)); a("s_add_u32 s%d, s%d, %d" % (sT0, sT0, MBOX))
    a("s_add_u32 s%d, s%d, s%d" % (sNx, sNx, sN))
    a("s_lshl_b32 s%d, 1, s%d" % (sT1, sN)); a("s_sub_u32 s%d, s%d, 1" % (sT1, sT1))
    a("s_waitcnt lgkmcnt(0)")
    a("s_mov_b32 exec_lo, s%d" % sT1, "lanes 0..n-1 publish one ticket each")
    a("s_add_u32 s%d, s%d, %d" % (sT1, sLast, BASE))
    a("s_add_u32 s%d, s%d, s%d" % (sLast, sLast, sN))
    a("v_add_u32 v%d, s%d, v%d" % (vT + 1, sT1, vLane))
    a("v_lshlrev_b32 v%d, 2, v%d" % (vT + 2, vLane)); a("v_add_u32 v%d, s%d, v%d" % (vT + 2, sT0, vT + 2))
    a("ds_write_b32 v%d, v%d" % (vT + 2, vT + 1))
    a("s_mov_b64 exec, 1")
    a("s_cmp_lt_u32 s%d, %d" % (sLast, POOL))
    a("s_cbranch_scc1 L_h_loop")
    a.c("pool exhausted: the next slots read as 'no more work'")
    a("s_mov_b64 exec, 0xff")
    a("s_lshl_b32 s%d, s%d, 2" % (sT0, sNx)); a("s_add_u32 s%d, s%d, %d" % (sT0, sT0, MBOX))
    a("v_lshlrev_b32 v%d, 2, v%d" % (vT, vLane)); a("v_add_u32 v%d, s%d, v%d" % (vT, sT0, vT))
    a("v_mov_b32 v%d, %d" % (vT + 1, NTICK))
    a("ds_write_b32 v%d, v%d" % (vT, vT + 1))
    a("s_waitcnt lgkmcnt(0)")
    a("s_endpgm")

    lds = max(MBOX + MBN * 4, P.lds)
    out = HEADER + "; @launch grid=(%d,1,1) block=(%d,1,1) lds=%d\n" % (NWG, (W + 1) * 64, lds)
    out += DOC.format(CK=CK, TK=TK, R0m1=R0 - 1)
    out += '.amdgcn_target "amdgcn-amd-amdhsa--gfx950"\n.text\n'
    out += ".globl %s_kernel\n.p2align 8\n.type %s_kernel,@function\n%s_kernel:\n" % (NAME, NAME, NAME)
    out += a.text()
    out += '.section .rodata,"a"\n.p2align 6\n.amdhsa_kernel %s_kernel\n' % NAME
    out += "  .amdhsa_next_free_vgpr %d\n  .amdhsa_next_free_sgpr 96\n  .amdhsa_accum_offset %d\n" % (nv, (nv + 3) // 4 * 4)
    out += "  .amdhsa_group_segment_fixed_size 0\n  .amdhsa_kernarg_size 48\n  .amdhsa_user_sgpr_count 2\n"
    out += "  .amdhsa_user_sgpr_kernarg_segment_ptr 1\n  .amdhsa_system_sgpr_workgroup_id_x 1\n.end_amdhsa_kernel\n"
    return out

if __name__ == "__main__":
    ap = argparse.ArgumentParser()
    ap.add_argument("--mg", type=int, default=2); ap.add_argument("--stages", type=int, default=2)
    ap.add_argument("--r0", type=int, default=96); ap.add_argument("--la", type=int, default=1)
    ap.add_argument("--gdiv", type=int, default=5); ap.add_argument("--nmax", type=int, default=8)
    ap.add_argument("--lds", type=int, default=98304); ap.add_argument("--diag", type=int, default=0)
    ap.add_argument("--vshift", type=int, default=0)
    ap.add_argument("--policy", default="nt")
    ap.add_argument("-o", default="-")
    P = ap.parse_args(); t = gen(P)
    (sys.stdout if P.o == "-" else open(P.o, "w")).write(t)
```

```python
import argparse, sys
from gen_final import A, vr, sr, f32hex, HEADER, NAME, NH, SKV, DH, ROWB, HEADB, LOG2E

DOC = """;
;  - a round = {CK} keys ({TK} per worker wave). Pass 1 streams K only, pass 2 streams V only (mixing the two
;    streams costs HBM efficiency). In each pass a workgroup first runs its {R0} static rounds (an eighth of
"""

def gen(P):
    W, S = 4, 8
    NWG = (NH // 2) * S
    MG, NS, LA, LAV = 2, P.stages, P.la, P.lav
    TK = 4 * MG; TB = TK * ROWB; CK = W * TK; CB = CK * ROWB
    NTH = SKV // CK; NTICK = 2 * NTH
    R0 = NTH // S
    BASE = R0 * S; POOL = NTICK - BASE
    assert BASE == NTH and POOL == NTH
    NL = 2 * MG
    CAP = P.cap
    assert NS <= R0 < CAP and CAP * S >= NTICK
    REC = 1024 + 128
    CTRL = 0x100000
    SCG = 0x200000
    SCR = W * TK * 4
    WSB = SCG + (NH // 2) * POOL * SCR
    ML = 2 * W * 1024
    PW, PV, MCB = ML + 224, ML + 240, ML + 244
    MBN = (CAP + 16 + 255) // 256 * 256
    MBOX = ML + 256
    MBOX2 = MBOX + MBN * 4
    SC = MBOX2 + MBN * 4
    NEG = "0xff7fffff"
    pol = " " + P.policy
    KW = (NS - 1) * NL
    D = P.diag
    BIG = 0x7fffffff
    OOB = 0x7fffff00

    a = A()
    sV, sG, sCur, sW, sO, sD = 4, 8, 12, 16, 44, 48
    sQ = 16
    sOff, sGo, sLim, sPair, sJ, sWave, sC, sWOff = 20, 21, 22, 23, 24, 25, 26, 27
    sT0, sT1, sT2, sT3 = 28, 29, 30, 31
    sPtr = 32
    sTk = 64
    sCK, sNK = 68, 69
    sCtl, sJ0 = 70, 71
    sNx, sPg, sN, sLast = 72, 73, 74, 75
    sSave, sAt = 76, 78
    sSel = 80
    sMode, sExp, sNV, sDone = 84, 85, 86, 87
    sMinP = 90
    vKoff, vVoff, vLane = 1, 2, 3
    vQ, vMask = 4, 12
    vM, vL, vMc, vCur = 16, 17, 18, 19
    vO, vC, vS, vT = 20, 28, 44, 48
    vTk, vMaddr, vPub, vZero, vRnd, vSad = 54, 55, 56, 57, 58, 59
    vMA, vGoff, vPubV, vRndV = 60, 61, 62, 63
    vQ2, vOA, vMcA, vLA = 64, 72, 80, 81
    vG = 36
    vBuf = 84
    Breg = lambda s, i: vBuf + s * 4 * NL + 4 * i
    nv = max(vBuf + NS * 4 * NL, vBuf + 64)
    assert NS <= 4 and nv <= 256

    def issue(s):
        for m in range(MG):
            for j in range(2):
                a("buffer_load_dwordx4 %s, v%d, %s, s%d offen offset:%d%s" % (vr(Breg(s, 2 * m + j)), vCur, sr(sCur), sOff, m * 2048 + j * 256, pol))
    def set_off(src):
        a("s_mul_i32 s%d, s%d, %d" % (sOff, src, CB)); a("s_add_u32 s%d, s%d, s%d" % (sOff, sOff, sWOff))
    def srd(dst, lo, size):
        a("s_mov_b32 s%d, s%d" % (dst, lo)); a("s_and_b32 s%d, s%d, 0xffff" % (dst + 1, lo + 1))
        a("s_mov_b32 s%d, %d" % (dst + 2, size)); a("s_mov_b32 s%d, 0x00020000" % (dst + 3))
    def srd_scores():
        a("s_mul_i32 s%d, s%d, %d" % (sT2, sPair, POOL * SCR)); a("s_add_u32 s%d, s%d, 0x%x" % (sT2, sT2, SCG))
        a("s_add_u32 s%d, s%d, s%d" % (sG, sPtr + 10, sT2)); a("s_addc_u32 s%d, s%d, 0" % (sG + 1, sPtr + 11))
        a("s_and_b32 s%d, s%d, 0xffff" % (sG + 1, sG + 1))
        a("s_mov_b32 s%d, %d" % (sG + 2, POOL * SCR)); a("s_mov_b32 s%d, 0x00020000" % (sG + 3))
    def xrow(v, op):
        for sw in ("v_permlane16_swap_b32", "v_permlane32_swap_b32"):
            a("v_mov_b32 v%d, v%d" % (vT + 1, v)); a("s_nop 1")
            a("%s v%d, v%d" % (sw, v, vT + 1)); a("s_nop 1")
            a("%s v%d, v%d, v%d" % (op, v, v, vT + 1))
    def dppmax(v, ctl):
        a("s_nop 1"); a("v_max_f32_dpp v%d, v%d, v%d %s row_mask:0xf bank_mask:0xf" % (v, v, v, ctl))

    if D: a("s_memrealtime s[52:53]"); a("s_mov_b32 s82, 0"); a("s_mov_b32 s83, 0")
    a("s_cmp_ge_u32 s2, %d" % NWG, "workgroups past the data leave at once")
    a("s_cbranch_scc1 L_done")
    a("s_load_dwordx4 %s, s[0:1], 0" % sr(sPtr), "q, k")
    a("s_load_dwordx4 %s, s[0:1], 16" % sr(sPtr + 4), "v, out")
    a("s_load_dwordx4 %s, s[0:1], 32" % sr(sPtr + 8), "debug, ws")
    a("v_and_b32 v%d, 63, v0" % vLane)
    a("v_lshrrev_b32 v%d, 6, v0" % vT)
    a("v_lshrrev_b32 v%d, 4, v%d" % (vT + 1, vLane), "g = lane>>4")
    a("v_readfirstlane_b32 s%d, v%d" % (sWave, vT))
    a("s_lshr_b32 s%d, s2, 3" % sPair, "group = head pair")
    a("s_and_b32 s%d, s2, 7" % sJ, "member of the group")
    a.c("K fragment (A operand): lane(i=4*key+p, g) reads key row 'key', 16 bytes at g*64 + p*16 (+256 for the 2nd half)")
    a("v_bfe_u32 v%d, v%d, 2, 2" % (vT + 2, vLane)); a("v_lshlrev_b32 v%d, 9, v%d" % (vT + 2, vT + 2))
    a("v_lshl_add_u32 v%d, v%d, 6, v%d" % (vT + 2, vT + 1, vT + 2)); a("v_and_b32 v%d, 3, v%d" % (vT + 3, vLane))
    a("v_lshl_add_u32 v%d, v%d, 4, v%d" % (vKoff, vT + 3, vT + 2))
    a.c("V fragment (B operand): lane(j, g) reads key row g, 16 bytes at j*16 (+256 for the 2nd half)")
    a("v_and_b32 v%d, 15, v%d" % (vT + 4, vLane)); a("v_lshlrev_b32 v%d, 4, v%d" % (vT + 4, vT + 4))
    a("v_lshl_add_u32 v%d, v%d, 9, v%d" % (vVoff, vT + 1, vT + 4))
    a.c("q fragment (B operand): lane(n, g) holds the q chunk that matches K chunk g*64 + (n&3)*16")
    a("v_lshlrev_b32 v%d, 4, v%d" % (vT + 3, vT + 3)); a("v_lshl_add_u32 v%d, v%d, 6, v%d" % (vT + 5, vT + 1, vT + 3))
    a("v_mov_b32 v%d, 0" % vZero)
    a("v_mov_b32 v%d, v%d" % (vCur, vKoff))
    a("s_lshr_b32 s%d, s%d, 8" % (sT1, sPair)); a("s_lshl_b32 s%d, s%d, 24" % (sT0, sPair), "pair * 16 MiB")
    a("s_mul_i32 s%d, s%d, %d" % (sWOff, sWave, TB))
    a("s_mul_i32 s%d, s%d, %d" % (sJ0, sJ, R0), "first static ticket")
    for s in range(NS): a("s_add_u32 s%d, s%d, %d" % (sTk + s, sJ0, s))
    a("s_lshl_b32 s%d, s%d, 8" % (sCtl, sPair)); a("s_add_u32 s%d, s%d, 0x%x" % (sCtl, sCtl, CTRL), "control line of the group (offset in d_ws)")
    a.c("score slot of this lane inside a round's 128 bytes: wave*32 + g*8")
    a("v_lshlrev_b32 v%d, 3, v%d" % (vGoff, vT + 1)); a("s_lshl_b32 s%d, s%d, 5" % (sT2, sWave)); a("v_add_u32 v%d, s%d, v%d" % (vGoff, sT2, vGoff))
    set_off(sTk)
    a("s_cmp_eq_u32 s%d, %d" % (sWave, W))
    a("s_waitcnt lgkmcnt(0)")
    a("s_cbranch_scc1 L_helper")
    a("s_add_u32 s%d, s%d, s%d" % (sCur, sPtr + 2, sT0)); a("s_addc_u32 s%d, s%d, s%d" % (sCur + 1, sPtr + 3, sT1))
    a("s_and_b32 s%d, s%d, 0xffff" % (sCur + 1, sCur + 1))
    a("s_mov_b32 s%d, %d" % (sCur + 2, 2 * HEADB), "tickets past the pair's range read nothing"); a("s_mov_b32 s%d, 0x00020000" % (sCur + 3))
    a("s_add_u32 s%d, s%d, s%d" % (sV, sPtr + 4, sT0)); a("s_addc_u32 s%d, s%d, s%d" % (sV + 1, sPtr + 5, sT1))
    a("s_and_b32 s%d, s%d, 0xffff" % (sV + 1, sV + 1))
    issue(0)
    srd(sQ, sPtr, NH * ROWB)
    a("s_lshl_b32 s%d, s%d, 10" % (sT0, sPair))
    for i, dst in enumerate((vQ, vQ + 4, vQ2, vQ2 + 4)):
        a("buffer_load_dwordx4 %s, v%d, %s, s%d offen offset:%d" % (vr(dst), vT + 5, sr(sQ), sT0, 256 * i))
    for s in range(1, NS): set_off(sTk + s); issue(s)
    srd(sO, sPtr + 6, NH * ROWB)
    a.c("P operand masks: element e=(lane&7) of the 8-wide k slab is the only live one")
    a("v_and_b32 v%d, 1, v%d" % (vT, vLane)); a("v_lshlrev_b32 v%d, 4, v%d" % (vT, vT)); a("v_mov_b32 v%d, 0xffff" % (vT + 1))
    a("v_lshlrev_b32 v%d, v%d, v%d" % (vT, vT, vT + 1)); a("v_bfe_u32 v%d, v%d, 1, 2" % (vT + 1, vLane))
    for r in range(4):
        a("v_cmp_eq_u32 vcc, %d, v%d" % (r, vT + 1)); a("s_nop 1"); a("v_cndmask_b32 v%d, 0, v%d, vcc" % (vMask + r, vT))
    a("v_mov_b32 v%d, %s" % (vM, NEG)); a("v_mov_b32 v%d, 0" % vL)
    for i in range(8): a("v_mov_b32 v%d, 0" % (vO + i))
    a("s_mov_b32 s%d, %s" % (sC, f32hex(LOG2E / 16.0)), "log2(e) / sqrt(256)")
    a("s_mov_b32 s%d, %d" % (sLim, NTH), "tickets below this belong to head A")
    a("s_mov_b32 s%d, 0" % sCK); a("s_mov_b32 s%d, 0x%x" % (sNK, BIG))
    a("v_mov_b32 v%d, %d" % (vMaddr, MBOX + 4 * NS)); a("v_mov_b32 v%d, 0" % vRnd); a("v_mov_b32 v%d, 0" % vRndV)
    a("s_lshl_b32 s%d, s%d, 2" % (sT0, sWave)); a("s_add_u32 s%d, s%d, %d" % (sT0, sT0, PW)); a("v_mov_b32 v%d, s%d" % (vPub, sT0), "this wave's progress word")
    a("v_mov_b32 v%d, %d" % (vPubV, PV))
    a("v_add_u32 v%d, %d, v%d" % (vSad, SC, vGoff))
    a("s_barrier", "mailboxes initialised by the ticket wave")

    for s in range(NS):
        t = "%d" % s
        a.label("L_k_" + t)
        a("s_cmp_ge_u32 s%d, s%d" % (sCK, sNK)); a("s_cbranch_scc1 L_tov_" + t)
        a("s_cmp_lt_u32 s%d, s%d" % (sTk + s, sLim)); a("s_cbranch_scc0 L_ksw_" + t)
        a.label("L_kgo_" + t)
        a("ds_write_b32 v%d, v%d" % (vPub, vRnd), "publish progress (rounds whose scores are in LDS)")
        a("ds_read_b32 v%d, v%d" % (vTk, vMaddr), "next job's ticket")
        a("s_waitcnt vmcnt(%d)" % KW, "K tile")
        for j in range(2):
            for m in range(MG):
                a("v_mfma_f32_16x16x32_bf16 %s, %s, %s, %s" % (vr(vC + 4 * m), vr(Breg(s, 2 * m + j)), vr(vQ + 4 * j), "0" if j == 0 else vr(vC + 4 * m)))
        a("s_waitcnt lgkmcnt(0)")
        a("v_readfirstlane_b32 s%d, v%d" % (sTk + s, vTk))
        a("s_cmp_ge_u32 s%d, %d" % (sTk + s, NTICK)); a("s_cbranch_scc1 L_kx_" + t, "EMPTY (-1) or 'no more K work'")
        a.label("L_khave_" + t)
        set_off(sTk + s); issue(s)
        a("v_add_u32 v%d, 4, v%d" % (vMaddr, vMaddr))
        a("s_nop 1")
        for m in range(MG):
            a("v_mov_b32_dpp v%d, v%d quad_perm:[0,0,0,0] row_mask:0xf bank_mask:0xf" % (vS + m, vC + 4 * m))
        for r in range(1, 4):
            a("s_nop 1")
            for m in range(MG):
                a("v_add_f32_dpp v%d, v%d, v%d quad_perm:[%d,%d,%d,%d] row_mask:0xf bank_mask:0xf" % (vS + m, vC + 4 * m + r, vS + m, r, r, r, r))
        a("ds_write_b64 v%d, %s" % (vSad, vr(vS, 2)), "scores of this tile")
        a("v_max3_f32 v%d, v%d, v%d, v%d" % (vM, vM, vS, vS + 1))
        a("v_add_u32 v%d, %d, v%d" % (vSad, SCR, vSad)); a("v_add_u32 v%d, 1, v%d" % (vRnd, vRnd))
        a("s_add_u32 s%d, s%d, 1" % (sCK, sCK))
    a("s_branch L_k_0")
    for s in range(NS):
        t = "%d" % s
        a.label("L_kx_" + t)
        a("s_cmp_eq_u32 s%d, -1" % (sTk + s)); a("s_cbranch_scc0 L_kinv_" + t)
        if D: a("s_add_u32 s82, s82, 1")
        a("s_sleep 1")
        a("ds_read_b32 v%d, v%d" % (vTk, vMaddr)); a("s_waitcnt lgkmcnt(0)")
        a("v_readfirstlane_b32 s%d, v%d" % (sTk + s, vTk))
        a("s_cmp_ge_u32 s%d, %d" % (sTk + s, NTICK)); a("s_cbranch_scc1 L_kx_" + t)
        a("s_branch L_khave_" + t)
        a.label("L_kinv_" + t)
        a.c("K tickets are exhausted: from now on the issue stream is on V and walks the second mailbox")
        a("s_add_u32 s%d, s%d, %d" % (sNK, sCK, NS), "number of K rounds of this workgroup")
        a("s_mov_b32 s%d, s%d" % (sCur, sV)); a("s_mov_b32 s%d, s%d" % (sCur + 1, sV + 1))
        a("v_mov_b32 v%d, v%d" % (vCur, vVoff))
        a("s_mov_b32 s%d, s%d" % (sTk + s, sJ0))
        a("v_mov_b32 v%d, %d" % (vMaddr, MBOX2))
        a("s_branch L_khave_" + t)
        a.label("L_ksw_" + t)
        if D: a("s_memrealtime s[92:93]")
        a("s_waitcnt vmcnt(%d)" % KW, "q of head B has landed")
        a("v_mov_b32 v%d, v%d" % (vMA, vM))
        for i in range(8): a("v_mov_b32 v%d, v%d" % (vQ + i, vQ2 + i))
        a("s_mov_b32 s%d, 0x%x" % (sLim, BIG))
        a("s_branch L_kgo_" + t)
        a.label("L_tov_" + t)
        a("s_mov_b32 s%d, %d" % (sT3, s))
        a("s_branch L_tov")
    a.label("L_tov")
    if D: a("s_memrealtime s[54:55]")
    a("ds_write_b32 v%d, v%d" % (vPub, vRnd), "all K rounds of this wave are scored")
    a("s_cmp_eq_u32 s%d, 0x%x" % (sLim, BIG)); a("s_cbranch_scc1 L_tov_sw")
    a("v_mov_b32 v%d, v%d" % (vMA, vM))
    a.label("L_tov_sw")
    xrow(vMA, "v_max_f32")
    a("v_mul_f32 v%d, s%d, v%d" % (vMc, sC, vMA), "true max of this wave's head-A scores")
    a("v_add_u32 v%d, %d, v%d" % (vSad, SC, vGoff), "back to round 0")
    a("s_mov_b32 s%d, %d" % (sLim, NTH))
    for s in range(NS - 1):
        a("s_cmp_eq_u32 s%d, %d" % (sT3, s)); a("s_cbranch_scc1 L_v_%d" % s)
    a("s_branch L_v_%d" % (NS - 1))

    for s in range(NS):
        t = "%d" % s
        a.label("L_v_" + t)
        a("s_cmp_lt_u32 s%d, s%d" % (sTk + s, sLim)); a("s_cbranch_scc0 L_vsw_" + t)
        a("ds_max_u32 v%d, v%d" % (vPubV, vRndV), "publish progress")
        a("ds_read_b32 v%d, v%d" % (vTk, vMaddr), "next job's ticket")
        a("ds_read_b64 %s, v%d" % (vr(vS, 2), vSad), "scores of this tile")
        a("v_add_u32 v%d, %d, v%d" % (vSad, SCR, vSad)); a("v_add_u32 v%d, 1, v%d" % (vRndV, vRndV))
        a("s_waitcnt lgkmcnt(0)")
        a("v_readfirstlane_b32 s%d, v%d" % (sTk + s, vTk))
        a("s_cmp_eq_u32 s%d, -1" % (sTk + s)); a("s_cbranch_scc1 L_vpoll_" + t)
        a.label("L_vhave_" + t)
        set_off(sTk + s)
        a("v_add_u32 v%d, 4, v%d" % (vMaddr, vMaddr))
        for m in range(MG): a("v_fma_f32 v%d, v%d, s%d, -v%d" % (vS + m, vS + m, sC, vMc))
        for m in range(MG): a("v_exp_f32 v%d, v%d" % (vS + m, vS + m))
        a("s_nop 0")
        for m in range(MG): a("v_add_f32 v%d, v%d, v%d" % (vL, vL, vS + m))
        for m in range(MG): a("v_cvt_pk_bf16_f32 v%d, v%d, v%d" % (vS + m, vS + m, vS + m))
        for m in range(MG):
            for r in range(4): a("v_and_b32 v%d, v%d, v%d" % (vC + 4 * m + r, vS + m, vMask + r))
        a("s_waitcnt vmcnt(%d)" % KW, "V tile")
        a("s_nop 1")
        for m in range(MG):
            for h in range(2):
                a("v_mfma_f32_16x16x32_bf16 %s, %s, %s, %s" % (vr(vO + 4 * h), vr(vC + 4 * m), vr(Breg(s, 2 * m + h)), vr(vO + 4 * h)))
        issue(s)
    a("s_branch L_v_0")
    for s in range(NS):
        t = "%d" % s
        a.label("L_vpoll_" + t)
        if D: a("s_add_u32 s83, s83, 1")
        a("s_sleep 1")
        a("ds_read_b32 v%d, v%d" % (vTk, vMaddr)); a("s_waitcnt lgkmcnt(0)")
        a("v_readfirstlane_b32 s%d, v%d" % (sTk + s, vTk))
        a("s_cmp_eq_u32 s%d, -1" % (sTk + s)); a("s_cbranch_scc1 L_vpoll_" + t)
        a("s_branch L_vhave_" + t)
        a.label("L_vsw_" + t)
        a("s_cmp_eq_u32 s%d, %d" % (sLim, NTICK)); a("s_cbranch_scc1 L_epi", "past head B: done")
        if D: a("s_memrealtime s[88:89]")
        a("v_mov_b32 v%d, %d" % (vT, MCB)); a("ds_read_b32 v%d, v%d" % (vT + 1, vT), "max of head B (scaled), left by the ticket wave")
        a("s_nop 7")
        for i in range(8): a("v_mov_b32 v%d, v%d" % (vOA + i, vO + i)); a("v_mov_b32 v%d, 0" % (vO + i))
        a("v_mov_b32 v%d, v%d" % (vMcA, vMc)); a("v_mov_b32 v%d, v%d" % (vLA, vL)); a("v_mov_b32 v%d, 0" % vL)
        a("s_waitcnt lgkmcnt(0)")
        a("v_mov_b32 v%d, v%d" % (vMc, vT + 1))
        a("s_mov_b32 s%d, %d" % (sLim, NTICK))
        a("s_branch L_v_" + t)

    f = open("gen_final.py").read()
    env = dict(locals()); env.update(vr=vr, sr=sr)
    j0 = f.index('    a.label("L_epi")'); j1 = f.index('    # ================= ticket wave')
    body = f[j0:j1].replace('''    if D: a("s_memrealtime s[56:57]")
    a("s_nop 7")''', '''    if D: a("s_memrealtime s[56:57]")
    srd(sW, sPtr + 10, WSB)
    a("s_nop 7")''')
    body = body.replace('(MBOX + 4 * NS - (W * 1024 + 128 + 4), vMaddr)', '(MBOX2 + 4 * NS - (W * 1024 + 128 + 4), vMaddr)')
    if D:
        body = body.replace('''    a.label("L_done")''', '''    if D:
        a("s_add_u32 s28, s28, 0x80000")
        a("v_mov_b32 v16, s88"); a("v_mov_b32 v17, s83"); a("v_mov_b32 v18, s68"); a("v_mov_b32 v19, s82"); a("v_mov_b32 v20, s92"); a("buffer_store_dword v20, v12, s[60:63], s28 offen offset:16")
        a("buffer_store_dwordx4 v[16:19], v12, s[60:63], s28 offen")
    a.label("L_done")''')
    import textwrap
    exec(textwrap.dedent(body), env)

    vX, vMx = 20, 30
    a.label("L_helper")
    a("s_setprio 3")
    a.c("mailboxes: M[k] = j*R0 + k for the static rounds, EMPTY (-1) after them; progress words = 0")
    for i in range(4): a("v_mov_b32 v%d, -1" % (vT + i))
    a("v_lshlrev_b32 v%d, 4, v%d" % (vT + 4, vLane))
    for i in range(2 * MBN * 4 // 1024): a("ds_write_b128 v%d, %s offset:%d" % (vT + 4, vr(vT), MBOX + 1024 * i))
    a("v_add_u32 v%d, s%d, v%d" % (vT, sJ0, vLane)); a("v_lshlrev_b32 v%d, 2, v%d" % (vT + 1, vLane))
    assert R0 == 64
    a("ds_write_b32 v%d, v%d offset:%d" % (vT + 1, vT, MBOX)); a("ds_write_b32 v%d, v%d offset:%d" % (vT + 1, vT, MBOX2))
    for i in range(4): a("v_mov_b32 v%d, 0" % (vX + i))
    a("ds_write_b128 v%d, %s offset:%d" % (vZero, vr(vX), PW)); a("ds_write_b32 v%d, v%d offset:%d" % (vZero, vZero, PV))
    a("s_waitcnt lgkmcnt(0)")
    a("s_barrier")
    srd(sW, sPtr + 10, WSB); srd(sD, sPtr + 8, 256); srd_scores()
    a("s_add_u32 s%d, s%d, s%d" % (sAt, sPtr + 10, sCtl)); a("s_addc_u32 s%d, s%d, 0" % (sAt + 1, sPtr + 11))
    a("s_mov_b32 s%d, %s" % (sC, f32hex(LOG2E / 16.0)))
    a("s_mov_b32 s%d, %d" % (sNx, R0), "next mailbox slot to fill"); a("s_mov_b32 s%d, 0" % sLast, "pool counter as last seen")
    a("s_mov_b32 s%d, %d" % (sExp, R0), "next round to export"); a("s_mov_b32 s%d, %d" % (sNV, R0), "valid K rounds so far"); a("s_mov_b32 s%d, 0" % sDone)
    a("v_mov_b32 v%d, %s" % (vMx, NEG))
    a("v_lshrrev_b32 v%d, 3, v%d" % (vX + 8, vLane), "lane>>3: round inside an export batch")
    a("v_and_b32 v%d, 7, v%d" % (vX + 9, vLane)); a("v_lshlrev_b32 v%d, 4, v%d" % (vX + 9, vX + 9), "(lane&7)*16")
    a("s_mov_b64 exec, 1")
    a("s_lshl_b32 s%d, s%d, 2" % (sT2, sPair)); a("s_add_u32 s%d, s%d, 128" % (sT2, sT2), "flag word of the group in d_debug")
    a("s_cmp_lg_u32 s%d, 0" % sJ); a("s_cbranch_scc1 L_h_w0")
    a.c("member 0 clears the group's control line (two pool counters, two completion counters, K-done counter), then raises the flag")
    a("buffer_store_dwordx4 %s, v%d, %s, s%d offen sc0 sc1" % (vr(vX), vZero, sr(sW), sCtl))
    a("buffer_store_dwordx4 %s, v%d, %s, s%d offen offset:16 sc0 sc1" % (vr(vX), vZero, sr(sW), sCtl))
    a("s_waitcnt vmcnt(0)")
    a("v_mov_b32 v%d, 1" % vT)
    a("buffer_store_dword v%d, v%d, %s, s%d offen sc0 sc1" % (vT, vZero, sr(sD), sT2)); a("s_waitcnt vmcnt(0)")
    def read_pw():
        a("ds_read_b128 %s, v%d offset:%d" % (vr(vT), vZero, PW)); a("s_waitcnt lgkmcnt(0)")
        a("v_min_u32 v%d, v%d, v%d" % (vT + 4, vT, vT + 1)); a("v_min3_u32 v%d, v%d, v%d, v%d" % (vT + 4, vT + 4, vT + 2, vT + 3))
        a("v_max_u32 v%d, v%d, v%d" % (vT + 5, vT, vT + 1)); a("v_max3_u32 v%d, v%d, v%d, v%d" % (vT + 5, vT + 5, vT + 2, vT + 3))
        a("s_nop 0")
        a("v_readfirstlane_b32 s%d, v%d" % (sT0, vT + 4), "slowest wave"); a("v_readfirstlane_b32 s%d, v%d" % (sPg, vT + 5), "fastest wave")
    a.label("L_h_w0")
    read_pw()
    a("s_add_u32 s%d, s%d, %d" % (sPg, sPg, NS + LA + 2)); a("s_cmp_le_u32 s%d, s%d" % (sNx, sPg)); a("s_cbranch_scc1 L_h_flag")
    a("s_sleep 16", "workers are still far from the end of their static rounds"); a("s_branch L_h_w0")
    a.label("L_h_flag")
    a("buffer_load_dword v%d, v%d, %s, s%d offen sc0 sc1" % (vT, vZero, sr(sD), sT2)); a("s_waitcnt vmcnt(0)")
    a("v_readfirstlane_b32 s%d, v%d" % (sPg, vT)); a("s_cmp_lg_u32 s%d, 0" % sPg); a("s_cbranch_scc1 L_h_loop")
    a("s_sleep 4"); a("s_branch L_h_flag")

    def tickets(word, mbox, lab_next, lab_stop, kphase):
        gd, n0, n1 = (P.gdk, P.nmink, P.nmaxk) if kphase else (P.gdiv, P.nmin, P.nmax)
        assert n1 <= (31 if kphase else 7)
        a("s_sub_i32 s%d, %d, s%d" % (sN, POOL, sLast), "batch = clamp(remaining >> %d, %d, %d)" % (gd, n0, n1))
        a("s_ashr_i32 s%d, s%d, %d" % (sN, sN, gd))
        a("s_max_i32 s%d, s%d, %d" % (sN, sN, n0)); a("s_min_i32 s%d, s%d, %d" % (sN, sN, n1))
        a("s_sub_i32 s%d, %d, s%d" % (sT1, CAP, sNx), "room left"); a("s_min_i32 s%d, s%d, s%d" % (sN, sN, sT1))
        a("s_cmp_le_i32 s%d, 0" % sN); a("s_cbranch_scc1 " + lab_stop)
        a("s_mov_b32 s%d, s%d" % (sLast, sN))
        a("s_atomic_add s%d, %s, 0x%x glc" % (sLast, sr(sAt, 2), word))
        a("s_lshl_b32 s%d, s%d, 2" % (sT2, sNx)); a("s_add_u32 s%d, s%d, %d" % (sT2, sT2, mbox))
        a("s_lshl_b32 s%d, 1, s%d" % (sT1, sN)); a("s_sub_u32 s%d, s%d, 1" % (sT1, sT1))
        a("s_waitcnt lgkmcnt(0)")
        if not kphase:
            a.c("bring in the scores of these rounds: 8 lanes x 16 bytes per round")
            a("s_lshl_b32 s%d, s%d, 3" % (sT0, sN)); a("s_bfm_b64 exec, s%d, 0" % sT0)
            a("v_add_u32 v%d, s%d, v%d" % (vT, sLast, vX + 8)); a("v_lshl_add_u32 v%d, v%d, 7, v%d" % (vT, vT, vX + 9))
            a("buffer_load_dwordx4 %s, v%d, %s, 0 offen %s" % (vr(vX + 4), vT, sr(sG), P.imp))
            a("v_add_u32 v%d, s%d, v%d" % (vT + 3, sNx, vX + 8)); a("v_lshl_add_u32 v%d, v%d, 7, v%d" % (vT + 3, vT + 3, vX + 9))
            a("s_waitcnt vmcnt(0)")
            a("ds_write_b128 v%d, %s offset:%d" % (vT + 3, vr(vX + 4), SC))
        a("s_mov_b64 exec, 0"); a("s_mov_b32 exec_lo, s%d" % sT1, "lanes 0..n-1 publish one ticket each")
        a("s_add_u32 s%d, s%d, %d" % (sT1, sLast, BASE))
        a("v_add_u32 v%d, s%d, v%d" % (vT + 1, sT1, vLane))
        a("v_lshlrev_b32 v%d, 2, v%d" % (vT + 2, vLane)); a("v_add_u32 v%d, s%d, v%d" % (vT + 2, sT2, vT + 2))
        a("ds_write_b32 v%d, v%d" % (vT + 2, vT + 1))
        a("s_mov_b64 exec, 1")
        if kphase:
            a.c("valid tickets of this batch: clamp(POOL - old, 0, n)")
            a("s_sub_i32 s%d, %d, s%d" % (sT1, POOL, sLast)); a("s_max_i32 s%d, s%d, 0" % (sT1, sT1)); a("s_min_i32 s%d, s%d, s%d" % (sT1, sT1, sN))
            a("s_add_u32 s%d, s%d, s%d" % (sNV, sNV, sT1))
        a("s_add_u32 s%d, s%d, s%d" % (sNx, sNx, sN))
        a("s_add_u32 s%d, s%d, s%d" % (sLast, sLast, sN))
        a("s_cmp_lt_u32 s%d, %d" % (sLast, POOL)); a("s_cbranch_scc1 " + lab_next)
    def fill_invalid(mbox):
        a("s_mov_b64 exec, 0xff")
        a("s_lshl_b32 s%d, s%d, 2" % (sT2, sNx)); a("s_add_u32 s%d, s%d, %d" % (sT2, sT2, mbox))
        a("v_lshlrev_b32 v%d, 2, v%d" % (vT, vLane)); a("v_add_u32 v%d, s%d, v%d" % (vT, sT2, vT))
        a("v_mov_b32 v%d, %d" % (vT + 1, NTICK)); a("ds_write_b32 v%d, v%d" % (vT, vT + 1))
        a("s_mov_b64 exec, 1")

    a.label("L_h_loop")
    read_pw()
    a.c("export the scores of finished head-B rounds: up to 7 rounds, 8 lanes x 16 bytes each")
    a("s_mov_b32 s%d, s%d" % (sMinP, sT0))
    if P.late:
        a("s_cmp_eq_u32 s%d, 0" % sDone); a("s_cbranch_scc1 L_h_noexp", "exports wait for the end of pass 1 (one burst of writes)")
    a("s_min_u32 s%d, s%d, s%d" % (sT0, sT0, sNV)); a("s_sub_i32 s%d, s%d, s%d" % (sT0, sT0, sExp))
    a("s_min_i32 s%d, s%d, 7" % (sT0, sT0)); a("s_cmp_le_i32 s%d, 0" % sT0); a("s_cbranch_scc1 L_h_noexp")
    a("s_lshl_b32 s%d, s%d, 3" % (sT1, sT0)); a("s_bfm_b64 exec, s%d, 0" % sT1)
    a("v_add_u32 v%d, s%d, v%d" % (vT, sExp, vX + 8), "round")
    a("v_lshlrev_b32 v%d, 2, v%d" % (vT + 1, vT)); a("ds_read_b32 v%d, v%d offset:%d" % (vT + 2, vT + 1, MBOX), "its ticket")
    a("v_lshl_add_u32 v%d, v%d, 7, v%d" % (vT + 3, vT, vX + 9)); a("ds_read_b128 %s, v%d offset:%d" % (vr(vX + 4), vT + 3, SC))
    a("s_add_u32 s%d, s%d, s%d" % (sExp, sExp, sT0))
    a("s_waitcnt lgkmcnt(0)")
    a("v_subrev_u32 v%d, %d, v%d" % (vT + 2, BASE, vT + 2)); a("v_lshl_add_u32 v%d, v%d, 7, v%d" % (vT + 2, vT + 2, vX + 9))
    if P.exp != "none":
        a("buffer_store_dwordx4 %s, v%d, %s, 0 offen %s" % (vr(vX + 4), vT + 2, sr(sG), P.exp))
    a("v_max3_f32 v%d, v%d, v%d, v%d" % (vMx, vMx, vX + 4, vX + 5)); a("v_max3_f32 v%d, v%d, v%d, v%d" % (vMx, vMx, vX + 6, vX + 7))
    a("s_mov_b64 exec, 1")
    a("s_branch L_h_loop")
    a.label("L_h_noexp")
    a("s_cmp_lg_u32 s%d, 0" % sDone); a("s_cbranch_scc1 L_h_chk")
    if P.usemin: a("s_mov_b32 s%d, s%d" % (sPg, sMinP))
    a("s_add_u32 s%d, s%d, %d" % (sPg, sPg, NS + LA)); a("s_cmp_le_u32 s%d, s%d" % (sNx, sPg)); a("s_cbranch_scc1 L_h_go")
    a("s_sleep 1"); a("s_branch L_h_loop")
    a.label("L_h_go")
    tickets(0x0, MBOX, "L_h_loop", "L_h_stop", True)
    a.label("L_h_stop")
    fill_invalid(MBOX)
    a("s_mov_b32 s%d, 1" % sDone)
    a("s_branch L_h_loop")
    a.label("L_h_chk")
    a("s_cmp_ge_u32 s%d, s%d" % (sExp, sNV)); a("s_cbranch_scc1 L_h_kend")
    a("s_sleep 1"); a("s_branch L_h_loop")
    a.label("L_h_kend")
    a.c("all scores exported: publish this workgroup's head-B max, then count it as done with K")
    a("s_mov_b64 exec, -1")
    for ctl in ("quad_perm:[1,0,3,2]", "quad_perm:[2,3,0,1]", "row_half_mirror", "row_mirror"): dppmax(vMx, ctl)
    a("s_nop 1")
    xrow(vMx, "v_max_f32")
    a("s_mov_b64 exec, 1")
    a("s_lshl_b32 s%d, s%d, 2" % (sT2, sJ)); a("s_add_u32 s%d, s%d, s%d" % (sT2, sT2, sCtl))
    a("buffer_store_dword v%d, v%d, %s, s%d offen offset:128 sc0 sc1" % (vMx, vZero, sr(sW), sT2))
    a("s_waitcnt vmcnt(0)", "scores and max written through")
    a("s_mov_b32 s%d, 1" % sT1); a("s_atomic_add s%d, %s, 0x10 glc" % (sT1, sr(sAt, 2)))
    a("s_mov_b32 s%d, %d" % (sNx, R0)); a("s_mov_b32 s%d, 0" % sLast)
    a("s_waitcnt lgkmcnt(0)")
    a.label("L_h_v0")
    a("ds_read_b32 v%d, v%d offset:%d" % (vT, vZero, PV)); a("s_waitcnt lgkmcnt(0)")
    a("v_readfirstlane_b32 s%d, v%d" % (sPg, vT))
    a("s_add_u32 s%d, s%d, %d" % (sPg, sPg, NS + LAV + 4)); a("s_cmp_le_u32 s%d, s%d" % (sNx, sPg)); a("s_cbranch_scc1 L_h_kd")
    a("s_sleep 16"); a("s_branch L_h_v0")
    a.label("L_h_kd")
    a("s_mov_b32 s%d, 0" % sT1); a("s_atomic_add s%d, %s, 0x10 glc" % (sT1, sr(sAt, 2))); a("s_waitcnt lgkmcnt(0)")
    a("s_cmp_ge_u32 s%d, %d" % (sT1, S)); a("s_cbranch_scc1 L_h_mx")
    a("s_sleep 4"); a("s_branch L_h_kd")
    a.label("L_h_mx")
    a("s_mov_b64 exec, 0xff")
    a("v_lshlrev_b32 v%d, 2, v%d" % (vT, vLane))
    a("buffer_load_dword v%d, v%d, %s, s%d offen offset:128 sc0 sc1" % (vMx, vT, sr(sW), sCtl)); a("s_waitcnt vmcnt(0)")
    for ctl in ("quad_perm:[1,0,3,2]", "quad_perm:[2,3,0,1]", "row_half_mirror"): dppmax(vMx, ctl)
    a("s_mov_b64 exec, 1")
    a("v_mul_f32 v%d, s%d, v%d" % (vMx, sC, vMx))
    a("ds_write_b32 v%d, v%d offset:%d" % (vZero, vMx, MCB))
    sOld, sPn, sHave = 88, 89, 91
    def vsize():
        a("s_sub_i32 s%d, %d, s%d" % (sN, POOL, sLast), "batch = clamp(remaining >> %d, %d, %d)" % (P.gdiv, P.nmin, P.nmax))
        a("s_ashr_i32 s%d, s%d, %d" % (sN, sN, P.gdiv))
        a("s_max_i32 s%d, s%d, %d" % (sN, sN, P.nmin)); a("s_min_i32 s%d, s%d, %d" % (sN, sN, P.nmax))
        a("s_sub_i32 s%d, %d, s%d" % (sT1, CAP, sNx), "room left"); a("s_min_i32 s%d, s%d, s%d" % (sN, sN, sT1))
    assert P.nmax <= 7
    a.label("L_h_vloop")
    a.c("no add in flight: wait until the workers come close to the end of what they have")
    a("ds_read_b32 v%d, v%d offset:%d" % (vT, vZero, PV)); a("s_waitcnt lgkmcnt(0)")
    a("v_readfirstlane_b32 s%d, v%d" % (sPg, vT))
    a("s_add_u32 s%d, s%d, %d" % (sPg, sPg, NS + LAV)); a("s_cmp_le_u32 s%d, s%d" % (sNx, sPg)); a("s_cbranch_scc1 L_h_vgo")
    a("s_sleep 1"); a("s_branch L_h_vloop")
    a.label("L_h_vgo")
    vsize()
    a("s_cmp_le_i32 s%d, 0" % sN); a("s_cbranch_scc1 L_h_vstop")
    a("s_mov_b32 s%d, s%d" % (sLast, sN)); a("s_atomic_add s%d, %s, 0xc glc" % (sLast, sr(sAt, 2)))
    a("s_mov_b32 s%d, s%d" % (sPn, sN))
    a("s_waitcnt lgkmcnt(0)")
    a.label("L_h_vhave")
    a.c("batch (old = sLast, size = sPn) is ours: import its scores, meanwhile ask for the next one if it is due")
    a("s_mov_b32 s%d, s%d" % (sOld, sLast))
    a("s_lshl_b32 s%d, s%d, 3" % (sT0, sPn)); a("s_bfm_b64 exec, s%d, 0" % sT0)
    a("v_add_u32 v%d, s%d, v%d" % (vT, sOld, vX + 8)); a("v_lshl_add_u32 v%d, v%d, 7, v%d" % (vT, vT, vX + 9))
    a("buffer_load_dwordx4 %s, v%d, %s, 0 offen %s" % (vr(vX + 4), vT, sr(sG), P.imp))
    a("v_add_u32 v%d, s%d, v%d" % (vT + 3, sNx, vX + 8)); a("v_lshl_add_u32 v%d, v%d, 7, v%d" % (vT + 3, vT + 3, vX + 9))
    a("s_mov_b64 exec, 1")
    a("ds_read_b32 v%d, v%d offset:%d" % (vT, vZero, PV))
    a("s_lshl_b32 s%d, s%d, 2" % (sT2, sNx)); a("s_add_u32 s%d, s%d, %d" % (sT2, sT2, MBOX2), "mailbox slot of this batch")
    a("s_add_u32 s%d, s%d, s%d" % (sNx, sNx, sPn)); a("s_add_u32 s%d, s%d, s%d" % (sLast, sOld, sPn))
    a("s_mov_b32 s%d, 0" % sHave); a("s_mov_b32 s%d, s%d" % (sT3, sPn))
    a("s_waitcnt lgkmcnt(0)")
    a("v_readfirstlane_b32 s%d, v%d" % (sPg, vT))
    a("s_cmp_ge_u32 s%d, %d" % (sLast, POOL)); a("s_cbranch_scc1 L_h_vimp", "pool exhausted: nothing more to ask for")
    a("s_add_u32 s%d, s%d, %d" % (sPg, sPg, NS + LAV + P.vpre)); a("s_cmp_le_u32 s%d, s%d" % (sNx, sPg)); a("s_cbranch_scc0 L_h_vimp")
    vsize()
    a("s_cmp_le_i32 s%d, 0" % sN); a("s_cbranch_scc1 L_h_vimp")
    a("s_mov_b32 s%d, s%d" % (sPn, sN)); a("s_mov_b32 s%d, 1" % sHave)
    a("s_mov_b32 s%d, s%d" % (sLast, sN)); a("s_atomic_add s%d, %s, 0xc glc" % (sLast, sr(sAt, 2)))
    a.label("L_h_vimp")
    a("s_lshl_b32 s%d, s%d, 3" % (sT0, sT3)); a("s_bfm_b64 exec, s%d, 0" % sT0)
    a("s_waitcnt vmcnt(0)")
    a("ds_write_b128 v%d, %s offset:%d" % (vT + 3, vr(vX + 4), SC))
    a("s_bfm_b64 exec, s%d, 0" % sT3, "lanes 0..n-1 publish one ticket each")
    a("s_add_u32 s%d, s%d, %d" % (sT1, sOld, BASE))
    a("v_add_u32 v%d, s%d, v%d" % (vT + 1, sT1, vLane))
    a("v_lshlrev_b32 v%d, 2, v%d" % (vT + 2, vLane)); a("v_add_u32 v%d, s%d, v%d" % (vT + 2, sT2, vT + 2))
    a("ds_write_b32 v%d, v%d" % (vT + 2, vT + 1))
    a("s_mov_b64 exec, 1")
    a("s_cmp_lg_u32 s%d, 0" % sHave); a("s_cbranch_scc0 L_h_vnext")
    a("s_waitcnt lgkmcnt(0)"); a("s_branch L_h_vhave")
    a.label("L_h_vnext")
    a("s_cmp_lt_u32 s%d, %d" % (sLast, POOL)); a("s_cbranch_scc1 L_h_vloop")
    a.label("L_h_vstop")
    fill_invalid(MBOX2)
    a("s_waitcnt lgkmcnt(0)")
    a("s_endpgm")

    lds = max(SC + CAP * SCR, P.lds)
    out = HEADER + "; @launch grid=(%d,1,1) block=(%d,1,1) lds=%d\n" % (NWG, (W + 1) * 64, lds)
    out += DOC.format(CK=CK, TK=TK, R0=R0)
    out += '.amdgcn_target "amdgcn-amd-amdhsa--gfx950"\n.text\n'
    out += ".globl %s_kernel\n.p2align 8\n.type %s_kernel,@function\n%s_kernel:\n" % (NAME, NAME, NAME)
    out += a.text()
    out += '.section .rodata,"a"\n.p2align 6\n.amdhsa_kernel %s_kernel\n' % NAME
    out += "  .amdhsa_next_free_vgpr %d\n  .amdhsa_next_free_sgpr 96\n  .amdhsa_accum_offset %d\n" % (nv, (nv + 3) // 4 * 4)
    out += "  .amdhsa_group_segment_fixed_size 0\n  .amdhsa_kernarg_size 48\n  .amdhsa_user_sgpr_count 2\n"
    out += "  .amdhsa_user_sgpr_kernarg_segment_ptr 1\n  .amdhsa_system_sgpr_workgroup_id_x 1\n.end_amdhsa_kernel\n"
    return out

if __name__ == "__main__":
    ap = argparse.ArgumentParser()
    ap.add_argument("--stages", type=int, default=4)
    ap.add_argument("--cap", type=int, default=256)
    ap.add_argument("--la", type=int, default=2); ap.add_argument("--lav", type=int, default=2)
    ap.add_argument("--gdiv", type=int, default=5); ap.add_argument("--nmax", type=int, default=7); ap.add_argument("--nmin", type=int, default=1)
    ap.add_argument("--lds", type=int, default=0); ap.add_argument("--diag", type=int, default=0)
    ap.add_argument("--exp", default="sc0 sc1"); ap.add_argument("--imp", default="sc0 sc1")
    ap.add_argument("--late", type=int, default=1); ap.add_argument("--vpre", type=int, default=2)
    ap.add_argument("--gdk", type=int, default=3); ap.add_argument("--nmink", type=int, default=4); ap.add_argument("--nmaxk", type=int, default=16)
    ap.add_argument("--policy", default="nt"); ap.add_argument("--usemin", type=int, default=0)
    ap.add_argument("-o", default="-")
    P = ap.parse_args(); t = gen(P)
    (sys.stdout if P.o == "-" else open(P.o, "w")).write(t)
```

```python
import argparse, sys
from gen_final import A, vr, sr, f32hex, HEADER, NAME, NH, SKV, DH, ROWB, HEADB, LOG2E

DOC = """;
;  - a round = {CK} keys ({TK} per worker wave). Pass 1 streams K only, pass 2 streams V only (mixing the two
;    streams costs HBM efficiency). In each pass a workgroup first runs its {R0} static rounds (an eighth of
"""

def gen(P):
    W, S = 4, 8
    NWG = (NH // 2) * S
    MG, NS, LA, LAV = P.mg, P.stages, P.la, P.lav
    assert MG in (2, 4)
    TK = 4 * MG; TB = TK * ROWB; CK = W * TK; CB = CK * ROWB
    NTH = SKV // CK; NTICK = 2 * NTH
    R0 = P.r0 if P.r0 else NTH // S
    BASE = R0 * S; POOL = NTICK - BASE
    assert NTH <= BASE < NTICK
    NL = 2 * MG
    CAP = P.cap
    assert NS <= R0 < CAP and CAP * S >= NTICK
    REC = 1024 + 128
    CTRL = 0x100000
    SCG = 0x200000
    SCR = W * TK * 4
    LSCR = SCR.bit_length() - 1
    LPR = SCR // 16
    LLPR = LPR.bit_length() - 1
    XMAX = 63 // LPR
    WSB = SCG + (NH // 2) * POOL * SCR
    ML = 2 * W * 1024
    PW, PV, MCB = ML + 224, ML + 240, ML + 244
    MBN = (CAP + 16 + 255) // 256 * 256
    MBOX = ML + 256
    MBOX2 = MBOX + MBN * 4
    SC = MBOX2 + MBN * 4
    NEG = "0xff7fffff"
    pol = " " + P.policy
    KW = (NS - 1) * NL
    D = P.diag
    BIG = 0x7fffffff
    OOB = 0x7fffff00

    a = A()
    sV, sG, sCur, sW, sO, sD = 4, 8, 12, 16, 44, 48
    sQ = 16
    sOff, sOff2, sLim, sPair, sJ, sWave, sC, sWOff = 20, 21, 22, 23, 24, 25, 26, 27
    sT0, sT1, sT2, sT3 = 28, 29, 30, 31
    sPtr = 32
    sTk = 64
    sCK, sNK = 68, 69
    sCtl, sJ0 = 70, 71
    sNx, sPg, sN, sLast = 72, 73, 74, 75
    sSave, sAt = 76, 78
    sSel = 80
    sMode, sExp, sNV, sDone = 84, 85, 86, 87
    sMinP = 90
    vKoff, vVoff, vLane = 1, 2, 3
    vQ, vMask = 4, 12
    vM, vL, vMc, vCur = 16, 17, 18, 19
    vO, vC, vS, vT = 20, 28, 44, 48
    vTk, vMaddr, vPub, vZero, vRnd, vSad = 54, 55, 56, 57, 58, 59
    vMA, vGoff, vPubV, vRndV = 60, 61, 62, 63
    vMB = 82
    vQ2, vOA, vMcA, vLA = 64, 72, 80, 81
    vG = 36
    vBuf = 84
    Breg = lambda s, i: vBuf + s * 4 * NL + 4 * i
    nv = max(vBuf + NS * 4 * NL, vBuf + 64)
    assert NS <= 4 and nv <= 256

    def issue(s):
        for m in range(MG):
            for j in range(2):
                off, so = m * 2048 + j * 256, sOff
                if off >= 4096: off, so = off - 4096, sOff2
                a("buffer_load_dwordx4 %s, v%d, %s, s%d offen offset:%d%s" % (vr(Breg(s, 2 * m + j)), vCur, sr(sCur), so, off, pol))
    def set_off(src):
        a("s_mul_i32 s%d, s%d, %d" % (sOff, src, CB)); a("s_add_u32 s%d, s%d, s%d" % (sOff, sOff, sWOff))
        if MG > 2: a("s_add_u32 s%d, s%d, 4096" % (sOff2, sOff))
    def srd(dst, lo, size):
        a("s_mov_b32 s%d, s%d" % (dst, lo)); a("s_and_b32 s%d, s%d, 0xffff" % (dst + 1, lo + 1))
        a("s_mov_b32 s%d, %d" % (dst + 2, size)); a("s_mov_b32 s%d, 0x00020000" % (dst + 3))
    def srd_scores():
        a("s_mul_i32 s%d, s%d, %d" % (sT2, sPair, POOL * SCR)); a("s_add_u32 s%d, s%d, 0x%x" % (sT2, sT2, SCG))
        a("s_add_u32 s%d, s%d, s%d" % (sG, sPtr + 10, sT2)); a("s_addc_u32 s%d, s%d, 0" % (sG + 1, sPtr + 11))
        a("s_and_b32 s%d, s%d, 0xffff" % (sG + 1, sG + 1))
        a("s_mov_b32 s%d, %d" % (sG + 2, POOL * SCR)); a("s_mov_b32 s%d, 0x00020000" % (sG + 3))
    def xrow(v, op):
        for sw in ("v_permlane16_swap_b32", "v_permlane32_swap_b32"):
            a("v_mov_b32 v%d, v%d" % (vT + 1, v)); a("s_nop 1")
            a("%s v%d, v%d" % (sw, v, vT + 1)); a("s_nop 1")
            a("%s v%d, v%d, v%d" % (op, v, v, vT + 1))
    def dppmax(v, ctl):
        a("s_nop 1"); a("v_max_f32_dpp v%d, v%d, v%d %s row_mask:0xf bank_mask:0xf" % (v, v, v, ctl))

    if D: a("s_memrealtime s[52:53]"); a("s_mov_b32 s82, 0"); a("s_mov_b32 s83, 0")
    a("s_cmp_ge_u32 s2, %d" % NWG, "workgroups past the data leave at once")
    a("s_cbranch_scc1 L_done")
    a("s_load_dwordx4 %s, s[0:1], 0" % sr(sPtr), "q, k")
    a("s_load_dwordx4 %s, s[0:1], 16" % sr(sPtr + 4), "v, out")
    a("s_load_dwordx4 %s, s[0:1], 32" % sr(sPtr + 8), "debug, ws")
    a("v_and_b32 v%d, 63, v0" % vLane)
    a("v_lshrrev_b32 v%d, 6, v0" % vT)
    a("v_lshrrev_b32 v%d, 4, v%d" % (vT + 1, vLane), "g = lane>>4")
    a("v_readfirstlane_b32 s%d, v%d" % (sWave, vT))
    a("s_lshr_b32 s%d, s2, 3" % sPair, "group = head pair")
    a("s_and_b32 s%d, s2, 7" % sJ, "member of the group")
    a.c("K fragment (A operand): lane(i=4*key+p, g) reads key row 'key', 16 bytes at g*64 + p*16 (+256 for the 2nd half)")
    a("v_bfe_u32 v%d, v%d, 2, 2" % (vT + 2, vLane)); a("v_lshlrev_b32 v%d, 9, v%d" % (vT + 2, vT + 2))
    a("v_lshl_add_u32 v%d, v%d, 6, v%d" % (vT + 2, vT + 1, vT + 2)); a("v_and_b32 v%d, 3, v%d" % (vT + 3, vLane))
    a("v_lshl_add_u32 v%d, v%d, 4, v%d" % (vKoff, vT + 3, vT + 2))
    a.c("V fragment (B operand): lane(j, g) reads key row g, 16 bytes at j*16 (+256 for the 2nd half)")
    a("v_and_b32 v%d, 15, v%d" % (vT + 4, vLane)); a("v_lshlrev_b32 v%d, 4, v%d" % (vT + 4, vT + 4))
    a("v_lshl_add_u32 v%d, v%d, 9, v%d" % (vVoff, vT + 1, vT + 4))
    a.c("q fragment (B operand): lane(n, g) holds the q chunk that matches K chunk g*64 + (n&3)*16")
    a("v_lshlrev_b32 v%d, 4, v%d" % (vT + 3, vT + 3)); a("v_lshl_add_u32 v%d, v%d, 6, v%d" % (vT + 5, vT + 1, vT + 3))
    a("v_mov_b32 v%d, 0" % vZero)
    a("v_mov_b32 v%d, v%d" % (vCur, vKoff))
    a("s_lshr_b32 s%d, s%d, 8" % (sT1, sPair)); a("s_lshl_b32 s%d, s%d, 24" % (sT0, sPair), "pair * 16 MiB")
    a("s_mul_i32 s%d, s%d, %d" % (sWOff, sWave, TB))
    a("s_mul_i32 s%d, s%d, %d" % (sJ0, sJ, R0), "first static ticket")
    for s in range(NS): a("s_add_u32 s%d, s%d, %d" % (sTk + s, sJ0, s))
    a("s_lshl_b32 s%d, s%d, 8" % (sCtl, sPair)); a("s_add_u32 s%d, s%d, 0x%x" % (sCtl, sCtl, CTRL), "control line of the group (offset in d_ws)")
    a.c("score slot of this lane inside a round's 128 bytes: wave*32 + g*8")
    a("v_mul_u32_u24 v%d, %d, v%d" % (vGoff, MG * 4, vT + 1)); a("s_mul_i32 s%d, s%d, %d" % (sT2, sWave, TK * 4)); a("v_add_u32 v%d, s%d, v%d" % (vGoff, sT2, vGoff))
    set_off(sTk)
    a("s_cmp_eq_u32 s%d, %d" % (sWave, W))
    a("s_waitcnt lgkmcnt(0)")
    a("s_cbranch_scc1 L_helper")
    a("s_add_u32 s%d, s%d, s%d" % (sCur, sPtr + 2, sT0)); a("s_addc_u32 s%d, s%d, s%d" % (sCur + 1, sPtr + 3, sT1))
    a("s_and_b32 s%d, s%d, 0xffff" % (sCur + 1, sCur + 1))
    a("s_mov_b32 s%d, %d" % (sCur + 2, 2 * HEADB), "tickets past the pair's range read nothing"); a("s_mov_b32 s%d, 0x00020000" % (sCur + 3))
    a("s_add_u32 s%d, s%d, s%d" % (sV, sPtr + 4, sT0)); a("s_addc_u32 s%d, s%d, s%d" % (sV + 1, sPtr + 5, sT1))
    a("s_and_b32 s%d, s%d, 0xffff" % (sV + 1, sV + 1))
    issue(0)
    srd(sQ, sPtr, NH * ROWB)
    a("s_lshl_b32 s%d, s%d, 10" % (sT0, sPair))
    for i, dst in enumerate((vQ, vQ + 4, vQ2, vQ2 + 4)):
        a("buffer_load_dwordx4 %s, v%d, %s, s%d offen offset:%d" % (vr(dst), vT + 5, sr(sQ), sT0, 256 * i))
    for s in range(1, NS): set_off(sTk + s); issue(s)
    srd(sO, sPtr + 6, NH * ROWB)
    a.c("P operand masks: element e=(lane&7) of the 8-wide k slab is the only live one")
    a("v_and_b32 v%d, 1, v%d" % (vT, vLane)); a("v_lshlrev_b32 v%d, 4, v%d" % (vT, vT)); a("v_mov_b32 v%d, 0xffff" % (vT + 1))
    a("v_lshlrev_b32 v%d, v%d, v%d" % (vT, vT, vT + 1)); a("v_bfe_u32 v%d, v%d, 1, 2" % (vT + 1, vLane))
    for r in range(4):
        a("v_cmp_eq_u32 vcc, %d, v%d" % (r, vT + 1)); a("s_nop 1"); a("v_cndmask_b32 v%d, 0, v%d, vcc" % (vMask + r, vT))
    a("v_mov_b32 v%d, %s" % (vM, NEG)); a("v_mov_b32 v%d, 0" % vL)
    for i in range(8): a("v_mov_b32 v%d, 0" % (vO + i))
    a("s_mov_b32 s%d, %s" % (sC, f32hex(LOG2E / 16.0)), "log2(e) / sqrt(256)")
    a("s_mov_b32 s%d, %d" % (sLim, NTH), "tickets below this belong to head A")
    a("s_mov_b32 s%d, 0" % sCK); a("s_mov_b32 s%d, 0x%x" % (sNK, BIG))
    a("v_mov_b32 v%d, %d" % (vMaddr, MBOX + 4 * NS)); a("v_mov_b32 v%d, 0" % vRnd); a("v_mov_b32 v%d, 0" % vRndV)
    a("s_lshl_b32 s%d, s%d, 2" % (sT0, sWave)); a("s_add_u32 s%d, s%d, %d" % (sT0, sT0, PW)); a("v_mov_b32 v%d, s%d" % (vPub, sT0), "this wave's progress word")
    a("v_mov_b32 v%d, %d" % (vPubV, PV))
    a("v_add_u32 v%d, %d, v%d" % (vSad, SC, vGoff))
    a("s_barrier", "mailboxes initialised by the ticket wave")

    for s in range(NS):
        t = "%d" % s
        a.label("L_k_" + t)
        a("s_cmp_ge_u32 s%d, s%d" % (sCK, sNK)); a("s_cbranch_scc1 L_tov_" + t)
        a.label("L_k2_" + t)
        a("s_cmp_lt_u32 s%d, s%d" % (sTk + s, sLim)); a("s_cbranch_scc0 L_ksw_" + t)
        a.label("L_kgo_" + t)
        a("ds_write_b32 v%d, v%d" % (vPub, vRnd), "publish progress (rounds whose scores are in LDS)")
        a("ds_read_b32 v%d, v%d" % (vTk, vMaddr), "next job's ticket")
        a("s_waitcnt vmcnt(%d)" % KW, "K tile")
        for j in range(2):
            for m in range(MG):
                a("v_mfma_f32_16x16x32_bf16 %s, %s, %s, %s" % (vr(vC + 4 * m), vr(Breg(s, 2 * m + j)), vr(vQ + 4 * j), "0" if j == 0 else vr(vC + 4 * m)))
        a("s_waitcnt lgkmcnt(0)")
        a("v_readfirstlane_b32 s%d, v%d" % (sTk + s, vTk))
        a("s_cmp_ge_u32 s%d, %d" % (sTk + s, NTICK)); a("s_cbranch_scc1 L_kx_" + t, "EMPTY (-1) or 'no more K work'")
        a.label("L_khave_" + t)
        set_off(sTk + s); issue(s)
        a("v_add_u32 v%d, 4, v%d" % (vMaddr, vMaddr))
        a("s_nop 1")
        for m in range(MG):
            a("v_mov_b32_dpp v%d, v%d quad_perm:[0,0,0,0] row_mask:0xf bank_mask:0xf" % (vS + m, vC + 4 * m))
        for r in range(1, 4):
            if MG < 4: a("s_nop 1")
            for m in range(MG):
                a("v_add_f32_dpp v%d, v%d, v%d quad_perm:[%d,%d,%d,%d] row_mask:0xf bank_mask:0xf" % (vS + m, vC + 4 * m + r, vS + m, r, r, r, r))
        a("%s v%d, %s" % ("ds_write_b64" if MG == 2 else "ds_write_b128", vSad, vr(vS, MG)), "scores of this tile")
        for m in range(0, MG, 2): a("v_max3_f32 v%d, v%d, v%d, v%d" % (vM, vM, vS + m, vS + m + 1))
        a("v_add_u32 v%d, %d, v%d" % (vSad, SCR, vSad)); a("v_add_u32 v%d, 1, v%d" % (vRnd, vRnd))
        a("s_add_u32 s%d, s%d, 1" % (sCK, sCK))
    a("s_branch L_k_0")
    for s in range(NS):
        t = "%d" % s
        a.label("L_kx_" + t)
        a("s_cmp_eq_u32 s%d, -1" % (sTk + s)); a("s_cbranch_scc0 L_kinv_" + t)
        if D: a("s_add_u32 s82, s82, 1")
        a("s_sleep 1")
        a("ds_read_b32 v%d, v%d" % (vTk, vMaddr)); a("s_waitcnt lgkmcnt(0)")
        a("v_readfirstlane_b32 s%d, v%d" % (sTk + s, vTk))
        a("s_cmp_ge_u32 s%d, %d" % (sTk + s, NTICK)); a("s_cbranch_scc1 L_kx_" + t)
        a("s_branch L_khave_" + t)
        a.label("L_kinv_" + t)
        a.c("K tickets are exhausted: from now on the issue stream is on V and walks the second mailbox")
        a("s_add_u32 s%d, s%d, %d" % (sNK, sCK, NS), "number of K rounds of this workgroup")
        a("s_mov_b32 s%d, s%d" % (sCur, sV)); a("s_mov_b32 s%d, s%d" % (sCur + 1, sV + 1))
        a("v_mov_b32 v%d, v%d" % (vCur, vVoff))
        a("s_mov_b32 s%d, s%d" % (sTk + s, sJ0))
        a("v_mov_b32 v%d, %d" % (vMaddr, MBOX2))
        a("s_branch L_khave_" + t)
        a.label("L_ksw_" + t)
        if D: a("s_memrealtime s[92:93]")
        a("s_cmp_eq_u32 s%d, %d" % (sLim, NTH)); a("s_cbranch_scc0 L_kfrz_" + t)
        a("s_waitcnt vmcnt(%d)" % KW, "q of head B has landed")
        a("v_mov_b32 v%d, v%d" % (vMA, vM)); a("v_mov_b32 v%d, %s" % (vM, NEG))
        for i in range(8): a("v_mov_b32 v%d, v%d" % (vQ + i, vQ2 + i))
        a("s_mov_b32 s%d, %d" % (sLim, BASE + 1 if BASE == NTH else BASE))
        if BASE == NTH:
            a("v_mov_b32 v%d, %s" % (vMB, NEG)); a("s_mov_b32 s%d, 0x%x" % (sLim, BIG))
            a("s_branch L_kgo_" + t)
        else:
            a("s_branch L_k2_" + t)
        a.label("L_kfrz_" + t)
        a("v_mov_b32 v%d, v%d" % (vMB, vM), "max of this wave's static head-B scores")
        a("s_mov_b32 s%d, 0x%x" % (sLim, BIG))
        a("s_branch L_kgo_" + t)
        a.label("L_tov_" + t)
        a("s_mov_b32 s%d, %d" % (sT3, s))
        a("s_branch L_tov")
    a.label("L_tov")
    if D: a("s_memrealtime s[54:55]")
    a("ds_write_b32 v%d, v%d" % (vPub, vRnd), "all K rounds of this wave are scored")
    a("s_cmp_eq_u32 s%d, 0x%x" % (sLim, BIG)); a("s_cbranch_scc1 L_tov_sw")
    a("v_mov_b32 v%d, v%d" % (vMB, vM))
    a("s_cmp_eq_u32 s%d, %d" % (sLim, NTH)); a("s_cbranch_scc0 L_tov_sw")
    a("v_mov_b32 v%d, v%d" % (vMA, vM)); a("v_mov_b32 v%d, %s" % (vMB, NEG))
    a.label("L_tov_sw")
    xrow(vMA, "v_max_f32"); xrow(vMB, "v_max_f32")
    a("v_mul_f32 v%d, s%d, v%d" % (vMc, sC, vMA), "true max of this wave's head-A scores")
    a("v_mul_f32 v%d, s%d, v%d" % (vMB, sC, vMB), "and of its static head-B scores")
    a("v_add_u32 v%d, %d, v%d" % (vSad, SC, vGoff), "back to round 0")
    a("s_mov_b32 s%d, %d" % (sLim, NTH))
    for s in range(NS - 1):
        a("s_cmp_eq_u32 s%d, %d" % (sT3, s)); a("s_cbranch_scc1 L_v_%d" % s)
    a("s_branch L_v_%d" % (NS - 1))

    for s in range(NS):
        t = "%d" % s
        a.label("L_v_" + t)
        a("s_cmp_lt_u32 s%d, s%d" % (sTk + s, sLim)); a("s_cbranch_scc0 L_vsw_" + t)
        a("ds_max_u32 v%d, v%d" % (vPubV, vRndV), "publish progress")
        a("ds_read_b32 v%d, v%d" % (vTk, vMaddr), "next job's ticket")
        a("%s %s, v%d" % ("ds_read_b64" if MG == 2 else "ds_read_b128", vr(vS, MG), vSad), "scores of this tile")
        a("v_add_u32 v%d, %d, v%d" % (vSad, SCR, vSad)); a("v_add_u32 v%d, 1, v%d" % (vRndV, vRndV))
        a("s_waitcnt lgkmcnt(0)")
        a("v_readfirstlane_b32 s%d, v%d" % (sTk + s, vTk))
        a("s_cmp_eq_u32 s%d, -1" % (sTk + s)); a("s_cbranch_scc1 L_vpoll_" + t)
        a.label("L_vhave_" + t)
        set_off(sTk + s)
        a("v_add_u32 v%d, 4, v%d" % (vMaddr, vMaddr))
        for m in range(MG): a("v_fma_f32 v%d, v%d, s%d, -v%d" % (vS + m, vS + m, sC, vMc))
        for m in range(MG): a("v_exp_f32 v%d, v%d" % (vS + m, vS + m))
        a("s_nop 0")
        for m in range(MG): a("v_add_f32 v%d, v%d, v%d" % (vL, vL, vS + m))
        for m in range(MG): a("v_cvt_pk_bf16_f32 v%d, v%d, v%d" % (vS + m, vS + m, vS + m))
        for m in range(MG):
            for r in range(4): a("v_and_b32 v%d, v%d, v%d" % (vC + 4 * m + r, vS + m, vMask + r))
        a("s_waitcnt vmcnt(%d)" % KW, "V tile")
        a("s_nop 1")
        for m in range(MG):
            for h in range(2):
                a("v_mfma_f32_16x16x32_bf16 %s, %s, %s, %s" % (vr(vO + 4 * h), vr(vC + 4 * m), vr(Breg(s, 2 * m + h)), vr(vO + 4 * h)))
        issue(s)
    a("s_branch L_v_0")
    for s in range(NS):
        t = "%d" % s
        a.label("L_vpoll_" + t)
        if D: a("s_add_u32 s83, s83, 1")
        a("s_sleep 1")
        a("ds_read_b32 v%d, v%d" % (vTk, vMaddr)); a("s_waitcnt lgkmcnt(0)")
        a("v_readfirstlane_b32 s%d, v%d" % (sTk + s, vTk))
        a("s_cmp_eq_u32 s%d, -1" % (sTk + s)); a("s_cbranch_scc1 L_vpoll_" + t)
        a("s_branch L_vhave_" + t)
        a.label("L_vsw_" + t)
        a("s_cmp_eq_u32 s%d, %d" % (sLim, NTICK)); a("s_cbranch_scc1 L_epi", "past head B: done")
        a("s_nop 7")
        a("s_cmp_eq_u32 s%d, %d" % (sLim, NTH)); a("s_cbranch_scc0 L_vrs_" + t)
        if D: a("s_memrealtime s[88:89]")
        for i in range(8): a("v_mov_b32 v%d, v%d" % (vOA + i, vO + i)); a("v_mov_b32 v%d, 0" % (vO + i))
        a("v_mov_b32 v%d, v%d" % (vMcA, vMc)); a("v_mov_b32 v%d, v%d" % (vLA, vL)); a("v_mov_b32 v%d, 0" % vL)
        a("v_mov_b32 v%d, v%d" % (vMc, vMB))
        a("s_mov_b32 s%d, %d" % (sLim, BASE))
        if BASE != NTH: a("s_branch L_v_" + t)
        a.label("L_vrs_" + t)
        a.c("rounds of the pool: the reference becomes the max over the pool's scores (left by the ticket wave) and the static ones")
        a("v_mov_b32 v%d, %d" % (vT, MCB)); a("ds_read_b32 v%d, v%d" % (vT + 1, vT)); a("s_waitcnt lgkmcnt(0)")
        a("v_max_f32 v%d, v%d, v%d" % (vT + 1, vT + 1, vMc))
        a("v_sub_f32 v%d, v%d, v%d" % (vT, vMc, vT + 1)); a("v_mov_b32 v%d, v%d" % (vMc, vT + 1)); a("v_exp_f32 v%d, v%d" % (vT, vT))
        a("s_nop 0")
        a("v_mul_f32 v%d, v%d, v%d" % (vL, vL, vT))
        for i in range(8): a("v_mul_f32 v%d, v%d, v%d" % (vO + i, vO + i, vT))
        a("s_mov_b32 s%d, %d" % (sLim, NTICK))
        a("s_branch L_v_" + t)

    f = open("gen_final.py").read()
    env = dict(locals()); env.update(vr=vr, sr=sr)
    j0 = f.index('    a.label("L_epi")'); j1 = f.index('    # ================= ticket wave')
    body = f[j0:j1].replace('''    if D: a("s_memrealtime s[56:57]")
    a("s_nop 7")''', '''    if D: a("s_memrealtime s[56:57]")
    srd(sW, sPtr + 10, WSB)
    a("s_nop 7")''')
    body = body.replace('(MBOX + 4 * NS - (W * 1024 + 128 + 4), vMaddr)', '(MBOX2 + 4 * NS - (W * 1024 + 128 + 4), vMaddr)')
    if D:
        body = body.replace('''    a.label("L_done")''', '''    if D:
        a("s_add_u32 s28, s28, 0x80000")
        a("v_mov_b32 v16, s88"); a("v_mov_b32 v17, s83"); a("v_mov_b32 v18, s68"); a("v_mov_b32 v19, s82"); a("v_mov_b32 v20, s92"); a("buffer_store_dword v20, v12, s[60:63], s28 offen offset:16")
        a("buffer_store_dwordx4 v[16:19], v12, s[60:63], s28 offen")
    a.label("L_done")''')
    import textwrap
    exec(textwrap.dedent(body), env)

    vX, vMx = 20, 30
    a.label("L_helper")
    a("s_setprio 3")
    a.c("mailboxes: M[k] = j*R0 + k for the static rounds, EMPTY (-1) after them; progress words = 0")
    for i in range(4): a("v_mov_b32 v%d, -1" % (vT + i))
    a("v_lshlrev_b32 v%d, 4, v%d" % (vT + 4, vLane))
    for i in range(2 * MBN * 4 // 1024): a("ds_write_b128 v%d, %s offset:%d" % (vT + 4, vr(vT), MBOX + 1024 * i))
    a("v_add_u32 v%d, s%d, v%d" % (vT, sJ0, vLane)); a("v_lshlrev_b32 v%d, 2, v%d" % (vT + 1, vLane))
    for b in range(0, R0, 64):
        part = R0 - b < 64
        if part: a("s_bfm_b64 exec, %d, 0" % (R0 - b))
        a("ds_write_b32 v%d, v%d offset:%d" % (vT + 1, vT, MBOX + 4 * b)); a("ds_write_b32 v%d, v%d offset:%d" % (vT + 1, vT, MBOX2 + 4 * b))
        if part: a("s_mov_b64 exec, -1")
        else: a("v_add_u32 v%d, 64, v%d" % (vT, vT))
    for i in range(4): a("v_mov_b32 v%d, 0" % (vX + i))
    a("ds_write_b128 v%d, %s offset:%d" % (vZero, vr(vX), PW)); a("ds_write_b32 v%d, v%d offset:%d" % (vZero, vZero, PV))
    a("s_waitcnt lgkmcnt(0)")
    a("s_barrier")
    srd(sW, sPtr + 10, WSB); srd(sD, sPtr + 8, 256); srd_scores()
    a("s_add_u32 s%d, s%d, s%d" % (sAt, sPtr + 10, sCtl)); a("s_addc_u32 s%d, s%d, 0" % (sAt + 1, sPtr + 11))
    a("s_mov_b32 s%d, %s" % (sC, f32hex(LOG2E / 16.0)))
    a("s_mov_b32 s%d, %d" % (sNx, R0), "next mailbox slot to fill"); a("s_mov_b32 s%d, 0" % sLast, "pool counter as last seen")
    a("s_mov_b32 s%d, %d" % (sExp, R0), "next round to export"); a("s_mov_b32 s%d, %d" % (sNV, R0), "valid K rounds so far"); a("s_mov_b32 s%d, 0" % sDone)
    a("v_mov_b32 v%d, %s" % (vMx, NEG))
    a("v_lshrrev_b32 v%d, %d, v%d" % (vX + 8, LLPR, vLane), "round inside an export / import batch")
    a("v_and_b32 v%d, %d, v%d" % (vX + 9, LPR - 1, vLane)); a("v_lshlrev_b32 v%d, 4, v%d" % (vX + 9, vX + 9), "16-byte piece inside the round")
    a("s_mov_b64 exec, 1")
    a("s_lshl_b32 s%d, s%d, 2" % (sT2, sPair)); a("s_add_u32 s%d, s%d, 128" % (sT2, sT2), "flag word of the group in d_debug")
    a("s_cmp_lg_u32 s%d, 0" % sJ); a("s_cbranch_scc1 L_h_w0")
    a.c("member 0 clears the group's control line (two pool counters, two completion counters, K-done counter), then raises the flag")
    a("buffer_store_dwordx4 %s, v%d, %s, s%d offen sc0 sc1" % (vr(vX), vZero, sr(sW), sCtl))
    a("buffer_store_dwordx4 %s, v%d, %s, s%d offen offset:16 sc0 sc1" % (vr(vX), vZero, sr(sW), sCtl))
    a("s_waitcnt vmcnt(0)")
    a("v_mov_b32 v%d, 1" % vT)
    a("buffer_store_dword v%d, v%d, %s, s%d offen sc0 sc1" % (vT, vZero, sr(sD), sT2)); a("s_waitcnt vmcnt(0)")
    def read_pw():
        a("ds_read_b128 %s, v%d offset:%d" % (vr(vT), vZero, PW)); a("s_waitcnt lgkmcnt(0)")
        a("v_min_u32 v%d, v%d, v%d" % (vT + 4, vT, vT + 1)); a("v_min3_u32 v%d, v%d, v%d, v%d" % (vT + 4, vT + 4, vT + 2, vT + 3))
        a("v_max_u32 v%d, v%d, v%d" % (vT + 5, vT, vT + 1)); a("v_max3_u32 v%d, v%d, v%d, v%d" % (vT + 5, vT + 5, vT + 2, vT + 3))
        a("s_nop 0")
        a("v_readfirstlane_b32 s%d, v%d" % (sT0, vT + 4), "slowest wave"); a("v_readfirstlane_b32 s%d, v%d" % (sPg, vT + 5), "fastest wave")
    a.label("L_h_w0")
    read_pw()
    a("s_add_u32 s%d, s%d, %d" % (sPg, sPg, NS + LA + 2)); a("s_cmp_le_u32 s%d, s%d" % (sNx, sPg)); a("s_cbranch_scc1 L_h_flag")
    a("s_sleep 16", "workers are still far from the end of their static rounds"); a("s_branch L_h_w0")
    a.label("L_h_flag")
    a("buffer_load_dword v%d, v%d, %s, s%d offen sc0 sc1" % (vT, vZero, sr(sD), sT2)); a("s_waitcnt vmcnt(0)")
    a("v_readfirstlane_b32 s%d, v%d" % (sPg, vT)); a("s_cmp_lg_u32 s%d, 0" % sPg); a("s_cbranch_scc1 L_h_loop")
    a("s_sleep 4"); a("s_branch L_h_flag")

    def tickets(word, mbox, lab_next, lab_stop, kphase):
        gd, n0, n1 = (P.gdk, P.nmink, P.nmaxk) if kphase else (P.gdiv, P.nmin, P.nmax)
        assert n1 <= 31
        a("s_sub_i32 s%d, %d, s%d" % (sN, POOL, sLast), "batch = clamp(remaining >> %d, %d, %d)" % (gd, n0, n1))
        a("s_ashr_i32 s%d, s%d, %d" % (sN, sN, gd))
        a("s_max_i32 s%d, s%d, %d" % (sN, sN, n0)); a("s_min_i32 s%d, s%d, %d" % (sN, sN, n1))
        a("s_sub_i32 s%d, %d, s%d" % (sT1, CAP, sNx), "room left"); a("s_min_i32 s%d, s%d, s%d" % (sN, sN, sT1))
        a("s_cmp_le_i32 s%d, 0" % sN); a("s_cbranch_scc1 " + lab_stop)
        a("s_mov_b32 s%d, s%d" % (sLast, sN))
        a("s_atomic_add s%d, %s, 0x%x glc" % (sLast, sr(sAt, 2), word))
        a("s_lshl_b32 s%d, s%d, 2" % (sT2, sNx)); a("s_add_u32 s%d, s%d, %d" % (sT2, sT2, mbox))
        a("s_lshl_b32 s%d, 1, s%d" % (sT1, sN)); a("s_sub_u32 s%d, s%d, 1" % (sT1, sT1))
        a("s_waitcnt lgkmcnt(0)")
        if not kphase:
            a.c("bring in the scores of these rounds: 8 lanes x 16 bytes per round")
            a("s_lshl_b32 s%d, s%d, 3" % (sT0, sN)); a("s_bfm_b64 exec, s%d, 0" % sT0)
            a("v_add_u32 v%d, s%d, v%d" % (vT, sLast, vX + 8)); a("v_lshl_add_u32 v%d, v%d, 7, v%d" % (vT, vT, vX + 9))
            a("buffer_load_dwordx4 %s, v%d, %s, 0 offen %s" % (vr(vX + 4), vT, sr(sG), P.imp))
            a("v_add_u32 v%d, s%d, v%d" % (vT + 3, sNx, vX + 8)); a("v_lshl_add_u32 v%d, v%d, 7, v%d" % (vT + 3, vT + 3, vX + 9))
            a("s_waitcnt vmcnt(0)")
            a("ds_write_b128 v%d, %s offset:%d" % (vT + 3, vr(vX + 4), SC))
        a("s_mov_b64 exec, 0"); a("s_mov_b32 exec_lo, s%d" % sT1, "lanes 0..n-1 publish one ticket each")
        a("s_add_u32 s%d, s%d, %d" % (sT1, sLast, BASE))
        a("v_add_u32 v%d, s%d, v%d" % (vT + 1, sT1, vLane))
        a("v_lshlrev_b32 v%d, 2, v%d" % (vT + 2, vLane)); a("v_add_u32 v%d, s%d, v%d" % (vT + 2, sT2, vT + 2))
        a("ds_write_b32 v%d, v%d" % (vT + 2, vT + 1))
        a("s_mov_b64 exec, 1")
        if kphase:
            a.c("valid tickets of this batch: clamp(POOL - old, 0, n)")
            a("s_sub_i32 s%d, %d, s%d" % (sT1, POOL, sLast)); a("s_max_i32 s%d, s%d, 0" % (sT1, sT1)); a("s_min_i32 s%d, s%d, s%d" % (sT1, sT1, sN))
            a("s_add_u32 s%d, s%d, s%d" % (sNV, sNV, sT1))
        a("s_add_u32 s%d, s%d, s%d" % (sNx, sNx, sN))
        a("s_add_u32 s%d, s%d, s%d" % (sLast, sLast, sN))
        a("s_cmp_lt_u32 s%d, %d" % (sLast, POOL)); a("s_cbranch_scc1 " + lab_next)
    def fill_invalid(mbox):
        a("s_mov_b64 exec, 0xff")
        a("s_lshl_b32 s%d, s%d, 2" % (sT2, sNx)); a("s_add_u32 s%d, s%d, %d" % (sT2, sT2, mbox))
        a("v_lshlrev_b32 v%d, 2, v%d" % (vT, vLane)); a("v_add_u32 v%d, s%d, v%d" % (vT, sT2, vT))
        a("v_mov_b32 v%d, %d" % (vT + 1, NTICK)); a("ds_write_b32 v%d, v%d" % (vT, vT + 1))
        a("s_mov_b64 exec, 1")

    a.label("L_h_loop")
    read_pw()
    a.c("export the scores of finished head-B rounds: up to 7 rounds, 8 lanes x 16 bytes each")
    a("s_mov_b32 s%d, s%d" % (sMinP, sT0))
    if P.late:
        a("s_cmp_eq_u32 s%d, 0" % sDone); a("s_cbranch_scc1 L_h_noexp", "exports wait for the end of pass 1 (one burst of writes)")
    a("s_min_u32 s%d, s%d, s%d" % (sT0, sT0, sNV)); a("s_sub_i32 s%d, s%d, s%d" % (sT0, sT0, sExp))
    a("s_min_i32 s%d, s%d, %d" % (sT0, sT0, XMAX)); a("s_cmp_le_i32 s%d, 0" % sT0); a("s_cbranch_scc1 L_h_noexp")
    a("s_lshl_b32 s%d, s%d, %d" % (sT1, sT0, LLPR)); a("s_bfm_b64 exec, s%d, 0" % sT1)
    a("v_add_u32 v%d, s%d, v%d" % (vT, sExp, vX + 8), "round")
    a("v_lshlrev_b32 v%d, 2, v%d" % (vT + 1, vT)); a("ds_read_b32 v%d, v%d offset:%d" % (vT + 2, vT + 1, MBOX), "its ticket")
    a("v_lshl_add_u32 v%d, v%d, %d, v%d" % (vT + 3, vT, LSCR, vX + 9)); a("ds_read_b128 %s, v%d offset:%d" % (vr(vX + 4), vT + 3, SC))
    a("s_add_u32 s%d, s%d, s%d" % (sExp, sExp, sT0))
    a("s_waitcnt lgkmcnt(0)")
    a("v_subrev_u32 v%d, %d, v%d" % (vT + 2, BASE, vT + 2)); a("v_lshl_add_u32 v%d, v%d, %d, v%d" % (vT + 2, vT + 2, LSCR, vX + 9))
    if P.exp != "none":
        a("buffer_store_dwordx4 %s, v%d, %s, 0 offen %s" % (vr(vX + 4), vT + 2, sr(sG), P.exp))
    a("v_max3_f32 v%d, v%d, v%d, v%d" % (vMx, vMx, vX + 4, vX + 5)); a("v_max3_f32 v%d, v%d, v%d, v%d" % (vMx, vMx, vX + 6, vX + 7))
    a("s_mov_b64 exec, 1")
    a("s_branch L_h_loop")
    a.label("L_h_noexp")
    a("s_cmp_lg_u32 s%d, 0" % sDone); a("s_cbranch_scc1 L_h_chk")
    if P.usemin: a("s_mov_b32 s%d, s%d" % (sPg, sMinP))
    a("s_add_u32 s%d, s%d, %d" % (sPg, sPg, NS + LA)); a("s_cmp_le_u32 s%d, s%d" % (sNx, sPg)); a("s_cbranch_scc1 L_h_go")
    a("s_sleep 1"); a("s_branch L_h_loop")
    a.label("L_h_go")
    tickets(0x0, MBOX, "L_h_loop", "L_h_stop", True)
    a.label("L_h_stop")
    fill_invalid(MBOX)
    a("s_mov_b32 s%d, 1" % sDone)
    a("s_branch L_h_loop")
    a.label("L_h_chk")
    a("s_cmp_ge_u32 s%d, s%d" % (sExp, sNV)); a("s_cbranch_scc1 L_h_kend")
    a("s_sleep 1"); a("s_branch L_h_loop")
    a.label("L_h_kend")
    a.c("all scores exported: publish this workgroup's head-B max, then count it as done with K")
    a("s_mov_b64 exec, -1")
    for ctl in ("quad_perm:[1,0,3,2]", "quad_perm:[2,3,0,1]", "row_half_mirror", "row_mirror"): dppmax(vMx, ctl)
    a("s_nop 1")
    xrow(vMx, "v_max_f32")
    a("s_mov_b64 exec, 1")
    a("s_lshl_b32 s%d, s%d, 2" % (sT2, sJ)); a("s_add_u32 s%d, s%d, s%d" % (sT2, sT2, sCtl))
    a("buffer_store_dword v%d, v%d, %s, s%d offen offset:128 sc0 sc1" % (vMx, vZero, sr(sW), sT2))
    a("s_waitcnt vmcnt(0)", "scores and max written through")
    a("s_mov_b32 s%d, 1" % sT1); a("s_atomic_add s%d, %s, 0x10 glc" % (sT1, sr(sAt, 2)))
    a("s_mov_b32 s%d, %d" % (sNx, R0)); a("s_mov_b32 s%d, 0" % sLast)
    a("s_waitcnt lgkmcnt(0)")
    a.label("L_h_v0")
    a("ds_read_b32 v%d, v%d offset:%d" % (vT, vZero, PV)); a("s_waitcnt lgkmcnt(0)")
    a("v_readfirstlane_b32 s%d, v%d" % (sPg, vT))
    a("s_add_u32 s%d, s%d, %d" % (sPg, sPg, NS + LAV + 4)); a("s_cmp_le_u32 s%d, s%d" % (sNx, sPg)); a("s_cbranch_scc1 L_h_kd")
    a("s_sleep 16"); a("s_branch L_h_v0")
    a.label("L_h_kd")
    a("s_mov_b32 s%d, 0" % sT1); a("s_atomic_add s%d, %s, 0x10 glc" % (sT1, sr(sAt, 2))); a("s_waitcnt lgkmcnt(0)")
    a("s_cmp_ge_u32 s%d, %d" % (sT1, S)); a("s_cbranch_scc1 L_h_mx")
    a("s_sleep 4"); a("s_branch L_h_kd")
    a.label("L_h_mx")
    a("s_mov_b64 exec, 0xff")
    a("v_lshlrev_b32 v%d, 2, v%d" % (vT, vLane))
    a("buffer_load_dword v%d, v%d, %s, s%d offen offset:128 sc0 sc1" % (vMx, vT, sr(sW), sCtl)); a("s_waitcnt vmcnt(0)")
    for ctl in ("quad_perm:[1,0,3,2]", "quad_perm:[2,3,0,1]", "row_half_mirror"): dppmax(vMx, ctl)
    a("s_mov_b64 exec, 1")
    a("v_mul_f32 v%d, s%d, v%d" % (vMx, sC, vMx))
    a("ds_write_b32 v%d, v%d offset:%d" % (vZero, vMx, MCB))
    sOld, sPn, sHave = 88, 89, 91
    def vsize():
        a("s_sub_i32 s%d, %d, s%d" % (sN, POOL, sLast), "batch = clamp(remaining >> %d, %d, %d)" % (P.gdiv, P.nmin, P.nmax))
        a("s_ashr_i32 s%d, s%d, %d" % (sN, sN, P.gdiv))
        a("s_max_i32 s%d, s%d, %d" % (sN, sN, P.nmin)); a("s_min_i32 s%d, s%d, %d" % (sN, sN, P.nmax))
        a("s_sub_i32 s%d, %d, s%d" % (sT1, CAP, sNx), "room left"); a("s_min_i32 s%d, s%d, s%d" % (sN, sN, sT1))
    assert P.nmax <= XMAX
    a.label("L_h_vloop")
    a.c("no add in flight: wait until the workers come close to the end of what they have")
    a("ds_read_b32 v%d, v%d offset:%d" % (vT, vZero, PV)); a("s_waitcnt lgkmcnt(0)")
    a("v_readfirstlane_b32 s%d, v%d" % (sPg, vT))
    a("s_add_u32 s%d, s%d, %d" % (sPg, sPg, NS + LAV)); a("s_cmp_le_u32 s%d, s%d" % (sNx, sPg)); a("s_cbranch_scc1 L_h_vgo")
    a("s_sleep 1"); a("s_branch L_h_vloop")
    a.label("L_h_vgo")
    vsize()
    a("s_cmp_le_i32 s%d, 0" % sN); a("s_cbranch_scc1 L_h_vstop")
    a("s_mov_b32 s%d, s%d" % (sLast, sN)); a("s_atomic_add s%d, %s, 0xc glc" % (sLast, sr(sAt, 2)))
    a("s_mov_b32 s%d, s%d" % (sPn, sN))
    a("s_waitcnt lgkmcnt(0)")
    a.label("L_h_vhave")
    a.c("batch (old = sLast, size = sPn) is ours: import its scores, meanwhile ask for the next one if it is due")
    a("s_mov_b32 s%d, s%d" % (sOld, sLast))
    a("s_lshl_b32 s%d, s%d, %d" % (sT0, sPn, LLPR)); a("s_bfm_b64 exec, s%d, 0" % sT0)
    a("v_add_u32 v%d, s%d, v%d" % (vT, sOld, vX + 8)); a("v_lshl_add_u32 v%d, v%d, %d, v%d" % (vT, vT, LSCR, vX + 9))
    a("buffer_load_dwordx4 %s, v%d, %s, 0 offen %s" % (vr(vX + 4), vT, sr(sG), P.imp))
    a("v_add_u32 v%d, s%d, v%d" % (vT + 3, sNx, vX + 8)); a("v_lshl_add_u32 v%d, v%d, %d, v%d" % (vT + 3, vT + 3, LSCR, vX + 9))
    a("s_mov_b64 exec, 1")
    a("ds_read_b32 v%d, v%d offset:%d" % (vT, vZero, PV))
    a("s_lshl_b32 s%d, s%d, 2" % (sT2, sNx)); a("s_add_u32 s%d, s%d, %d" % (sT2, sT2, MBOX2), "mailbox slot of this batch")
    a("s_add_u32 s%d, s%d, s%d" % (sNx, sNx, sPn)); a("s_add_u32 s%d, s%d, s%d" % (sLast, sOld, sPn))
    a("s_mov_b32 s%d, 0" % sHave); a("s_mov_b32 s%d, s%d" % (sT3, sPn))
    a("s_waitcnt lgkmcnt(0)")
    a("v_readfirstlane_b32 s%d, v%d" % (sPg, vT))
    a("s_cmp_ge_u32 s%d, %d" % (sLast, POOL)); a("s_cbranch_scc1 L_h_vimp", "pool exhausted: nothing more to ask for")
    a("s_add_u32 s%d, s%d, %d" % (sPg, sPg, NS + LAV + P.vpre)); a("s_cmp_le_u32 s%d, s%d" % (sNx, sPg)); a("s_cbranch_scc0 L_h_vimp")
    vsize()
    a("s_cmp_le_i32 s%d, 0" % sN); a("s_cbranch_scc1 L_h_vimp")
    a("s_mov_b32 s%d, s%d" % (sPn, sN)); a("s_mov_b32 s%d, 1" % sHave)
    a("s_mov_b32 s%d, s%d" % (sLast, sN)); a("s_atomic_add s%d, %s, 0xc glc" % (sLast, sr(sAt, 2)))
    a.label("L_h_vimp")
    a("s_lshl_b32 s%d, s%d, %d" % (sT0, sT3, LLPR)); a("s_bfm_b64 exec, s%d, 0" % sT0)
    a("s_waitcnt vmcnt(0)")
    a("ds_write_b128 v%d, %s offset:%d" % (vT + 3, vr(vX + 4), SC))
    a("s_bfm_b64 exec, s%d, 0" % sT3, "lanes 0..n-1 publish one ticket each")
    a("s_add_u32 s%d, s%d, %d" % (sT1, sOld, BASE))
    a("v_add_u32 v%d, s%d, v%d" % (vT + 1, sT1, vLane))
    a("v_lshlrev_b32 v%d, 2, v%d" % (vT + 2, vLane)); a("v_add_u32 v%d, s%d, v%d" % (vT + 2, sT2, vT + 2))
    a("ds_write_b32 v%d, v%d" % (vT + 2, vT + 1))
    a("s_mov_b64 exec, 1")
    a("s_cmp_lg_u32 s%d, 0" % sHave); a("s_cbranch_scc0 L_h_vnext")
    a("s_waitcnt lgkmcnt(0)"); a("s_branch L_h_vhave")
    a.label("L_h_vnext")
    a("s_cmp_lt_u32 s%d, %d" % (sLast, POOL)); a("s_cbranch_scc1 L_h_vloop")
    a.label("L_h_vstop")
    fill_invalid(MBOX2)
    a("s_waitcnt lgkmcnt(0)")
    a("s_endpgm")

    lds = max(SC + CAP * SCR, P.lds)
    out = HEADER + "; @launch grid=(%d,1,1) block=(%d,1,1) lds=%d\n" % (NWG, (W + 1) * 64, lds)
    out += DOC.format(CK=CK, TK=TK, R0=R0)
    out += '.amdgcn_target "amdgcn-amd-amdhsa--gfx950"\n.text\n'
    out += ".globl %s_kernel\n.p2align 8\n.type %s_kernel,@function\n%s_kernel:\n" % (NAME, NAME, NAME)
    out += a.text()
    out += '.section .rodata,"a"\n.p2align 6\n.amdhsa_kernel %s_kernel\n' % NAME
    out += "  .amdhsa_next_free_vgpr %d\n  .amdhsa_next_free_sgpr 96\n  .amdhsa_accum_offset %d\n" % (nv, (nv + 3) // 4 * 4)
    out += "  .amdhsa_group_segment_fixed_size 0\n  .amdhsa_kernarg_size 48\n  .amdhsa_user_sgpr_count 2\n"
    out += "  .amdhsa_user_sgpr_kernarg_segment_ptr 1\n  .amdhsa_system_sgpr_workgroup_id_x 1\n.end_amdhsa_kernel\n"
    return out

if __name__ == "__main__":
    ap = argparse.ArgumentParser()
    ap.add_argument("--mg", type=int, default=2); ap.add_argument("--r0", type=int, default=0)
    ap.add_argument("--stages", type=int, default=2)
    ap.add_argument("--cap", type=int, default=256)
    ap.add_argument("--la", type=int, default=2); ap.add_argument("--lav", type=int, default=2)
    ap.add_argument("--gdiv", type=int, default=5); ap.add_argument("--nmax", type=int, default=7); ap.add_argument("--nmin", type=int, default=1)
    ap.add_argument("--lds", type=int, default=0); ap.add_argument("--diag", type=int, default=0)
    ap.add_argument("--exp", default="sc0 sc1"); ap.add_argument("--imp", default="sc0 sc1")
    ap.add_argument("--late", type=int, default=1); ap.add_argument("--vpre", type=int, default=2)
    ap.add_argument("--gdk", type=int, default=3); ap.add_argument("--nmink", type=int, default=4); ap.add_argument("--nmaxk", type=int, default=16)
    ap.add_argument("--policy", default="nt"); ap.add_argument("--usemin", type=int, default=0)
    ap.add_argument("-o", default="-")
    P = ap.parse_args(); t = gen(P)
    (sys.stdout if P.o == "-" else open(P.o, "w")).write(t)
```

```python
import argparse, sys
from gen_final import A, vr, sr, f32hex, HEADER, NAME, NH, SKV, DH, ROWB, HEADB, LOG2E

DOC = """;
;    16 MiB of K and of V, cut into rounds of {CK} keys ({TK} per worker wave); round t is at byte t*{CB}.
;    In each pass a workgroup first runs its {R0} static rounds (contiguous), then takes rounds of the pool
;    (the last {POOL} rounds of head B) from a per-group counter in d_ws: load balance across the dies.
"""

def gen(P):
    W, S = 4, 8
    NWG = (NH // 2) * S
    MG, NS, LA, LAV = P.mg, P.stages, P.la, P.lav
    assert MG in (2, 4)
    TK = 4 * MG; TB = TK * ROWB; CK = W * TK; CB = CK * ROWB
    NTH = SKV // CK; NTICK = 2 * NTH
    R0 = P.r0 if P.r0 else NTH // S
    BASE = R0 * S; POOL = NTICK - BASE
    assert NTH <= BASE < NTICK
    NL = 2 * MG
    CAP = P.cap
    assert NS <= R0 < CAP and CAP * S >= NTICK
    REC = 1024 + 128
    CTRL = 0x100000
    SCG = 0x200000
    SCR = W * TK * 4
    LSCR = SCR.bit_length() - 1
    LPR = SCR // 16
    LLPR = LPR.bit_length() - 1
    XMAX = 63 // LPR
    WSB = SCG + (NH // 2) * POOL * SCR
    ML = 2 * W * 1024
    PW, PV, MCB = ML + 224, ML + 240, ML + 244
    MBN = (CAP + 16 + 255) // 256 * 256
    MBOX = ML + 256
    MBOX2 = MBOX + MBN * 4
    SC = MBOX2 + MBN * 4
    NEG = "0xff7fffff"
    pol = " " + P.policy
    KW = (NS - 1) * NL
    D = P.diag
    BIG = 0x7fffffff
    OOB = 0x7fffff00

    a = A()
    sV, sG, sCur, sW, sO, sD = 4, 8, 12, 16, 44, 48
    sQ = 16
    sOff, sOff2, sLim, sPair, sJ, sWave, sC, sWOff = 20, 21, 22, 23, 24, 25, 26, 27
    sT0, sT1, sT2, sT3 = 28, 29, 30, 31
    sPtr = 32
    sTk = 64
    sCK, sNK = 68, 69
    sCtl, sJ0 = 70, 71
    sNx, sPg, sN, sLast = 72, 73, 74, 75
    sSave, sAt = 76, 78
    sSel = 80
    sMode, sExp, sNV, sDone = 84, 85, 86, 87
    sMinP = 90
    vKoff, vVoff, vLane = 1, 2, 3
    vQ, vMask = 4, 12
    vM, vL, vMc, vCur = 16, 17, 18, 19
    vO, vC, vS, vT = 20, 28, 44, 48
    vTk, vMaddr, vPub, vZero, vRnd, vSad = 54, 55, 56, 57, 58, 59
    vMA, vGoff, vPubV, vRndV = 60, 61, 62, 63
    vMB = 82
    vQ2, vOA, vMcA, vLA = 64, 72, 80, 81
    vG = 36
    vBuf = 84
    Breg = lambda s, i: vBuf + s * 4 * NL + 4 * i
    nv = max(vBuf + NS * 4 * NL, vBuf + 64)
    assert NS <= 4 and nv <= 256

    def issue(s):
        for m in range(MG):
            for j in range(2):
                off, so = m * 2048 + j * 256, sOff
                if off >= 4096: off, so = off - 4096, sOff2
                a("buffer_load_dwordx4 %s, v%d, %s, s%d offen offset:%d%s" % (vr(Breg(s, 2 * m + j)), vCur, sr(sCur), so, off, pol))
    def set_off(src):
        a("s_mul_i32 s%d, s%d, %d" % (sOff, src, CB)); a("s_add_u32 s%d, s%d, s%d" % (sOff, sOff, sWOff))
        if MG > 2: a("s_add_u32 s%d, s%d, 4096" % (sOff2, sOff))
    def srd(dst, lo, size):
        a("s_mov_b32 s%d, s%d" % (dst, lo)); a("s_and_b32 s%d, s%d, 0xffff" % (dst + 1, lo + 1))
        a("s_mov_b32 s%d, %d" % (dst + 2, size)); a("s_mov_b32 s%d, 0x00020000" % (dst + 3))
    def srd_scores():
        a("s_mul_i32 s%d, s%d, %d" % (sT2, sPair, POOL * SCR)); a("s_add_u32 s%d, s%d, 0x%x" % (sT2, sT2, SCG))
        a("s_add_u32 s%d, s%d, s%d" % (sG, sPtr + 10, sT2)); a("s_addc_u32 s%d, s%d, 0" % (sG + 1, sPtr + 11))
        a("s_and_b32 s%d, s%d, 0xffff" % (sG + 1, sG + 1))
        a("s_mov_b32 s%d, %d" % (sG + 2, POOL * SCR)); a("s_mov_b32 s%d, 0x00020000" % (sG + 3))
    def xrow(v, op):
        for sw in ("v_permlane16_swap_b32", "v_permlane32_swap_b32"):
            a("v_mov_b32 v%d, v%d" % (vT + 1, v)); a("s_nop 1")
            a("%s v%d, v%d" % (sw, v, vT + 1)); a("s_nop 1")
            a("%s v%d, v%d, v%d" % (op, v, v, vT + 1))
    def dppmax(v, ctl):
        a("s_nop 1"); a("v_max_f32_dpp v%d, v%d, v%d %s row_mask:0xf bank_mask:0xf" % (v, v, v, ctl))

    if D: a("s_memrealtime s[52:53]"); a("s_mov_b32 s82, 0"); a("s_mov_b32 s83, 0")
    a("s_cmp_ge_u32 s2, %d" % NWG, "workgroups past the data leave at once")
    a("s_cbranch_scc1 L_done")
    a("s_load_dwordx4 %s, s[0:1], 0" % sr(sPtr), "q, k")
    a("s_load_dwordx4 %s, s[0:1], 16" % sr(sPtr + 4), "v, out")
    a("s_load_dwordx4 %s, s[0:1], 32" % sr(sPtr + 8), "debug, ws")
    a("v_and_b32 v%d, 63, v0" % vLane)
    a("v_lshrrev_b32 v%d, 6, v0" % vT)
    a("v_lshrrev_b32 v%d, 4, v%d" % (vT + 1, vLane), "g = lane>>4")
    a("v_readfirstlane_b32 s%d, v%d" % (sWave, vT))
    a("s_lshr_b32 s%d, s2, 3" % sPair, "group = head pair")
    a("s_and_b32 s%d, s2, 7" % sJ, "member of the group")
    a.c("K fragment (A operand): lane(i=4*key+p, g) reads key row 'key', 16 bytes at g*64 + p*16 (+256 for the 2nd half)")
    a("v_bfe_u32 v%d, v%d, 2, 2" % (vT + 2, vLane)); a("v_lshlrev_b32 v%d, 9, v%d" % (vT + 2, vT + 2))
    a("v_lshl_add_u32 v%d, v%d, 6, v%d" % (vT + 2, vT + 1, vT + 2)); a("v_and_b32 v%d, 3, v%d" % (vT + 3, vLane))
    a("v_lshl_add_u32 v%d, v%d, 4, v%d" % (vKoff, vT + 3, vT + 2))
    a.c("V fragment (B operand): lane(j, g) reads key row g, 16 bytes at j*16 (+256 for the 2nd half)")
    a("v_and_b32 v%d, 15, v%d" % (vT + 4, vLane)); a("v_lshlrev_b32 v%d, 4, v%d" % (vT + 4, vT + 4))
    a("v_lshl_add_u32 v%d, v%d, 9, v%d" % (vVoff, vT + 1, vT + 4))
    a.c("q fragment (B operand): lane(n, g) holds the q chunk that matches K chunk g*64 + (n&3)*16")
    a("v_lshlrev_b32 v%d, 4, v%d" % (vT + 3, vT + 3)); a("v_lshl_add_u32 v%d, v%d, 6, v%d" % (vT + 5, vT + 1, vT + 3))
    a("v_mov_b32 v%d, 0" % vZero)
    a("v_mov_b32 v%d, v%d" % (vCur, vKoff))
    a("s_lshr_b32 s%d, s%d, 8" % (sT1, sPair)); a("s_lshl_b32 s%d, s%d, 24" % (sT0, sPair), "pair * 16 MiB")
    a("s_mul_i32 s%d, s%d, %d" % (sWOff, sWave, TB))
    a("s_mul_i32 s%d, s%d, %d" % (sJ0, sJ, R0), "first static ticket")
    for s in range(NS): a("s_add_u32 s%d, s%d, %d" % (sTk + s, sJ0, s))
    a("s_lshl_b32 s%d, s%d, 8" % (sCtl, sPair)); a("s_add_u32 s%d, s%d, 0x%x" % (sCtl, sCtl, CTRL), "control line of the group (offset in d_ws)")
    a.c("score slot of this lane inside a round: wave*TK*4 + g*MG*4")
    a("v_mul_u32_u24 v%d, %d, v%d" % (vGoff, MG * 4, vT + 1)); a("s_mul_i32 s%d, s%d, %d" % (sT2, sWave, TK * 4)); a("v_add_u32 v%d, s%d, v%d" % (vGoff, sT2, vGoff))
    set_off(sTk)
    a("s_cmp_eq_u32 s%d, %d" % (sWave, W))
    a("s_waitcnt lgkmcnt(0)")
    a("s_cbranch_scc1 L_helper")
    a("s_add_u32 s%d, s%d, s%d" % (sCur, sPtr + 2, sT0)); a("s_addc_u32 s%d, s%d, s%d" % (sCur + 1, sPtr + 3, sT1))
    a("s_and_b32 s%d, s%d, 0xffff" % (sCur + 1, sCur + 1))
    a("s_mov_b32 s%d, %d" % (sCur + 2, 2 * HEADB), "tickets past the pair's range read nothing"); a("s_mov_b32 s%d, 0x00020000" % (sCur + 3))
    a("s_add_u32 s%d, s%d, s%d" % (sV, sPtr + 4, sT0)); a("s_addc_u32 s%d, s%d, s%d" % (sV + 1, sPtr + 5, sT1))
    a("s_and_b32 s%d, s%d, 0xffff" % (sV + 1, sV + 1))
    issue(0)
    srd(sQ, sPtr, NH * ROWB)
    a("s_lshl_b32 s%d, s%d, 10" % (sT0, sPair))
    for i, dst in enumerate((vQ, vQ + 4, vQ2, vQ2 + 4)):
        a("buffer_load_dwordx4 %s, v%d, %s, s%d offen offset:%d" % (vr(dst), vT + 5, sr(sQ), sT0, 256 * i))
    for s in range(1, NS): set_off(sTk + s); issue(s)
    srd(sO, sPtr + 6, NH * ROWB)
    a.c("P operand masks: element e=(lane&7) of the 8-wide k slab is the only live one")
    a("v_and_b32 v%d, 1, v%d" % (vT, vLane)); a("v_lshlrev_b32 v%d, 4, v%d" % (vT, vT)); a("v_mov_b32 v%d, 0xffff" % (vT + 1))
    a("v_lshlrev_b32 v%d, v%d, v%d" % (vT, vT, vT + 1)); a("v_bfe_u32 v%d, v%d, 1, 2" % (vT + 1, vLane))
    for r in range(4):
        a("v_cmp_eq_u32 vcc, %d, v%d" % (r, vT + 1)); a("s_nop 1"); a("v_cndmask_b32 v%d, 0, v%d, vcc" % (vMask + r, vT))
    a("v_mov_b32 v%d, %s" % (vM, NEG)); a("v_mov_b32 v%d, 0" % vL)
    for i in range(8): a("v_mov_b32 v%d, 0" % (vO + i))
    a("s_mov_b32 s%d, %s" % (sC, f32hex(LOG2E / 16.0)), "log2(e) / sqrt(256)")
    a("s_mov_b32 s%d, %d" % (sLim, NTH), "tickets below this belong to head A")
    a("s_mov_b32 s%d, 0" % sCK); a("s_mov_b32 s%d, 0x%x" % (sNK, BIG))
    a("v_mov_b32 v%d, %d" % (vMaddr, MBOX + 4 * NS)); a("v_mov_b32 v%d, 0" % vRnd); a("v_mov_b32 v%d, 0" % vRndV)
    a("s_lshl_b32 s%d, s%d, 2" % (sT0, sWave)); a("s_add_u32 s%d, s%d, %d" % (sT0, sT0, PW)); a("v_mov_b32 v%d, s%d" % (vPub, sT0), "this wave's progress word")
    a("v_mov_b32 v%d, %d" % (vPubV, PV))
    a("v_add_u32 v%d, %d, v%d" % (vSad, SC, vGoff))
    a("s_barrier", "mailboxes initialised by the ticket wave")

    for s in range(NS):
        t = "%d" % s
        a.label("L_k_" + t)
        a("s_cmp_ge_u32 s%d, s%d" % (sCK, sNK)); a("s_cbranch_scc1 L_tov_" + t)
        a.label("L_k2_" + t)
        a("s_cmp_lt_u32 s%d, s%d" % (sTk + s, sLim)); a("s_cbranch_scc0 L_ksw_" + t)
        a.label("L_kgo_" + t)
        a("ds_write_b32 v%d, v%d" % (vPub, vRnd), "publish progress (rounds whose scores are in LDS)")
        a("ds_read_b32 v%d, v%d" % (vTk, vMaddr), "next job's ticket")
        a("s_waitcnt vmcnt(%d)" % KW, "K tile")
        for j in range(2):
            for m in range(MG):
                a("v_mfma_f32_16x16x32_bf16 %s, %s, %s, %s" % (vr(vC + 4 * m), vr(Breg(s, 2 * m + j)), vr(vQ + 4 * j), "0" if j == 0 else vr(vC + 4 * m)))
        a("s_waitcnt lgkmcnt(0)")
        a("v_readfirstlane_b32 s%d, v%d" % (sTk + s, vTk))
        a("s_cmp_ge_u32 s%d, %d" % (sTk + s, NTICK)); a("s_cbranch_scc1 L_kx_" + t, "EMPTY (-1) or 'no more K work'")
        a.label("L_khave_" + t)
        set_off(sTk + s); issue(s)
        a("v_add_u32 v%d, 4, v%d" % (vMaddr, vMaddr))
        a("s_nop 1")
        for m in range(MG):
            a("v_mov_b32_dpp v%d, v%d quad_perm:[0,0,0,0] row_mask:0xf bank_mask:0xf" % (vS + m, vC + 4 * m))
        for r in range(1, 4):
            if MG < 4: a("s_nop 1")
            for m in range(MG):
                a("v_add_f32_dpp v%d, v%d, v%d quad_perm:[%d,%d,%d,%d] row_mask:0xf bank_mask:0xf" % (vS + m, vC + 4 * m + r, vS + m, r, r, r, r))
        a("%s v%d, %s" % ("ds_write_b64" if MG == 2 else "ds_write_b128", vSad, vr(vS, MG)), "scores of this tile")
        for m in range(0, MG, 2): a("v_max3_f32 v%d, v%d, v%d, v%d" % (vM, vM, vS + m, vS + m + 1))
        a("v_add_u32 v%d, %d, v%d" % (vSad, SCR, vSad)); a("v_add_u32 v%d, 1, v%d" % (vRnd, vRnd))
        a("s_add_u32 s%d, s%d, 1" % (sCK, sCK))
    a("s_branch L_k_0")
    for s in range(NS):
        t = "%d" % s
        a.label("L_kx_" + t)
        a("s_cmp_eq_u32 s%d, -1" % (sTk + s)); a("s_cbranch_scc0 L_kinv_" + t)
        if D: a("s_add_u32 s82, s82, 1")
        a("s_sleep 1")
        a("ds_read_b32 v%d, v%d" % (vTk, vMaddr)); a("s_waitcnt lgkmcnt(0)")
        a("v_readfirstlane_b32 s%d, v%d" % (sTk + s, vTk))
        a("s_cmp_ge_u32 s%d, %d" % (sTk + s, NTICK)); a("s_cbranch_scc1 L_kx_" + t)
        a("s_branch L_khave_" + t)
        a.label("L_kinv_" + t)
        a.c("K tickets are exhausted: from now on the issue stream is on V and walks the second mailbox")
        a("s_add_u32 s%d, s%d, %d" % (sNK, sCK, NS), "number of K rounds of this workgroup")
        a("s_mov_b32 s%d, s%d" % (sCur, sV)); a("s_mov_b32 s%d, s%d" % (sCur + 1, sV + 1))
        a("v_mov_b32 v%d, v%d" % (vCur, vVoff))
        a("s_mov_b32 s%d, s%d" % (sTk + s, sJ0))
        a("v_mov_b32 v%d, %d" % (vMaddr, MBOX2))
        a("s_branch L_khave_" + t)
        a.label("L_ksw_" + t)
        if D: a("s_memrealtime s[92:93]")
        a("s_cmp_eq_u32 s%d, %d" % (sLim, NTH)); a("s_cbranch_scc0 L_kfrz_" + t)
        a("s_waitcnt vmcnt(%d)" % KW, "q of head B has landed")
        a("v_mov_b32 v%d, v%d" % (vMA, vM)); a("v_mov_b32 v%d, %s" % (vM, NEG))
        for i in range(8): a("v_mov_b32 v%d, v%d" % (vQ + i, vQ2 + i))
        a("s_mov_b32 s%d, %d" % (sLim, BASE + 1 if BASE == NTH else BASE))
        if BASE == NTH:
            a("v_mov_b32 v%d, %s" % (vMB, NEG)); a("s_mov_b32 s%d, 0x%x" % (sLim, BIG))
            a("s_branch L_kgo_" + t)
        else:
            a("s_branch L_k2_" + t)
        a.label("L_kfrz_" + t)
        a("v_mov_b32 v%d, v%d" % (vMB, vM), "max of this wave's static head-B scores")
        a("s_mov_b32 s%d, 0x%x" % (sLim, BIG))
        a("s_branch L_kgo_" + t)
        a.label("L_tov_" + t)
        a("s_mov_b32 s%d, %d" % (sT3, s))
        a("s_branch L_tov")
    a.label("L_tov")
    if D: a("s_memrealtime s[54:55]")
    a("ds_write_b32 v%d, v%d" % (vPub, vRnd), "all K rounds of this wave are scored")
    a("s_cmp_eq_u32 s%d, 0x%x" % (sLim, BIG)); a("s_cbranch_scc1 L_tov_sw")
    a("v_mov_b32 v%d, v%d" % (vMB, vM))
    a("s_cmp_eq_u32 s%d, %d" % (sLim, NTH)); a("s_cbranch_scc0 L_tov_sw")
    a("v_mov_b32 v%d, v%d" % (vMA, vM)); a("v_mov_b32 v%d, %s" % (vMB, NEG))
    a.label("L_tov_sw")
    xrow(vMA, "v_max_f32"); xrow(vMB, "v_max_f32")
    a("v_mul_f32 v%d, s%d, v%d" % (vMc, sC, vMA), "true max of this wave's head-A scores")
    a("v_mul_f32 v%d, s%d, v%d" % (vMB, sC, vMB), "and of its static head-B scores")
    a("v_add_u32 v%d, %d, v%d" % (vSad, SC, vGoff), "back to round 0")
    a("s_mov_b32 s%d, %d" % (sLim, NTH))
    for s in range(NS - 1):
        a("s_cmp_eq_u32 s%d, %d" % (sT3, s)); a("s_cbranch_scc1 L_v_%d" % s)
    a("s_branch L_v_%d" % (NS - 1))

    for s in range(NS):
        t = "%d" % s
        a.label("L_v_" + t)
        a("s_cmp_lt_u32 s%d, s%d" % (sTk + s, sLim)); a("s_cbranch_scc0 L_vsw_" + t)
        a("ds_max_u32 v%d, v%d" % (vPubV, vRndV), "publish progress")
        a("ds_read_b32 v%d, v%d" % (vTk, vMaddr), "next job's ticket")
        a("%s %s, v%d" % ("ds_read_b64" if MG == 2 else "ds_read_b128", vr(vS, MG), vSad), "scores of this tile")
        a("v_add_u32 v%d, %d, v%d" % (vSad, SCR, vSad)); a("v_add_u32 v%d, 1, v%d" % (vRndV, vRndV))
        a("s_waitcnt lgkmcnt(0)")
        a("v_readfirstlane_b32 s%d, v%d" % (sTk + s, vTk))
        a("s_cmp_eq_u32 s%d, -1" % (sTk + s)); a("s_cbranch_scc1 L_vpoll_" + t)
        a.label("L_vhave_" + t)
        set_off(sTk + s)
        a("v_add_u32 v%d, 4, v%d" % (vMaddr, vMaddr))
        for m in range(MG): a("v_fma_f32 v%d, v%d, s%d, -v%d" % (vS + m, vS + m, sC, vMc))
        for m in range(MG): a("v_exp_f32 v%d, v%d" % (vS + m, vS + m))
        a("s_nop 0")
        for m in range(MG): a("v_add_f32 v%d, v%d, v%d" % (vL, vL, vS + m))
        for m in range(MG): a("v_cvt_pk_bf16_f32 v%d, v%d, v%d" % (vS + m, vS + m, vS + m))
        for m in range(MG):
            for r in range(4): a("v_and_b32 v%d, v%d, v%d" % (vC + 4 * m + r, vS + m, vMask + r))
        a("s_waitcnt vmcnt(%d)" % KW, "V tile")
        a("s_nop 1")
        for m in range(MG):
            for h in range(2):
                a("v_mfma_f32_16x16x32_bf16 %s, %s, %s, %s" % (vr(vO + 4 * h), vr(vC + 4 * m), vr(Breg(s, 2 * m + h)), vr(vO + 4 * h)))
        issue(s)
    a("s_branch L_v_0")
    for s in range(NS):
        t = "%d" % s
        a.label("L_vpoll_" + t)
        if D: a("s_add_u32 s83, s83, 1")
        a("s_sleep 1")
        a("ds_read_b32 v%d, v%d" % (vTk, vMaddr)); a("s_waitcnt lgkmcnt(0)")
        a("v_readfirstlane_b32 s%d, v%d" % (sTk + s, vTk))
        a("s_cmp_eq_u32 s%d, -1" % (sTk + s)); a("s_cbranch_scc1 L_vpoll_" + t)
        a("s_branch L_vhave_" + t)
        a.label("L_vsw_" + t)
        a("s_cmp_eq_u32 s%d, %d" % (sLim, NTICK)); a("s_cbranch_scc1 L_epi", "past head B: done")
        a("s_nop 7")
        a("s_cmp_eq_u32 s%d, %d" % (sLim, NTH)); a("s_cbranch_scc0 L_vrs_" + t)
        if D: a("s_memrealtime s[88:89]")
        for i in range(8): a("v_mov_b32 v%d, v%d" % (vOA + i, vO + i)); a("v_mov_b32 v%d, 0" % (vO + i))
        a("v_mov_b32 v%d, v%d" % (vMcA, vMc)); a("v_mov_b32 v%d, v%d" % (vLA, vL)); a("v_mov_b32 v%d, 0" % vL)
        a("v_mov_b32 v%d, v%d" % (vMc, vMB))
        a("s_mov_b32 s%d, %d" % (sLim, BASE))
        if BASE != NTH: a("s_branch L_v_" + t)
        a.label("L_vrs_" + t)
        a.c("rounds of the pool: the reference becomes the max over the pool's scores (left by the ticket wave) and the static ones")
        a("v_mov_b32 v%d, %d" % (vT, MCB)); a("ds_read_b32 v%d, v%d" % (vT + 1, vT)); a("s_waitcnt lgkmcnt(0)")
        a("v_max_f32 v%d, v%d, v%d" % (vT + 1, vT + 1, vMc))
        a("v_sub_f32 v%d, v%d, v%d" % (vT, vMc, vT + 1)); a("v_mov_b32 v%d, v%d" % (vMc, vT + 1)); a("v_exp_f32 v%d, v%d" % (vT, vT))
        a("s_nop 0")
        a("v_mul_f32 v%d, v%d, v%d" % (vL, vL, vT))
        for i in range(8): a("v_mul_f32 v%d, v%d, v%d" % (vO + i, vO + i, vT))
        a("s_mov_b32 s%d, %d" % (sLim, NTICK))
        a("s_branch L_v_" + t)

    f = open("gen_final.py").read()
    env = dict(locals()); env.update(vr=vr, sr=sr)
    j0 = f.index('    a.label("L_epi")'); j1 = f.index('    # ================= ticket wave')
    body = f[j0:j1].replace('''    if D: a("s_memrealtime s[56:57]")
    a("s_nop 7")''', '''    if D: a("s_memrealtime s[56:57]")
    srd(sW, sPtr + 10, WSB)
    a("s_nop 7")''')
    body = body.replace('(MBOX + 4 * NS - (W * 1024 + 128 + 4), vMaddr)', '(MBOX2 + 4 * NS - (W * 1024 + 128 + 4), vMaddr)')
    if D:
        body = body.replace('''    a.label("L_done")''', '''    if D:
        a("s_add_u32 s28, s28, 0x80000")
        a("v_mov_b32 v16, s88"); a("v_mov_b32 v17, s83"); a("v_mov_b32 v18, s68"); a("v_mov_b32 v19, s82"); a("v_mov_b32 v20, s92"); a("buffer_store_dword v20, v12, s[60:63], s28 offen offset:16")
        a("buffer_store_dwordx4 v[16:19], v12, s[60:63], s28 offen")
    a.label("L_done")''')
    import textwrap
    exec(textwrap.dedent(body), env)

    vX, vMx = 20, 30
    a.label("L_helper")
    a("s_setprio 3")
    a.c("mailboxes: M[k] = j*R0 + k for the static rounds, EMPTY (-1) after them; progress words = 0")
    for i in range(4): a("v_mov_b32 v%d, -1" % (vT + i))
    a("v_lshlrev_b32 v%d, 4, v%d" % (vT + 4, vLane))
    for i in range(2 * MBN * 4 // 1024): a("ds_write_b128 v%d, %s offset:%d" % (vT + 4, vr(vT), MBOX + 1024 * i))
    a("v_add_u32 v%d, s%d, v%d" % (vT, sJ0, vLane)); a("v_lshlrev_b32 v%d, 2, v%d" % (vT + 1, vLane))
    for b in range(0, R0, 64):
        part = R0 - b < 64
        if part: a("s_bfm_b64 exec, %d, 0" % (R0 - b))
        a("ds_write_b32 v%d, v%d offset:%d" % (vT + 1, vT, MBOX + 4 * b)); a("ds_write_b32 v%d, v%d offset:%d" % (vT + 1, vT, MBOX2 + 4 * b))
        if part: a("s_mov_b64 exec, -1")
        else: a("v_add_u32 v%d, 64, v%d" % (vT, vT))
    for i in range(4): a("v_mov_b32 v%d, 0" % (vX + i))
    a("ds_write_b128 v%d, %s offset:%d" % (vZero, vr(vX), PW)); a("ds_write_b32 v%d, v%d offset:%d" % (vZero, vZero, PV))
    a("s_waitcnt lgkmcnt(0)")
    a("s_barrier")
    srd(sW, sPtr + 10, WSB); srd(sD, sPtr + 8, 256); srd_scores()
    a("s_add_u32 s%d, s%d, s%d" % (sAt, sPtr + 10, sCtl)); a("s_addc_u32 s%d, s%d, 0" % (sAt + 1, sPtr + 11))
    a("s_mov_b32 s%d, %s" % (sC, f32hex(LOG2E / 16.0)))
    a("s_mov_b32 s%d, %d" % (sNx, R0), "next mailbox slot to fill"); a("s_mov_b32 s%d, 0" % sLast, "pool counter as last seen")
    a("s_mov_b32 s%d, %d" % (sExp, R0), "next round to export"); a("s_mov_b32 s%d, %d" % (sNV, R0), "valid K rounds so far"); a("s_mov_b32 s%d, 0" % sDone)
    a("v_mov_b32 v%d, %s" % (vMx, NEG))
    a("v_lshrrev_b32 v%d, %d, v%d" % (vX + 8, LLPR, vLane), "round inside an export / import batch")
    a("v_and_b32 v%d, %d, v%d" % (vX + 9, LPR - 1, vLane)); a("v_lshlrev_b32 v%d, 4, v%d" % (vX + 9, vX + 9), "16-byte piece inside the round")
    a("s_mov_b64 exec, 1")
    a("s_lshl_b32 s%d, s%d, 2" % (sT2, sPair)); a("s_add_u32 s%d, s%d, 128" % (sT2, sT2), "flag word of the group in d_debug")
    a("s_cmp_lg_u32 s%d, 0" % sJ); a("s_cbranch_scc1 L_h_w0")
    a.c("member 0 clears the group's control line (two pool counters, two completion counters, K-done counter), then raises the flag")
    a("buffer_store_dwordx4 %s, v%d, %s, s%d offen sc0 sc1" % (vr(vX), vZero, sr(sW), sCtl))
    a("buffer_store_dwordx4 %s, v%d, %s, s%d offen offset:16 sc0 sc1" % (vr(vX), vZero, sr(sW), sCtl))
    a("s_waitcnt vmcnt(0)")
    a("v_mov_b32 v%d, 1" % vT)
    a("buffer_store_dword v%d, v%d, %s, s%d offen sc0 sc1" % (vT, vZero, sr(sD), sT2)); a("s_waitcnt vmcnt(0)")
    def read_pw():
        a("ds_read_b128 %s, v%d offset:%d" % (vr(vT), vZero, PW)); a("s_waitcnt lgkmcnt(0)")
        a("v_min_u32 v%d, v%d, v%d" % (vT + 4, vT, vT + 1)); a("v_min3_u32 v%d, v%d, v%d, v%d" % (vT + 4, vT + 4, vT + 2, vT + 3))
        a("v_max_u32 v%d, v%d, v%d" % (vT + 5, vT, vT + 1)); a("v_max3_u32 v%d, v%d, v%d, v%d" % (vT + 5, vT + 5, vT + 2, vT + 3))
        a("s_nop 0")
        a("v_readfirstlane_b32 s%d, v%d" % (sT0, vT + 4), "slowest wave"); a("v_readfirstlane_b32 s%d, v%d" % (sPg, vT + 5), "fastest wave")
    a.label("L_h_w0")
    read_pw()
    a("s_add_u32 s%d, s%d, %d" % (sPg, sPg, NS + LA + 2)); a("s_cmp_le_u32 s%d, s%d" % (sNx, sPg)); a("s_cbranch_scc1 L_h_flag")
    a("s_sleep 16", "workers are still far from the end of their static rounds"); a("s_branch L_h_w0")
    a.label("L_h_flag")
    a("buffer_load_dword v%d, v%d, %s, s%d offen sc0 sc1" % (vT, vZero, sr(sD), sT2)); a("s_waitcnt vmcnt(0)")
    a("v_readfirstlane_b32 s%d, v%d" % (sPg, vT)); a("s_cmp_lg_u32 s%d, 0" % sPg); a("s_cbranch_scc1 L_h_loop")
    a("s_sleep 4"); a("s_branch L_h_flag")

    def tickets(word, mbox, lab_next, lab_stop, kphase):
        gd, n0, n1 = (P.gdk, P.nmink, P.nmaxk) if kphase else (P.gdiv, P.nmin, P.nmax)
        assert n1 <= 31
        a("s_sub_i32 s%d, %d, s%d" % (sN, POOL, sLast), "batch = clamp(remaining >> %d, %d, %d)" % (gd, n0, n1))
        a("s_ashr_i32 s%d, s%d, %d" % (sN, sN, gd))
        a("s_max_i32 s%d, s%d, %d" % (sN, sN, n0)); a("s_min_i32 s%d, s%d, %d" % (sN, sN, n1))
        a("s_sub_i32 s%d, %d, s%d" % (sT1, CAP, sNx), "room left"); a("s_min_i32 s%d, s%d, s%d" % (sN, sN, sT1))
        a("s_cmp_le_i32 s%d, 0" % sN); a("s_cbranch_scc1 " + lab_stop)
        a("s_mov_b32 s%d, s%d" % (sLast, sN))
        a("s_atomic_add s%d, %s, 0x%x glc" % (sLast, sr(sAt, 2), word))
        a("s_lshl_b32 s%d, s%d, 2" % (sT2, sNx)); a("s_add_u32 s%d, s%d, %d" % (sT2, sT2, mbox))
        a("s_lshl_b32 s%d, 1, s%d" % (sT1, sN)); a("s_sub_u32 s%d, s%d, 1" % (sT1, sT1))
        a("s_waitcnt lgkmcnt(0)")
        if not kphase:
            a.c("bring in the scores of these rounds: 8 lanes x 16 bytes per round")
            a("s_lshl_b32 s%d, s%d, 3" % (sT0, sN)); a("s_bfm_b64 exec, s%d, 0" % sT0)
            a("v_add_u32 v%d, s%d, v%d" % (vT, sLast, vX + 8)); a("v_lshl_add_u32 v%d, v%d, 7, v%d" % (vT, vT, vX + 9))
            a("buffer_load_dwordx4 %s, v%d, %s, 0 offen %s" % (vr(vX + 4), vT, sr(sG), P.imp))
            a("v_add_u32 v%d, s%d, v%d" % (vT + 3, sNx, vX + 8)); a("v_lshl_add_u32 v%d, v%d, 7, v%d" % (vT + 3, vT + 3, vX + 9))
            a("s_waitcnt vmcnt(0)")
            a("ds_write_b128 v%d, %s offset:%d" % (vT + 3, vr(vX + 4), SC))
        a("s_mov_b64 exec, 0"); a("s_mov_b32 exec_lo, s%d" % sT1, "lanes 0..n-1 publish one ticket each")
        a("s_add_u32 s%d, s%d, %d" % (sT1, sLast, BASE))
        a("v_add_u32 v%d, s%d, v%d" % (vT + 1, sT1, vLane))
        a("v_lshlrev_b32 v%d, 2, v%d" % (vT + 2, vLane)); a("v_add_u32 v%d, s%d, v%d" % (vT + 2, sT2, vT + 2))
        a("ds_write_b32 v%d, v%d" % (vT + 2, vT + 1))
        a("s_mov_b64 exec, 1")
        if kphase:
            a.c("valid tickets of this batch: clamp(POOL - old, 0, n)")
            a("s_sub_i32 s%d, %d, s%d" % (sT1, POOL, sLast)); a("s_max_i32 s%d, s%d, 0" % (sT1, sT1)); a("s_min_i32 s%d, s%d, s%d" % (sT1, sT1, sN))
            a("s_add_u32 s%d, s%d, s%d" % (sNV, sNV, sT1))
        a("s_add_u32 s%d, s%d, s%d" % (sNx, sNx, sN))
        a("s_add_u32 s%d, s%d, s%d" % (sLast, sLast, sN))
        a("s_cmp_lt_u32 s%d, %d" % (sLast, POOL)); a("s_cbranch_scc1 " + lab_next)
    def fill_invalid(mbox):
        a("s_mov_b64 exec, 0xff")
        a("s_lshl_b32 s%d, s%d, 2" % (sT2, sNx)); a("s_add_u32 s%d, s%d, %d" % (sT2, sT2, mbox))
        a("v_lshlrev_b32 v%d, 2, v%d" % (vT, vLane)); a("v_add_u32 v%d, s%d, v%d" % (vT, sT2, vT))
        a("v_mov_b32 v%d, %d" % (vT + 1, NTICK)); a("ds_write_b32 v%d, v%d" % (vT, vT + 1))
        a("s_mov_b64 exec, 1")

    a.label("L_h_loop")
    read_pw()
    a.c("export the scores of finished head-B rounds: up to 7 rounds, 8 lanes x 16 bytes each")
    a("s_mov_b32 s%d, s%d" % (sMinP, sT0))
    if P.late:
        a("s_cmp_eq_u32 s%d, 0" % sDone); a("s_cbranch_scc1 L_h_noexp", "exports wait for the end of pass 1 (one burst of writes)")
    a("s_min_u32 s%d, s%d, s%d" % (sT0, sT0, sNV)); a("s_sub_i32 s%d, s%d, s%d" % (sT0, sT0, sExp))
    a("s_min_i32 s%d, s%d, %d" % (sT0, sT0, XMAX)); a("s_cmp_le_i32 s%d, 0" % sT0); a("s_cbranch_scc1 L_h_noexp")
    a("s_lshl_b32 s%d, s%d, %d" % (sT1, sT0, LLPR)); a("s_bfm_b64 exec, s%d, 0" % sT1)
    a("v_add_u32 v%d, s%d, v%d" % (vT, sExp, vX + 8), "round")
    a("v_lshlrev_b32 v%d, 2, v%d" % (vT + 1, vT)); a("ds_read_b32 v%d, v%d offset:%d" % (vT + 2, vT + 1, MBOX), "its ticket")
    a("v_lshl_add_u32 v%d, v%d, %d, v%d" % (vT + 3, vT, LSCR, vX + 9)); a("ds_read_b128 %s, v%d offset:%d" % (vr(vX + 4), vT + 3, SC))
    a("s_add_u32 s%d, s%d, s%d" % (sExp, sExp, sT0))
    a("s_waitcnt lgkmcnt(0)")
    a("v_subrev_u32 v%d, %d, v%d" % (vT + 2, BASE, vT + 2)); a("v_lshl_add_u32 v%d, v%d, %d, v%d" % (vT + 2, vT + 2, LSCR, vX + 9))
    if P.exp != "none":
        a("buffer_store_dwordx4 %s, v%d, %s, 0 offen %s" % (vr(vX + 4), vT + 2, sr(sG), P.exp))
    a("v_max3_f32 v%d, v%d, v%d, v%d" % (vMx, vMx, vX + 4, vX + 5)); a("v_max3_f32 v%d, v%d, v%d, v%d" % (vMx, vMx, vX + 6, vX + 7))
    a("s_mov_b64 exec, 1")
    a("s_branch L_h_loop")
    a.label("L_h_noexp")
    a("s_cmp_lg_u32 s%d, 0" % sDone); a("s_cbranch_scc1 L_h_chk")
    if P.usemin: a("s_mov_b32 s%d, s%d" % (sPg, sMinP))
    a("s_add_u32 s%d, s%d, %d" % (sPg, sPg, NS + LA)); a("s_cmp_le_u32 s%d, s%d" % (sNx, sPg)); a("s_cbranch_scc1 L_h_go")
    a("s_sleep 1"); a("s_branch L_h_loop")
    a.label("L_h_go")
    tickets(0x0, MBOX, "L_h_loop", "L_h_stop", True)
    a.label("L_h_stop")
    fill_invalid(MBOX)
    a("s_mov_b32 s%d, 1" % sDone)
    a("s_branch L_h_loop")
    a.label("L_h_chk")
    a("s_cmp_ge_u32 s%d, s%d" % (sExp, sNV)); a("s_cbranch_scc1 L_h_kend")
    a("s_sleep 1"); a("s_branch L_h_loop")
    a.label("L_h_kend")
    a.c("all scores exported: publish this workgroup's head-B max, then count it as done with K")
    a("s_mov_b64 exec, -1")
    for ctl in ("quad_perm:[1,0,3,2]", "quad_perm:[2,3,0,1]", "row_half_mirror", "row_mirror"): dppmax(vMx, ctl)
    a("s_nop 1")
    xrow(vMx, "v_max_f32")
    a("s_mov_b64 exec, 1")
    a("s_lshl_b32 s%d, s%d, 2" % (sT2, sJ)); a("s_add_u32 s%d, s%d, s%d" % (sT2, sT2, sCtl))
    a("buffer_store_dword v%d, v%d, %s, s%d offen offset:128 sc0 sc1" % (vMx, vZero, sr(sW), sT2))
    a("s_waitcnt vmcnt(0)", "scores and max written through")
    a("s_mov_b32 s%d, 1" % sT1); a("s_atomic_add s%d, %s, 0x10 glc" % (sT1, sr(sAt, 2)))
    a("s_mov_b32 s%d, %d" % (sNx, R0)); a("s_mov_b32 s%d, 0" % sLast)
    a("s_waitcnt lgkmcnt(0)")
    a.label("L_h_v0")
    a("ds_read_b32 v%d, v%d offset:%d" % (vT, vZero, PV)); a("s_waitcnt lgkmcnt(0)")
    a("v_readfirstlane_b32 s%d, v%d" % (sPg, vT))
    a("s_add_u32 s%d, s%d, %d" % (sPg, sPg, NS + LAV + 4)); a("s_cmp_le_u32 s%d, s%d" % (sNx, sPg)); a("s_cbranch_scc1 L_h_kd")
    a("s_sleep 16"); a("s_branch L_h_v0")
    a.label("L_h_kd")
    a("s_mov_b32 s%d, 0" % sT1); a("s_atomic_add s%d, %s, 0x10 glc" % (sT1, sr(sAt, 2))); a("s_waitcnt lgkmcnt(0)")
    a("s_cmp_ge_u32 s%d, %d" % (sT1, S)); a("s_cbranch_scc1 L_h_mx")
    a("s_sleep 4"); a("s_branch L_h_kd")
    a.label("L_h_mx")
    a("s_mov_b64 exec, 0xff")
    a("v_lshlrev_b32 v%d, 2, v%d" % (vT, vLane))
    a("buffer_load_dword v%d, v%d, %s, s%d offen offset:128 sc0 sc1" % (vMx, vT, sr(sW), sCtl)); a("s_waitcnt vmcnt(0)")
    for ctl in ("quad_perm:[1,0,3,2]", "quad_perm:[2,3,0,1]", "row_half_mirror"): dppmax(vMx, ctl)
    a("s_mov_b64 exec, 1")
    a("v_mul_f32 v%d, s%d, v%d" % (vMx, sC, vMx))
    a("ds_write_b32 v%d, v%d offset:%d" % (vZero, vMx, MCB))
    sOld, sPn, sHave = 88, 89, 91
    def vsize():
        a("s_sub_i32 s%d, %d, s%d" % (sN, POOL, sLast), "batch = clamp(remaining >> %d, %d, %d)" % (P.gdiv, P.nmin, P.nmax))
        a("s_ashr_i32 s%d, s%d, %d" % (sN, sN, P.gdiv))
        a("s_max_i32 s%d, s%d, %d" % (sN, sN, P.nmin)); a("s_min_i32 s%d, s%d, %d" % (sN, sN, P.nmax))
        a("s_sub_i32 s%d, %d, s%d" % (sT1, CAP, sNx), "room left"); a("s_min_i32 s%d, s%d, s%d" % (sN, sN, sT1))
    assert P.nmax <= XMAX
    a.label("L_h_vloop")
    a.c("no add in flight: wait until the workers come close to the end of what they have")
    a("ds_read_b32 v%d, v%d offset:%d" % (vT, vZero, PV)); a("s_waitcnt lgkmcnt(0)")
    a("v_readfirstlane_b32 s%d, v%d" % (sPg, vT))
    a("s_add_u32 s%d, s%d, %d" % (sPg, sPg, NS + LAV)); a("s_cmp_le_u32 s%d, s%d" % (sNx, sPg)); a("s_cbranch_scc1 L_h_vgo")
    a("s_sleep 1"); a("s_branch L_h_vloop")
    a.label("L_h_vgo")
    vsize()
    a("s_cmp_le_i32 s%d, 0" % sN); a("s_cbranch_scc1 L_h_vstop")
    a("s_mov_b32 s%d, s%d" % (sLast, sN)); a("s_atomic_add s%d, %s, 0xc glc" % (sLast, sr(sAt, 2)))
    a("s_mov_b32 s%d, s%d" % (sPn, sN))
    a("s_waitcnt lgkmcnt(0)")
    a.label("L_h_vhave")
    a.c("batch (old = sLast, size = sPn) is ours: import its scores, meanwhile ask for the next one if it is due")
    a("s_mov_b32 s%d, s%d" % (sOld, sLast))
    a("s_lshl_b32 s%d, s%d, %d" % (sT0, sPn, LLPR)); a("s_bfm_b64 exec, s%d, 0" % sT0)
    a("v_add_u32 v%d, s%d, v%d" % (vT, sOld, vX + 8)); a("v_lshl_add_u32 v%d, v%d, %d, v%d" % (vT, vT, LSCR, vX + 9))
    a("buffer_load_dwordx4 %s, v%d, %s, 0 offen %s" % (vr(vX + 4), vT, sr(sG), P.imp))
    a("v_add_u32 v%d, s%d, v%d" % (vT + 3, sNx, vX + 8)); a("v_lshl_add_u32 v%d, v%d, %d, v%d" % (vT + 3, vT + 3, LSCR, vX + 9))
    a("s_mov_b64 exec, 1")
    a("ds_read_b32 v%d, v%d offset:%d" % (vT, vZero, PV))
    a("s_lshl_b32 s%d, s%d, 2" % (sT2, sNx)); a("s_add_u32 s%d, s%d, %d" % (sT2, sT2, MBOX2), "mailbox slot of this batch")
    a("s_add_u32 s%d, s%d, s%d" % (sNx, sNx, sPn)); a("s_add_u32 s%d, s%d, s%d" % (sLast, sOld, sPn))
    a("s_mov_b32 s%d, 0" % sHave); a("s_mov_b32 s%d, s%d" % (sT3, sPn))
    a("s_waitcnt lgkmcnt(0)")
    a("v_readfirstlane_b32 s%d, v%d" % (sPg, vT))
    a("s_cmp_ge_u32 s%d, %d" % (sLast, POOL)); a("s_cbranch_scc1 L_h_vimp", "pool exhausted: nothing more to ask for")
    a("s_add_u32 s%d, s%d, %d" % (sPg, sPg, NS + LAV + P.vpre)); a("s_cmp_le_u32 s%d, s%d" % (sNx, sPg)); a("s_cbranch_scc0 L_h_vimp")
    vsize()
    a("s_cmp_le_i32 s%d, 0" % sN); a("s_cbranch_scc1 L_h_vimp")
    a("s_mov_b32 s%d, s%d" % (sPn, sN)); a("s_mov_b32 s%d, 1" % sHave)
    a("s_mov_b32 s%d, s%d" % (sLast, sN)); a("s_atomic_add s%d, %s, 0xc glc" % (sLast, sr(sAt, 2)))
    a.label("L_h_vimp")
    a("s_lshl_b32 s%d, s%d, %d" % (sT0, sT3, LLPR)); a("s_bfm_b64 exec, s%d, 0" % sT0)
    a("s_waitcnt vmcnt(0)")
    a("ds_write_b128 v%d, %s offset:%d" % (vT + 3, vr(vX + 4), SC))
    a("s_bfm_b64 exec, s%d, 0" % sT3, "lanes 0..n-1 publish one ticket each")
    a("s_add_u32 s%d, s%d, %d" % (sT1, sOld, BASE))
    a("v_add_u32 v%d, s%d, v%d" % (vT + 1, sT1, vLane))
    a("v_lshlrev_b32 v%d, 2, v%d" % (vT + 2, vLane)); a("v_add_u32 v%d, s%d, v%d" % (vT + 2, sT2, vT + 2))
    a("ds_write_b32 v%d, v%d" % (vT + 2, vT + 1))
    a("s_mov_b64 exec, 1")
    a("s_cmp_lg_u32 s%d, 0" % sHave); a("s_cbranch_scc0 L_h_vnext")
    a("s_waitcnt lgkmcnt(0)"); a("s_branch L_h_vhave")
    a.label("L_h_vnext")
    a("s_cmp_lt_u32 s%d, %d" % (sLast, POOL)); a("s_cbranch_scc1 L_h_vloop")
    a.label("L_h_vstop")
    fill_invalid(MBOX2)
    a("s_waitcnt lgkmcnt(0)")
    a("s_endpgm")

    lds = max(SC + CAP * SCR, P.lds)
    out = HEADER + "; @launch grid=(%d,1,1) block=(%d,1,1) lds=%d\n" % (NWG, (W + 1) * 64, lds)
    out += DOC.format(CK=CK, TK=TK, R0=R0, CB=CB, POOL=POOL)
    out += '.amdgcn_target "amdgcn-amd-amdhsa--gfx950"\n.text\n'
    out += ".globl %s_kernel\n.p2align 8\n.type %s_kernel,@function\n%s_kernel:\n" % (NAME, NAME, NAME)
    out += a.text()
    out += '.section .rodata,"a"\n.p2align 6\n.amdhsa_kernel %s_kernel\n' % NAME
    out += "  .amdhsa_next_free_vgpr %d\n  .amdhsa_next_free_sgpr 96\n  .amdhsa_accum_offset %d\n" % (nv, (nv + 3) // 4 * 4)
    out += "  .amdhsa_group_segment_fixed_size 0\n  .amdhsa_kernarg_size 48\n  .amdhsa_user_sgpr_count 2\n"
    out += "  .amdhsa_user_sgpr_kernarg_segment_ptr 1\n  .amdhsa_system_sgpr_workgroup_id_x 1\n.end_amdhsa_kernel\n"
    return out

if __name__ == "__main__":
    ap = argparse.ArgumentParser()
    ap.add_argument("--mg", type=int, default=2); ap.add_argument("--r0", type=int, default=104)
    ap.add_argument("--stages", type=int, default=2)
    ap.add_argument("--cap", type=int, default=256)
    ap.add_argument("--la", type=int, default=3); ap.add_argument("--lav", type=int, default=2)
    ap.add_argument("--gdiv", type=int, default=4); ap.add_argument("--nmax", type=int, default=7); ap.add_argument("--nmin", type=int, default=3)
    ap.add_argument("--lds", type=int, default=0); ap.add_argument("--diag", type=int, default=0)
    ap.add_argument("--exp", default="sc0 sc1"); ap.add_argument("--imp", default="sc0 sc1")
    ap.add_argument("--late", type=int, default=1); ap.add_argument("--vpre", type=int, default=1)
    ap.add_argument("--gdk", type=int, default=4); ap.add_argument("--nmink", type=int, default=2); ap.add_argument("--nmaxk", type=int, default=16)
    ap.add_argument("--policy", default="nt"); ap.add_argument("--usemin", type=int, default=0)
    ap.add_argument("-o", default="-")
    P = ap.parse_args(); t = gen(P)
    (sys.stdout if P.o == "-" else open(P.o, "w")).write(t)
```

```python
import argparse, sys
from gen_final import A, vr, sr, f32hex, HEADER, NAME, NH, SKV, DH, ROWB, HEADB, LOG2E

DOC = """;
;    16 MiB of K and of V = 8 slots of 2 MiB (4 per head), cut into rounds of {CK} keys ({TK} per worker wave).
;    In each pass workgroup j first runs the first {R0} rounds of slot j, then takes rounds of the pool (the
;    rest of the 8 slots, {POOL} rounds) from a per-group counter in d_ws: load balance across the dies.
"""

def gen(P):
    W, S = 4, 8
    NWG = (NH // 2) * S
    MG, NS, LA, LAV = P.mg, P.stages, P.la, P.lav
    assert MG in (2, 4)
    TK = 4 * MG; TB = TK * ROWB; CK = W * TK; CB = CK * ROWB
    NTH = SKV // CK; NTICK = 2 * NTH
    R0 = P.r0 if P.r0 else NTH // S
    BASE = R0 * S; POOL = NTICK - BASE
    SL = NTICK // S
    SEG = SL - R0
    THB = BASE + POOL // 2
    assert 0 < SEG and POOL == S * SEG
    NL = 2 * MG
    CAP = P.cap
    assert NS <= R0 < CAP and CAP * S >= NTICK
    REC = 1024 + 128
    CTRL = 0x100000
    SCG = 0x200000
    SCR = W * TK * 4
    LSCR = SCR.bit_length() - 1
    LPR = SCR // 16
    LLPR = LPR.bit_length() - 1
    XMAX = 63 // LPR
    WSB = SCG + (NH // 2) * POOL * SCR
    ML = 2 * W * 1024
    PW, PV, MCP = ML + 224, ML + 240, ML + 244
    MBN = (CAP + 16 + 255) // 256 * 256
    MBOX = ML + 256
    MBOX2 = MBOX + MBN * 4
    SC = MBOX2 + MBN * 4
    NEG = "0xff7fffff"
    pol = " " + P.policy
    KW = (NS - 1) * NL
    D = P.diag
    BIG = 0x7fffffff
    OOB = 0x7fffff00

    a = A()
    sV, sG, sCur, sW, sO, sD = 4, 8, 12, 16, 44, 48
    sQ = 16
    sOff, sOff2, sLim, sPair, sJ, sWave, sC, sWOff = 20, 21, 22, 23, 24, 25, 26, 27
    sT0, sT1, sT2, sT3 = 28, 29, 30, 31
    sPtr = 32
    sTk = 64
    sCK, sNK = 68, 69
    sCtl, sJ0 = 70, 71
    sNx, sPg, sN, sLast = 72, 73, 74, 75
    sSave, sAt = 76, 78
    sSel = 80
    sMode, sExp, sNV, sDone = 84, 85, 86, 87
    sMinP = 90
    sRot = 92
    sJSeg, sH0 = 88, 89
    vKoff, vVoff, vLane = 1, 2, 3
    vQ, vMask = 4, 12
    vM, vL, vMc, vCur = 16, 17, 18, 19
    vO, vC, vS, vT = 20, 28, 44, 48
    vTk, vMaddr, vPub, vZero, vRnd, vSad = 54, 55, 56, 57, 58, 59
    vMA, vGoff, vPubV, vRndV = 60, 61, 62, 63
    vMS = 82
    vQ2, vOA, vMcA, vLA = 64, 72, 80, 81
    vG = 36
    vBuf = 84
    Breg = lambda s, i: vBuf + s * 4 * NL + 4 * i
    nv = max(vBuf + NS * 4 * NL, vBuf + 64)
    assert NS <= 4 and nv <= 256

    def issue(s):
        for m in range(MG):
            for j in range(2):
                off, so = m * 2048 + j * 256, sOff
                if off >= 4096: off, so = off - 4096, sOff2
                a("buffer_load_dwordx4 %s, v%d, %s, s%d offen offset:%d%s" % (vr(Breg(s, 2 * m + j)), vCur, sr(sCur), so, off, pol))
    def set_off(src):
        a.c("round of the pair's range: static t = j*R0+k -> slot j, position k; pool rounds are dealt in blocks over the slots' tails")
        a("s_add_u32 s%d, s%d, s%d" % (sOff, src, sJSeg)); a("s_sub_u32 s%d, s%d, %d" % (sOff2, src, BASE))
        if P.blk:
            b = P.blk; lb = b.bit_length() - 1; H = POOL // 2
            assert b & (b - 1) == 0 and SEG % b == 0 and H & (H - 1) == 0
            lh = H.bit_length() - 1
            a("s_lshr_b32 s%d, s%d, %d" % (sRot, sOff2, lh)); a("s_lshl_b32 s%d, s%d, 2" % (sRot, sRot), "4 * half (invalid tickets: >= 8)")
            a("s_and_b32 s%d, s%d, %d" % (sOff2, sOff2, H - 1))
            a("s_bfe_u32 s%d, s%d, 0x%x" % (sRot + 1, sOff2, (2 << 16) | lb)); a("s_add_u32 s%d, s%d, s%d" % (sRot, sRot, sRot + 1), "slot")
            a("s_lshl_b32 s%d, s%d, %d" % (sRot, sRot, SL.bit_length() - 1))
            a("s_lshr_b32 s%d, s%d, %d" % (sRot + 1, sOff2, lb + 2)); a("s_lshl_b32 s%d, s%d, %d" % (sRot + 1, sRot + 1, lb)); a("s_add_u32 s%d, s%d, s%d" % (sRot, sRot, sRot + 1))
            a("s_and_b32 s%d, s%d, %d" % (sOff2, sOff2, b - 1)); a("s_add_u32 s%d, s%d, s%d" % (sOff2, sOff2, sRot)); a("s_add_u32 s%d, s%d, %d" % (sOff2, sOff2, R0))
        else:
            if SEG & (SEG - 1) == 0: a("s_lshr_b32 s%d, s%d, %d" % (sRot, sOff2, SEG.bit_length() - 1))
            else: a("s_mul_hi_u32 s%d, s%d, %d" % (sRot, sOff2, (1 << 32) // SEG + 1))
            a("s_mul_i32 s%d, s%d, %d" % (sRot, sRot, R0)); a("s_add_u32 s%d, s%d, s%d" % (sOff2, sOff2, sRot)); a("s_add_u32 s%d, s%d, %d" % (sOff2, sOff2, R0))
        a("s_cmp_ge_u32 s%d, %d" % (src, BASE)); a("s_cselect_b32 s%d, s%d, s%d" % (sOff, sOff2, sOff))
        a("s_mul_i32 s%d, s%d, %d" % (sOff, sOff, CB)); a("s_add_u32 s%d, s%d, s%d" % (sOff, sOff, sWOff))
        if MG > 2: a("s_add_u32 s%d, s%d, 4096" % (sOff2, sOff))
    def srd(dst, lo, size):
        a("s_mov_b32 s%d, s%d" % (dst, lo)); a("s_and_b32 s%d, s%d, 0xffff" % (dst + 1, lo + 1))
        a("s_mov_b32 s%d, %d" % (dst + 2, size)); a("s_mov_b32 s%d, 0x00020000" % (dst + 3))
    def srd_scores():
        a("s_mul_i32 s%d, s%d, %d" % (sT2, sPair, POOL * SCR)); a("s_add_u32 s%d, s%d, 0x%x" % (sT2, sT2, SCG))
        a("s_add_u32 s%d, s%d, s%d" % (sG, sPtr + 10, sT2)); a("s_addc_u32 s%d, s%d, 0" % (sG + 1, sPtr + 11))
        a("s_and_b32 s%d, s%d, 0xffff" % (sG + 1, sG + 1))
        a("s_mov_b32 s%d, %d" % (sG + 2, POOL * SCR)); a("s_mov_b32 s%d, 0x00020000" % (sG + 3))
    def xrow(v, op):
        for sw in ("v_permlane16_swap_b32", "v_permlane32_swap_b32"):
            a("v_mov_b32 v%d, v%d" % (vT + 1, v)); a("s_nop 1")
            a("%s v%d, v%d" % (sw, v, vT + 1)); a("s_nop 1")
            a("%s v%d, v%d, v%d" % (op, v, v, vT + 1))
    def dppmax(v, ctl):
        a("s_nop 1"); a("v_max_f32_dpp v%d, v%d, v%d %s row_mask:0xf bank_mask:0xf" % (v, v, v, ctl))

    if D: a("s_memrealtime s[52:53]"); a("s_mov_b32 s82, 0"); a("s_mov_b32 s83, 0")
    a("s_cmp_ge_u32 s2, %d" % NWG, "workgroups past the data leave at once")
    a("s_cbranch_scc1 L_done")
    a("s_load_dwordx4 %s, s[0:1], 0" % sr(sPtr), "q, k")
    a("s_load_dwordx4 %s, s[0:1], 16" % sr(sPtr + 4), "v, out")
    a("s_load_dwordx4 %s, s[0:1], 32" % sr(sPtr + 8), "debug, ws")
    a("v_and_b32 v%d, 63, v0" % vLane)
    a("v_lshrrev_b32 v%d, 6, v0" % vT)
    a("v_lshrrev_b32 v%d, 4, v%d" % (vT + 1, vLane), "g = lane>>4")
    a("v_readfirstlane_b32 s%d, v%d" % (sWave, vT))
    a("s_lshr_b32 s%d, s2, 3" % sPair, "group = head pair")
    a("s_and_b32 s%d, s2, 7" % sJ, "member of the group")
    a.c("K fragment (A operand): lane(i=4*key+p, g) reads key row 'key', 16 bytes at g*64 + p*16 (+256 for the 2nd half)")
    a("v_bfe_u32 v%d, v%d, 2, 2" % (vT + 2, vLane)); a("v_lshlrev_b32 v%d, 9, v%d" % (vT + 2, vT + 2))
    a("v_lshl_add_u32 v%d, v%d, 6, v%d" % (vT + 2, vT + 1, vT + 2)); a("v_and_b32 v%d, 3, v%d" % (vT + 3, vLane))
    a("v_lshl_add_u32 v%d, v%d, 4, v%d" % (vKoff, vT + 3, vT + 2))
    a.c("V fragment (B operand): lane(j, g) reads key row g, 16 bytes at j*16 (+256 for the 2nd half)")
    a("v_and_b32 v%d, 15, v%d" % (vT + 4, vLane)); a("v_lshlrev_b32 v%d, 4, v%d" % (vT + 4, vT + 4))
    a("v_lshl_add_u32 v%d, v%d, 9, v%d" % (vVoff, vT + 1, vT + 4))
    a.c("q fragment (B operand): lane(n, g) holds the q chunk that matches K chunk g*64 + (n&3)*16")
    a("v_lshlrev_b32 v%d, 4, v%d" % (vT + 3, vT + 3)); a("v_lshl_add_u32 v%d, v%d, 6, v%d" % (vT + 5, vT + 1, vT + 3))
    a("v_mov_b32 v%d, 0" % vZero)
    a("v_mov_b32 v%d, v%d" % (vCur, vKoff))
    a("s_lshr_b32 s%d, s%d, 8" % (sT1, sPair)); a("s_lshl_b32 s%d, s%d, 24" % (sT0, sPair), "pair * 16 MiB")
    a("s_mul_i32 s%d, s%d, %d" % (sWOff, sWave, TB))
    a("s_mul_i32 s%d, s%d, %d" % (sJ0, sJ, R0), "first static ticket")
    for s in range(NS): a("s_add_u32 s%d, s%d, %d" % (sTk + s, sJ0, s))
    a("s_lshl_b32 s%d, s%d, 8" % (sCtl, sPair)); a("s_add_u32 s%d, s%d, 0x%x" % (sCtl, sCtl, CTRL), "control line of the group (offset in d_ws)")
    a.c("score slot of this lane inside a round: wave*TK*4 + g*MG*4")
    a("v_mul_u32_u24 v%d, %d, v%d" % (vGoff, MG * 4, vT + 1)); a("s_mul_i32 s%d, s%d, %d" % (sT2, sWave, TK * 4)); a("v_add_u32 v%d, s%d, v%d" % (vGoff, sT2, vGoff))
    a("s_mul_i32 s%d, s%d, %d" % (sJSeg, sJ, SEG)); a("s_lshr_b32 s%d, s%d, 2" % (sH0, sJ), "head of the static rounds: slots 0..3 are head A, 4..7 head B")
    set_off(sTk)
    a("s_cmp_eq_u32 s%d, %d" % (sWave, W))
    a("s_waitcnt lgkmcnt(0)")
    a("s_cbranch_scc1 L_helper")
    a("s_add_u32 s%d, s%d, s%d" % (sCur, sPtr + 2, sT0)); a("s_addc_u32 s%d, s%d, s%d" % (sCur + 1, sPtr + 3, sT1))
    a("s_and_b32 s%d, s%d, 0xffff" % (sCur + 1, sCur + 1))
    a("s_mov_b32 s%d, %d" % (sCur + 2, 2 * HEADB), "tickets past the pair's range read nothing"); a("s_mov_b32 s%d, 0x00020000" % (sCur + 3))
    a("s_add_u32 s%d, s%d, s%d" % (sV, sPtr + 4, sT0)); a("s_addc_u32 s%d, s%d, s%d" % (sV + 1, sPtr + 5, sT1))
    a("s_and_b32 s%d, s%d, 0xffff" % (sV + 1, sV + 1))
    issue(0)
    srd(sQ, sPtr, NH * ROWB)
    a("s_lshl_b32 s%d, s%d, 10" % (sT0, sPair)); a("s_lshl_b32 s%d, s%d, 9" % (sT1, sH0)); a("s_or_b32 s%d, s%d, s%d" % (sT0, sT0, sT1), "q of the static head")
    a("s_xor_b32 s%d, s%d, 512" % (sT1, sT0), "q of the other head")
    for dst, so, off in ((vQ, sT0, 0), (vQ + 4, sT0, 256), (vQ2, sT1, 0), (vQ2 + 4, sT1, 256)):
        a("buffer_load_dwordx4 %s, v%d, %s, s%d offen offset:%d" % (vr(dst), vT + 5, sr(sQ), so, off))
    for s in range(1, NS): set_off(sTk + s); issue(s)
    srd(sO, sPtr + 6, NH * ROWB)
    a.c("P operand masks: element e=(lane&7) of the 8-wide k slab is the only live one")
    a("v_and_b32 v%d, 1, v%d" % (vT, vLane)); a("v_lshlrev_b32 v%d, 4, v%d" % (vT, vT)); a("v_mov_b32 v%d, 0xffff" % (vT + 1))
    a("v_lshlrev_b32 v%d, v%d, v%d" % (vT, vT, vT + 1)); a("v_bfe_u32 v%d, v%d, 1, 2" % (vT + 1, vLane))
    for r in range(4):
        a("v_cmp_eq_u32 vcc, %d, v%d" % (r, vT + 1)); a("s_nop 1"); a("v_cndmask_b32 v%d, 0, v%d, vcc" % (vMask + r, vT))
    a("v_mov_b32 v%d, %s" % (vM, NEG)); a("v_mov_b32 v%d, 0" % vL)
    for i in range(8): a("v_mov_b32 v%d, 0" % (vO + i))
    a("s_mov_b32 s%d, %s" % (sC, f32hex(LOG2E / 16.0)), "log2(e) / sqrt(256)")
    a("s_mov_b32 s%d, %d" % (sLim, BASE), "next ticket threshold at which something changes")
    a("s_mov_b32 s%d, 0" % sCK); a("s_mov_b32 s%d, 0x%x" % (sNK, BIG))
    a("v_mov_b32 v%d, %d" % (vMaddr, MBOX + 4 * NS)); a("v_mov_b32 v%d, 0" % vRnd); a("v_mov_b32 v%d, 0" % vRndV)
    a("s_lshl_b32 s%d, s%d, 2" % (sT0, sWave)); a("s_add_u32 s%d, s%d, %d" % (sT0, sT0, PW)); a("v_mov_b32 v%d, s%d" % (vPub, sT0), "this wave's progress word")
    a("v_mov_b32 v%d, %d" % (vPubV, PV))
    a("v_add_u32 v%d, %d, v%d" % (vSad, SC, vGoff))
    a("s_barrier", "mailboxes initialised by the ticket wave")

    for s in range(NS):
        t = "%d" % s
        a.label("L_k_" + t)
        a("s_cmp_ge_u32 s%d, s%d" % (sCK, sNK)); a("s_cbranch_scc1 L_tov_" + t)
        a.label("L_k2_" + t)
        a("s_cmp_lt_u32 s%d, s%d" % (sTk + s, sLim)); a("s_cbranch_scc0 L_ksw_" + t)
        a.label("L_kgo_" + t)
        a("ds_write_b32 v%d, v%d" % (vPub, vRnd), "publish progress (rounds whose scores are in LDS)")
        a("ds_read_b32 v%d, v%d" % (vTk, vMaddr), "next job's ticket")
        a("s_waitcnt vmcnt(%d)" % KW, "K tile")
        for j in range(2):
            for m in range(MG):
                a("v_mfma_f32_16x16x32_bf16 %s, %s, %s, %s" % (vr(vC + 4 * m), vr(Breg(s, 2 * m + j)), vr(vQ + 4 * j), "0" if j == 0 else vr(vC + 4 * m)))
        a("s_waitcnt lgkmcnt(0)")
        a("v_readfirstlane_b32 s%d, v%d" % (sTk + s, vTk))
        a("s_cmp_ge_u32 s%d, %d" % (sTk + s, NTICK)); a("s_cbranch_scc1 L_kx_" + t, "EMPTY (-1) or 'no more K work'")
        a.label("L_khave_" + t)
        set_off(sTk + s); issue(s)
        a("v_add_u32 v%d, 4, v%d" % (vMaddr, vMaddr))
        a("s_nop 1")
        for m in range(MG):
            a("v_mov_b32_dpp v%d, v%d quad_perm:[0,0,0,0] row_mask:0xf bank_mask:0xf" % (vS + m, vC + 4 * m))
        for r in range(1, 4):
            if MG < 4: a("s_nop 1")
            for m in range(MG):
                a("v_add_f32_dpp v%d, v%d, v%d quad_perm:[%d,%d,%d,%d] row_mask:0xf bank_mask:0xf" % (vS + m, vC + 4 * m + r, vS + m, r, r, r, r))
        a("%s v%d, %s" % ("ds_write_b64" if MG == 2 else "ds_write_b128", vSad, vr(vS, MG)), "scores of this tile")
        for m in range(0, MG, 2): a("v_max3_f32 v%d, v%d, v%d, v%d" % (vM, vM, vS + m, vS + m + 1))
        a("v_add_u32 v%d, %d, v%d" % (vSad, SCR, vSad)); a("v_add_u32 v%d, 1, v%d" % (vRnd, vRnd))
        a("s_add_u32 s%d, s%d, 1" % (sCK, sCK))
    a("s_branch L_k_0")
    for s in range(NS):
        t = "%d" % s
        a.label("L_kx_" + t)
        a("s_cmp_eq_u32 s%d, -1" % (sTk + s)); a("s_cbranch_scc0 L_kinv_" + t)
        if D: a("s_add_u32 s82, s82, 1")
        a("s_sleep 1")
        a("ds_read_b32 v%d, v%d" % (vTk, vMaddr)); a("s_waitcnt lgkmcnt(0)")
        a("v_readfirstlane_b32 s%d, v%d" % (sTk + s, vTk))
        a("s_cmp_ge_u32 s%d, %d" % (sTk + s, NTICK)); a("s_cbranch_scc1 L_kx_" + t)
        a("s_branch L_khave_" + t)
        a.label("L_kinv_" + t)
        a.c("K tickets are exhausted: from now on the issue stream is on V and walks the second mailbox")
        a("s_add_u32 s%d, s%d, %d" % (sNK, sCK, NS), "number of K rounds of this workgroup")
        a("s_mov_b32 s%d, s%d" % (sCur, sV)); a("s_mov_b32 s%d, s%d" % (sCur + 1, sV + 1))
        a("v_mov_b32 v%d, v%d" % (vCur, vVoff))
        a("s_mov_b32 s%d, s%d" % (sTk + s, sJ0))
        a("v_mov_b32 v%d, %d" % (vMaddr, MBOX2))
        a("s_branch L_khave_" + t)
        a.label("L_ksw_" + t)
        a("s_cmp_eq_u32 s%d, %d" % (sLim, BASE)); a("s_cbranch_scc0 L_kswap_" + t)
        if D: a("s_memrealtime s[94:95]")
        a.c("first round of the pool")
        a("v_mov_b32 v%d, v%d" % (vMS, vM), "max of this wave's static scores")
        a("s_mov_b32 s%d, %d" % (sLim, THB))
        a("s_cmp_eq_u32 s%d, 0" % sH0); a("s_cbranch_scc1 L_k2_" + t)
        a("s_cmp_lt_u32 s%d, %d" % (sTk + s, THB)); a("s_cbranch_scc1 L_kswap2_" + t)
        a("s_mov_b32 s%d, 0x%x" % (sLim, BIG)); a("s_branch L_kgo_" + t)
        a.label("L_kswap_" + t)
        a("s_mov_b32 s%d, 0x%x" % (sLim, BIG))
        a.label("L_kswap2_" + t)
        a("s_waitcnt vmcnt(%d)" % KW, "both q have landed")
        for i in range(8): a("v_swap_b32 v%d, v%d" % (vQ + i, vQ2 + i))
        a("s_branch L_kgo_" + t)
        a.label("L_tov_" + t)
        a("s_mov_b32 s%d, %d" % (sT3, s))
        a("s_branch L_tov")
    a.label("L_tov")
    if D: a("s_memrealtime s[54:55]")
    a("ds_write_b32 v%d, v%d" % (vPub, vRnd), "all K rounds of this wave are scored")
    a("s_cmp_eq_u32 s%d, %d" % (sLim, BASE)); a("s_cbranch_scc0 L_tov_sw")
    a("v_mov_b32 v%d, v%d" % (vMS, vM))
    a.label("L_tov_sw")
    xrow(vMS, "v_max_f32")
    a("v_mul_f32 v%d, s%d, v%d" % (vMc, sC, vMS), "true max of this wave's static scores")
    for i in range(8): a("v_mov_b32 v%d, 0" % (vOA + i))
    a("v_mov_b32 v%d, 0" % vLA); a("v_mov_b32 v%d, %s" % (vMcA, NEG))
    a("v_add_u32 v%d, %d, v%d" % (vSad, SC, vGoff), "back to round 0")
    a("s_mov_b32 s%d, %d" % (sLim, BASE))
    for s in range(NS - 1):
        a("s_cmp_eq_u32 s%d, %d" % (sT3, s)); a("s_cbranch_scc1 L_v_%d" % s)
    a("s_branch L_v_%d" % (NS - 1))

    for s in range(NS):
        t = "%d" % s
        a.label("L_v_" + t)
        a("s_cmp_lt_u32 s%d, s%d" % (sTk + s, sLim)); a("s_cbranch_scc0 L_vsw_" + t)
        a("ds_max_u32 v%d, v%d" % (vPubV, vRndV), "publish progress")
        a("ds_read_b32 v%d, v%d" % (vTk, vMaddr), "next job's ticket")
        a("%s %s, v%d" % ("ds_read_b64" if MG == 2 else "ds_read_b128", vr(vS, MG), vSad), "scores of this tile")
        a("v_add_u32 v%d, %d, v%d" % (vSad, SCR, vSad)); a("v_add_u32 v%d, 1, v%d" % (vRndV, vRndV))
        a("s_waitcnt lgkmcnt(0)")
        a("v_readfirstlane_b32 s%d, v%d" % (sTk + s, vTk))
        a("s_cmp_eq_u32 s%d, -1" % (sTk + s)); a("s_cbranch_scc1 L_vpoll_" + t)
        a.label("L_vhave_" + t)
        set_off(sTk + s)
        a("v_add_u32 v%d, 4, v%d" % (vMaddr, vMaddr))
        for m in range(MG): a("v_fma_f32 v%d, v%d, s%d, -v%d" % (vS + m, vS + m, sC, vMc))
        for m in range(MG): a("v_exp_f32 v%d, v%d" % (vS + m, vS + m))
        a("s_nop 0")
        for m in range(MG): a("v_add_f32 v%d, v%d, v%d" % (vL, vL, vS + m))
        for m in range(MG): a("v_cvt_pk_bf16_f32 v%d, v%d, v%d" % (vS + m, vS + m, vS + m))
        for m in range(MG):
            for r in range(4): a("v_and_b32 v%d, v%d, v%d" % (vC + 4 * m + r, vS + m, vMask + r))
        a("s_waitcnt vmcnt(%d)" % KW, "V tile")
        a("s_nop 1")
        for m in range(MG):
            for h in range(2):
                a("v_mfma_f32_16x16x32_bf16 %s, %s, %s, %s" % (vr(vO + 4 * h), vr(vC + 4 * m), vr(Breg(s, 2 * m + h)), vr(vO + 4 * h)))
        issue(s)
    a("s_branch L_v_0")
    for s in range(NS):
        t = "%d" % s
        a.label("L_vpoll_" + t)
        if D: a("s_add_u32 s83, s83, 1")
        a("s_sleep 1")
        a("ds_read_b32 v%d, v%d" % (vTk, vMaddr)); a("s_waitcnt lgkmcnt(0)")
        a("v_readfirstlane_b32 s%d, v%d" % (sTk + s, vTk))
        a("s_cmp_eq_u32 s%d, -1" % (sTk + s)); a("s_cbranch_scc1 L_vpoll_" + t)
        a("s_branch L_vhave_" + t)
        a.label("L_vsw_" + t)
        a("s_cmp_eq_u32 s%d, %d" % (sLim, NTICK)); a("s_cbranch_scc1 L_epi", "past head B: done")
        a("s_nop 7")
        a("s_cmp_eq_u32 s%d, %d" % (sLim, BASE)); a("s_cbranch_scc0 L_vswap_" + t)
        if D: a("s_memrealtime s[90:91]")
        a.c("first round of the pool: references become the pool's max per head (left by the ticket wave)")
        a("s_lshl_b32 s%d, s%d, 2" % (sT0, sH0)); a("s_add_u32 s%d, s%d, %d" % (sT0, sT0, MCP)); a("s_xor_b32 s%d, s%d, %d" % (sT1, sT0, MCP ^ (MCP + 4)))
        a("v_mov_b32 v%d, s%d" % (vT, sT0)); a("v_mov_b32 v%d, s%d" % (vT + 2, sT1))
        a("ds_read_b32 v%d, v%d" % (vT + 1, vT)); a("ds_read_b32 v%d, v%d" % (vMcA, vT + 2)); a("s_waitcnt lgkmcnt(0)")
        a("v_max_f32 v%d, v%d, v%d" % (vT + 1, vT + 1, vMc))
        a("v_sub_f32 v%d, v%d, v%d" % (vT, vMc, vT + 1)); a("v_mov_b32 v%d, v%d" % (vMc, vT + 1)); a("v_exp_f32 v%d, v%d" % (vT, vT))
        a("s_nop 0")
        a("v_mul_f32 v%d, v%d, v%d" % (vL, vL, vT))
        for i in range(8): a("v_mul_f32 v%d, v%d, v%d" % (vO + i, vO + i, vT))
        a("s_mov_b32 s%d, %d" % (sLim, THB))
        a("s_cmp_eq_u32 s%d, 0" % sH0); a("s_cbranch_scc1 L_v_" + t)
        a("s_cmp_lt_u32 s%d, %d" % (sTk + s, THB)); a("s_cbranch_scc1 L_vswap2_" + t)
        a("s_mov_b32 s%d, %d" % (sLim, NTICK)); a("s_branch L_v_" + t)
        a.label("L_vswap_" + t)
        a("s_mov_b32 s%d, %d" % (sLim, NTICK))
        a.label("L_vswap2_" + t)
        a.c("change of head: exchange the two accumulator sets")
        for i in range(8): a("v_swap_b32 v%d, v%d" % (vO + i, vOA + i))
        a("v_swap_b32 v%d, v%d" % (vL, vLA)); a("v_swap_b32 v%d, v%d" % (vMc, vMcA))
        a("s_branch L_v_" + t)

    f = open("gen_final.py").read()
    env = dict(locals()); env.update(vr=vr, sr=sr)
    j0 = f.index('    a.label("L_epi")'); j1 = f.index('    # ================= ticket wave')
    body = f[j0:j1].replace('''    if D: a("s_memrealtime s[56:57]")
    a("s_nop 7")''', '''    if D: a("s_memrealtime s[56:57]")
    srd(sW, sPtr + 10, WSB)
    a("s_nop 7")''')
    body = body.replace('(MBOX + 4 * NS - (W * 1024 + 128 + 4), vMaddr)', '(MBOX2 + 4 * NS - (W * 1024 + 128 + 4), vMaddr)')
    if D:
        body = body.replace('''    a.label("L_done")''', '''    if D:
        a("s_add_u32 s28, s28, 0x80000")
        a("v_mov_b32 v16, s90"); a("v_mov_b32 v17, s83"); a("v_mov_b32 v18, s68"); a("v_mov_b32 v19, s82"); a("v_mov_b32 v20, s94"); a("buffer_store_dword v20, v12, s[60:63], s28 offen offset:16")
        a("buffer_store_dwordx4 v[16:19], v12, s[60:63], s28 offen")
    a.label("L_done")''')
    import textwrap
    exec(textwrap.dedent(body), env)

    vX, vMx, vMy, vNeg = 20, 30, 31, 32
    a.label("L_helper")
    a("s_setprio 3")
    a.c("mailboxes: M[k] = j*R0 + k for the static rounds, EMPTY (-1) after them; progress words = 0")
    for i in range(4): a("v_mov_b32 v%d, -1" % (vT + i))
    a("v_lshlrev_b32 v%d, 4, v%d" % (vT + 4, vLane))
    for i in range(2 * MBN * 4 // 1024): a("ds_write_b128 v%d, %s offset:%d" % (vT + 4, vr(vT), MBOX + 1024 * i))
    a("v_add_u32 v%d, s%d, v%d" % (vT, sJ0, vLane)); a("v_lshlrev_b32 v%d, 2, v%d" % (vT + 1, vLane))
    for b in range(0, R0, 64):
        part = R0 - b < 64
        if part: a("s_bfm_b64 exec, %d, 0" % (R0 - b))
        a("ds_write_b32 v%d, v%d offset:%d" % (vT + 1, vT, MBOX + 4 * b)); a("ds_write_b32 v%d, v%d offset:%d" % (vT + 1, vT, MBOX2 + 4 * b))
        if part: a("s_mov_b64 exec, -1")
        else: a("v_add_u32 v%d, 64, v%d" % (vT, vT))
    for i in range(4): a("v_mov_b32 v%d, 0" % (vX + i))
    a("ds_write_b128 v%d, %s offset:%d" % (vZero, vr(vX), PW)); a("ds_write_b32 v%d, v%d offset:%d" % (vZero, vZero, PV))
    a("s_waitcnt lgkmcnt(0)")
    a("s_barrier")
    srd(sW, sPtr + 10, WSB); srd(sD, sPtr + 8, 256); srd_scores()
    a("s_add_u32 s%d, s%d, s%d" % (sAt, sPtr + 10, sCtl)); a("s_addc_u32 s%d, s%d, 0" % (sAt + 1, sPtr + 11))
    a("s_mov_b32 s%d, %s" % (sC, f32hex(LOG2E / 16.0)))
    a("s_mov_b32 s%d, %d" % (sNx, R0), "next mailbox slot to fill"); a("s_mov_b32 s%d, 0" % sLast, "pool counter as last seen")
    a("s_mov_b32 s%d, %d" % (sExp, R0), "next round to export"); a("s_mov_b32 s%d, %d" % (sNV, R0), "valid K rounds so far"); a("s_mov_b32 s%d, 0" % sDone)
    a("v_mov_b32 v%d, %s" % (vMx, NEG)); a("v_mov_b32 v%d, %s" % (vMy, NEG)); a("v_mov_b32 v%d, %s" % (vNeg, NEG))
    a("v_lshrrev_b32 v%d, %d, v%d" % (vX + 8, LLPR, vLane), "round inside an export / import batch")
    a("v_and_b32 v%d, %d, v%d" % (vX + 9, LPR - 1, vLane)); a("v_lshlrev_b32 v%d, 4, v%d" % (vX + 9, vX + 9), "16-byte piece inside the round")
    a("s_mov_b64 exec, 1")
    a("s_lshl_b32 s%d, s%d, 2" % (sT2, sPair)); a("s_add_u32 s%d, s%d, 128" % (sT2, sT2), "flag word of the group in d_debug")
    a("s_cmp_lg_u32 s%d, 0" % sJ); a("s_cbranch_scc1 L_h_w0")
    a.c("member 0 clears the group's control line (two pool counters, two completion counters, K-done counter), then raises the flag")
    a("buffer_store_dwordx4 %s, v%d, %s, s%d offen sc0 sc1" % (vr(vX), vZero, sr(sW), sCtl))
    a("buffer_store_dwordx4 %s, v%d, %s, s%d offen offset:16 sc0 sc1" % (vr(vX), vZero, sr(sW), sCtl))
    a("s_waitcnt vmcnt(0)")
    a("v_mov_b32 v%d, 1" % vT)
    a("buffer_store_dword v%d, v%d, %s, s%d offen sc0 sc1" % (vT, vZero, sr(sD), sT2)); a("s_waitcnt vmcnt(0)")
    def read_pw():
        a("ds_read_b128 %s, v%d offset:%d" % (vr(vT), vZero, PW)); a("s_waitcnt lgkmcnt(0)")
        a("v_min_u32 v%d, v%d, v%d" % (vT + 4, vT, vT + 1)); a("v_min3_u32 v%d, v%d, v%d, v%d" % (vT + 4, vT + 4, vT + 2, vT + 3))
        a("v_max_u32 v%d, v%d, v%d" % (vT + 5, vT, vT + 1)); a("v_max3_u32 v%d, v%d, v%d, v%d" % (vT + 5, vT + 5, vT + 2, vT + 3))
        a("s_nop 0")
        a("v_readfirstlane_b32 s%d, v%d" % (sT0, vT + 4), "slowest wave"); a("v_readfirstlane_b32 s%d, v%d" % (sPg, vT + 5), "fastest wave")
    a.label("L_h_w0")
    read_pw()
    a("s_add_u32 s%d, s%d, %d" % (sPg, sPg, NS + LA + 2 + P.tlbe)); a("s_cmp_le_u32 s%d, s%d" % (sNx, sPg)); a("s_cbranch_scc1 L_h_pre")
    a("s_sleep 16", "workers are still far from the end of their static rounds"); a("s_branch L_h_w0")
    def touch(ptr):
        step = 1 << P.tlbs
        n = (POOL * CB + step - 1) // step + 1
        a("s_lshr_b32 s%d, s%d, 8" % (sT1, sPair)); a("s_lshl_b32 s%d, s%d, 24" % (sT0, sPair))
        a("s_add_u32 s4, s%d, s%d" % (ptr, sT0)); a("s_addc_u32 s5, s%d, s%d" % (ptr + 1, sT1)); a("s_and_b32 s5, s5, 0xffff")
        a("s_mov_b32 s6, %d" % (2 * HEADB)); a("s_mov_b32 s7, 0x00020000")
        a("s_bfm_b64 exec, %d, 0" % min(n, 63))
        a("v_lshlrev_b32 v%d, %d, v%d" % (vT, P.tlbs, vLane)); a("v_add_u32 v%d, %d, v%d" % (vT, BASE * CB, vT))
        a("buffer_load_dword v%d, v%d, s[4:7], 0 offen nt" % (vT + 1, vT))
        a("s_mov_b64 exec, 1")
    a.label("L_h_pre")
    if P.tlb: touch(sPtr + 2)
    a.label("L_h_flag")
    a("buffer_load_dword v%d, v%d, %s, s%d offen sc0 sc1" % (vT, vZero, sr(sD), sT2)); a("s_waitcnt vmcnt(0)")
    a("v_readfirstlane_b32 s%d, v%d" % (sPg, vT)); a("s_cmp_lg_u32 s%d, 0" % sPg); a("s_cbranch_scc1 L_h_loop")
    a("s_sleep 4"); a("s_branch L_h_flag")

    def tickets(word, mbox, lab_next, lab_stop, kphase):
        gd, n0, n1 = (P.gdk, P.nmink, P.nmaxk) if kphase else (P.gdiv, P.nmin, P.nmax)
        assert n1 <= 31
        a("s_sub_i32 s%d, %d, s%d" % (sN, POOL, sLast), "batch = clamp(remaining >> %d, %d, %d)" % (gd, n0, n1))
        a("s_ashr_i32 s%d, s%d, %d" % (sN, sN, gd))
        a("s_max_i32 s%d, s%d, %d" % (sN, sN, n0)); a("s_min_i32 s%d, s%d, %d" % (sN, sN, n1))
        a("s_sub_i32 s%d, %d, s%d" % (sT1, CAP, sNx), "room left"); a("s_min_i32 s%d, s%d, s%d" % (sN, sN, sT1))
        a("s_cmp_le_i32 s%d, 0" % sN); a("s_cbranch_scc1 " + lab_stop)
        a("s_mov_b32 s%d, s%d" % (sLast, sN))
        a("s_atomic_add s%d, %s, 0x%x glc" % (sLast, sr(sAt, 2), word))
        a("s_lshl_b32 s%d, s%d, 2" % (sT2, sNx)); a("s_add_u32 s%d, s%d, %d" % (sT2, sT2, mbox))
        a("s_lshl_b32 s%d, 1, s%d" % (sT1, sN)); a("s_sub_u32 s%d, s%d, 1" % (sT1, sT1))
        a("s_waitcnt lgkmcnt(0)")
        if not kphase:
            a.c("bring in the scores of these rounds: 8 lanes x 16 bytes per round")
            a("s_lshl_b32 s%d, s%d, 3" % (sT0, sN)); a("s_bfm_b64 exec, s%d, 0" % sT0)
            a("v_add_u32 v%d, s%d, v%d" % (vT, sLast, vX + 8)); a("v_lshl_add_u32 v%d, v%d, 7, v%d" % (vT, vT, vX + 9))
            a("buffer_load_dwordx4 %s, v%d, %s, 0 offen %s" % (vr(vX + 4), vT, sr(sG), P.imp))
            a("v_add_u32 v%d, s%d, v%d" % (vT + 3, sNx, vX + 8)); a("v_lshl_add_u32 v%d, v%d, 7, v%d" % (vT + 3, vT + 3, vX + 9))
            a("s_waitcnt vmcnt(0)")
            a("ds_write_b128 v%d, %s offset:%d" % (vT + 3, vr(vX + 4), SC))
        a("s_mov_b64 exec, 0"); a("s_mov_b32 exec_lo, s%d" % sT1, "lanes 0..n-1 publish one ticket each")
        a("s_add_u32 s%d, s%d, %d" % (sT1, sLast, BASE))
        a("v_add_u32 v%d, s%d, v%d" % (vT + 1, sT1, vLane))
        a("v_lshlrev_b32 v%d, 2, v%d" % (vT + 2, vLane)); a("v_add_u32 v%d, s%d, v%d" % (vT + 2, sT2, vT + 2))
        a("ds_write_b32 v%d, v%d" % (vT + 2, vT + 1))
        a("s_mov_b64 exec, 1")
        if kphase:
            a.c("valid tickets of this batch: clamp(POOL - old, 0, n)")
            a("s_sub_i32 s%d, %d, s%d" % (sT1, POOL, sLast)); a("s_max_i32 s%d, s%d, 0" % (sT1, sT1)); a("s_min_i32 s%d, s%d, s%d" % (sT1, sT1, sN))
            a("s_add_u32 s%d, s%d, s%d" % (sNV, sNV, sT1))
        a("s_add_u32 s%d, s%d, s%d" % (sNx, sNx, sN))
        a("s_add_u32 s%d, s%d, s%d" % (sLast, sLast, sN))
        a("s_cmp_lt_u32 s%d, %d" % (sLast, POOL)); a("s_cbranch_scc1 " + lab_next)
    def fill_invalid(mbox):
        a("s_mov_b64 exec, 0xff")
        a("s_lshl_b32 s%d, s%d, 2" % (sT2, sNx)); a("s_add_u32 s%d, s%d, %d" % (sT2, sT2, mbox))
        a("v_lshlrev_b32 v%d, 2, v%d" % (vT, vLane)); a("v_add_u32 v%d, s%d, v%d" % (vT, sT2, vT))
        a("v_mov_b32 v%d, %d" % (vT + 1, NTICK)); a("ds_write_b32 v%d, v%d" % (vT, vT + 1))
        a("s_mov_b64 exec, 1")

    a.label("L_h_loop")
    read_pw()
    a.c("export the scores of finished pool rounds: up to 7 rounds, 8 lanes x 16 bytes each")
    a("s_mov_b32 s%d, s%d" % (sMinP, sT0))
    if P.late:
        a("s_cmp_eq_u32 s%d, 0" % sDone); a("s_cbranch_scc1 L_h_noexp", "exports wait for the end of pass 1 (one burst of writes)")
    a("s_min_u32 s%d, s%d, s%d" % (sT0, sT0, sNV)); a("s_sub_i32 s%d, s%d, s%d" % (sT0, sT0, sExp))
    a("s_min_i32 s%d, s%d, %d" % (sT0, sT0, XMAX)); a("s_cmp_le_i32 s%d, 0" % sT0); a("s_cbranch_scc1 L_h_noexp")
    a("s_lshl_b32 s%d, s%d, %d" % (sT1, sT0, LLPR)); a("s_bfm_b64 exec, s%d, 0" % sT1)
    a("v_add_u32 v%d, s%d, v%d" % (vT, sExp, vX + 8), "round")
    a("v_lshlrev_b32 v%d, 2, v%d" % (vT + 1, vT)); a("ds_read_b32 v%d, v%d offset:%d" % (vT + 2, vT + 1, MBOX), "its ticket")
    a("v_lshl_add_u32 v%d, v%d, %d, v%d" % (vT + 3, vT, LSCR, vX + 9)); a("ds_read_b128 %s, v%d offset:%d" % (vr(vX + 4), vT + 3, SC))
    a("s_add_u32 s%d, s%d, s%d" % (sExp, sExp, sT0))
    a("s_waitcnt lgkmcnt(0)")
    a("v_subrev_u32 v%d, %d, v%d" % (vT + 2, BASE, vT + 2))
    a("v_cmp_gt_u32 vcc, %d, v%d" % (POOL // 2, vT + 2), "head A?")
    a("v_lshl_add_u32 v%d, v%d, %d, v%d" % (vT + 2, vT + 2, LSCR, vX + 9))
    a("buffer_store_dwordx4 %s, v%d, %s, 0 offen %s" % (vr(vX + 4), vT + 2, sr(sG), P.exp))
    a("v_max3_f32 v%d, v%d, v%d, v%d" % (vT + 4, vX + 4, vX + 5, vX + 6)); a("v_max_f32 v%d, v%d, v%d" % (vT + 4, vT + 4, vX + 7))
    a("v_cndmask_b32 v%d, v%d, v%d, vcc" % (vT + 5, vNeg, vT + 4)); a("v_cndmask_b32 v%d, v%d, v%d, vcc" % (vT + 4, vT + 4, vNeg))
    a("v_max_f32 v%d, v%d, v%d" % (vMx, vMx, vT + 5)); a("v_max_f32 v%d, v%d, v%d" % (vMy, vMy, vT + 4))
    a("s_mov_b64 exec, 1")
    a("s_branch L_h_loop")
    a.label("L_h_noexp")
    a("s_cmp_lg_u32 s%d, 0" % sDone); a("s_cbranch_scc1 L_h_chk")
    if P.usemin: a("s_mov_b32 s%d, s%d" % (sPg, sMinP))
    a("s_add_u32 s%d, s%d, %d" % (sPg, sPg, NS + LA)); a("s_cmp_le_u32 s%d, s%d" % (sNx, sPg)); a("s_cbranch_scc1 L_h_go")
    a("s_sleep 1"); a("s_branch L_h_loop")
    a.label("L_h_go")
    tickets(0x0, MBOX, "L_h_loop", "L_h_stop", True)
    a.label("L_h_stop")
    fill_invalid(MBOX)
    a("s_mov_b32 s%d, 1" % sDone)
    a("s_branch L_h_loop")
    a.label("L_h_chk")
    a("s_cmp_ge_u32 s%d, s%d" % (sExp, sNV)); a("s_cbranch_scc1 L_h_kend")
    a("s_sleep 1"); a("s_branch L_h_loop")
    a.label("L_h_kend")
    a.c("all scores exported: publish this workgroup's max per head over them, then count it as done with K")
    a("s_mov_b64 exec, -1")
    for v in (vMx, vMy):
        for ctl in ("quad_perm:[1,0,3,2]", "quad_perm:[2,3,0,1]", "row_half_mirror", "row_mirror"): dppmax(v, ctl)
        a("s_nop 1")
        xrow(v, "v_max_f32")
    a("s_mov_b64 exec, 1")
    a("s_lshl_b32 s%d, s%d, 2" % (sT2, sJ)); a("s_add_u32 s%d, s%d, s%d" % (sT2, sT2, sCtl))
    a("buffer_store_dword v%d, v%d, %s, s%d offen offset:128 sc0 sc1" % (vMx, vZero, sr(sW), sT2))
    a("buffer_store_dword v%d, v%d, %s, s%d offen offset:160 sc0 sc1" % (vMy, vZero, sr(sW), sT2))
    a("s_waitcnt vmcnt(0)", "scores and max written through")
    a("s_mov_b32 s%d, 1" % sT1); a("s_atomic_add s%d, %s, 0x10 glc" % (sT1, sr(sAt, 2)))
    a("s_mov_b32 s%d, %d" % (sNx, R0)); a("s_mov_b32 s%d, 0" % sLast)
    a("s_waitcnt lgkmcnt(0)")
    a.label("L_h_v0")
    a("ds_read_b32 v%d, v%d offset:%d" % (vT, vZero, PV)); a("s_waitcnt lgkmcnt(0)")
    a("v_readfirstlane_b32 s%d, v%d" % (sPg, vT))
    a("s_add_u32 s%d, s%d, %d" % (sPg, sPg, NS + LAV + 4 + P.tlbe)); a("s_cmp_le_u32 s%d, s%d" % (sNx, sPg)); a("s_cbranch_scc1 L_h_vpre")
    a("s_sleep 16"); a("s_branch L_h_v0")
    a.label("L_h_vpre")
    if P.tlb: touch(sPtr + 4)
    a.label("L_h_kd")
    a("s_mov_b32 s%d, 0" % sT1); a("s_atomic_add s%d, %s, 0x10 glc" % (sT1, sr(sAt, 2))); a("s_waitcnt lgkmcnt(0)")
    a("s_cmp_ge_u32 s%d, %d" % (sT1, S)); a("s_cbranch_scc1 L_h_mx")
    a("s_sleep 4"); a("s_branch L_h_kd")
    a.label("L_h_mx")
    a("s_mov_b64 exec, 0xffff")
    a("v_lshlrev_b32 v%d, 2, v%d" % (vT, vLane))
    a("buffer_load_dword v%d, v%d, %s, s%d offen offset:128 sc0 sc1" % (vMx, vT, sr(sW), sCtl)); a("s_waitcnt vmcnt(0)")
    for ctl in ("quad_perm:[1,0,3,2]", "quad_perm:[2,3,0,1]", "row_half_mirror"): dppmax(vMx, ctl)
    a("s_mov_b64 exec, 0x101", "lane 0: head A, lane 8: head B")
    a("v_mul_f32 v%d, s%d, v%d" % (vMx, sC, vMx))
    a("v_lshrrev_b32 v%d, 1, v%d" % (vT, vLane))
    a("ds_write_b32 v%d, v%d offset:%d" % (vT, vMx, MCP))
    a("s_mov_b64 exec, 1")
    sOld, sPn, sHave = 94, 95, 91
    def vsize():
        a("s_sub_i32 s%d, %d, s%d" % (sN, POOL, sLast), "batch = clamp(remaining >> %d, %d, %d)" % (P.gdiv, P.nmin, P.nmax))
        a("s_ashr_i32 s%d, s%d, %d" % (sN, sN, P.gdiv))
        a("s_max_i32 s%d, s%d, %d" % (sN, sN, P.nmin)); a("s_min_i32 s%d, s%d, %d" % (sN, sN, P.nmax))
        a("s_sub_i32 s%d, %d, s%d" % (sT1, CAP, sNx), "room left"); a("s_min_i32 s%d, s%d, s%d" % (sN, sN, sT1))
    assert P.nmax <= XMAX
    a.label("L_h_vloop")
    a.c("no add in flight: wait until the workers come close to the end of what they have")
    a("ds_read_b32 v%d, v%d offset:%d" % (vT, vZero, PV)); a("s_waitcnt lgkmcnt(0)")
    a("v_readfirstlane_b32 s%d, v%d" % (sPg, vT))
    a("s_add_u32 s%d, s%d, %d" % (sPg, sPg, NS + LAV)); a("s_cmp_le_u32 s%d, s%d" % (sNx, sPg)); a("s_cbranch_scc1 L_h_vgo")
    a("s_sleep 1"); a("s_branch L_h_vloop")
    a.label("L_h_vgo")
    vsize()
    a("s_cmp_le_i32 s%d, 0" % sN); a("s_cbranch_scc1 L_h_vstop")
    a("s_mov_b32 s%d, s%d" % (sLast, sN)); a("s_atomic_add s%d, %s, 0xc glc" % (sLast, sr(sAt, 2)))
    a("s_mov_b32 s%d, s%d" % (sPn, sN))
    a("s_waitcnt lgkmcnt(0)")
    a.label("L_h_vhave")
    a.c("batch (old = sLast, size = sPn) is ours: import its scores, meanwhile ask for the next one if it is due")
    a("s_mov_b32 s%d, s%d" % (sOld, sLast))
    a("s_lshl_b32 s%d, s%d, %d" % (sT0, sPn, LLPR)); a("s_bfm_b64 exec, s%d, 0" % sT0)
    a("v_add_u32 v%d, s%d, v%d" % (vT, sOld, vX + 8)); a("v_lshl_add_u32 v%d, v%d, %d, v%d" % (vT, vT, LSCR, vX + 9))
    a("buffer_load_dwordx4 %s, v%d, %s, 0 offen %s" % (vr(vX + 4), vT, sr(sG), P.imp))
    a("v_add_u32 v%d, s%d, v%d" % (vT + 3, sNx, vX + 8)); a("v_lshl_add_u32 v%d, v%d, %d, v%d" % (vT + 3, vT + 3, LSCR, vX + 9))
    a("s_mov_b64 exec, 1")
    a("ds_read_b32 v%d, v%d offset:%d" % (vT, vZero, PV))
    a("s_lshl_b32 s%d, s%d, 2" % (sT2, sNx)); a("s_add_u32 s%d, s%d, %d" % (sT2, sT2, MBOX2), "mailbox slot of this batch")
    a("s_add_u32 s%d, s%d, s%d" % (sNx, sNx, sPn)); a("s_add_u32 s%d, s%d, s%d" % (sLast, sOld, sPn))
    a("s_mov_b32 s%d, 0" % sHave); a("s_mov_b32 s%d, s%d" % (sT3, sPn))
    a("s_waitcnt lgkmcnt(0)")
    a("v_readfirstlane_b32 s%d, v%d" % (sPg, vT))
    a("s_cmp_ge_u32 s%d, %d" % (sLast, POOL)); a("s_cbranch_scc1 L_h_vimp", "pool exhausted: nothing more to ask for")
    a("s_add_u32 s%d, s%d, %d" % (sPg, sPg, NS + LAV + P.vpre)); a("s_cmp_le_u32 s%d, s%d" % (sNx, sPg)); a("s_cbranch_scc0 L_h_vimp")
    vsize()
    a("s_cmp_le_i32 s%d, 0" % sN); a("s_cbranch_scc1 L_h_vimp")
    a("s_mov_b32 s%d, s%d" % (sPn, sN)); a("s_mov_b32 s%d, 1" % sHave)
    a("s_mov_b32 s%d, s%d" % (sLast, sN)); a("s_atomic_add s%d, %s, 0xc glc" % (sLast, sr(sAt, 2)))
    a.label("L_h_vimp")
    a("s_lshl_b32 s%d, s%d, %d" % (sT0, sT3, LLPR)); a("s_bfm_b64 exec, s%d, 0" % sT0)
    a("s_waitcnt vmcnt(0)")
    a("ds_write_b128 v%d, %s offset:%d" % (vT + 3, vr(vX + 4), SC))
    a("s_bfm_b64 exec, s%d, 0" % sT3, "lanes 0..n-1 publish one ticket each")
    a("s_add_u32 s%d, s%d, %d" % (sT1, sOld, BASE))
    a("v_add_u32 v%d, s%d, v%d" % (vT + 1, sT1, vLane))
    a("v_lshlrev_b32 v%d, 2, v%d" % (vT + 2, vLane)); a("v_add_u32 v%d, s%d, v%d" % (vT + 2, sT2, vT + 2))
    a("ds_write_b32 v%d, v%d" % (vT + 2, vT + 1))
    a("s_mov_b64 exec, 1")
    a("s_cmp_lg_u32 s%d, 0" % sHave); a("s_cbranch_scc0 L_h_vnext")
    a("s_waitcnt lgkmcnt(0)"); a("s_branch L_h_vhave")
    a.label("L_h_vnext")
    a("s_cmp_lt_u32 s%d, %d" % (sLast, POOL)); a("s_cbranch_scc1 L_h_vloop")
    a.label("L_h_vstop")
    fill_invalid(MBOX2)
    a("s_waitcnt lgkmcnt(0)")
    a("s_endpgm")

    lds = max(SC + CAP * SCR, P.lds)
    out = HEADER + "; @launch grid=(%d,1,1) block=(%d,1,1) lds=%d\n" % (NWG, (W + 1) * 64, lds)
    out += DOC.format(CK=CK, TK=TK, R0=R0, CB=CB, POOL=POOL)
    out += '.amdgcn_target "amdgcn-amd-amdhsa--gfx950"\n.text\n'
    out += ".globl %s_kernel\n.p2align 8\n.type %s_kernel,@function\n%s_kernel:\n" % (NAME, NAME, NAME)
    out += a.text()
    out += '.section .rodata,"a"\n.p2align 6\n.amdhsa_kernel %s_kernel\n' % NAME
    out += "  .amdhsa_next_free_vgpr %d\n  .amdhsa_next_free_sgpr 96\n  .amdhsa_accum_offset %d\n" % (nv, (nv + 3) // 4 * 4)
    out += "  .amdhsa_group_segment_fixed_size 0\n  .amdhsa_kernarg_size 48\n  .amdhsa_user_sgpr_count 2\n"
    out += "  .amdhsa_user_sgpr_kernarg_segment_ptr 1\n  .amdhsa_system_sgpr_workgroup_id_x 1\n.end_amdhsa_kernel\n"
    return out

if __name__ == "__main__":
    ap = argparse.ArgumentParser()
    ap.add_argument("--mg", type=int, default=2); ap.add_argument("--r0", type=int, default=96)
    ap.add_argument("--stages", type=int, default=2)
    ap.add_argument("--cap", type=int, default=256)
    ap.add_argument("--la", type=int, default=3); ap.add_argument("--lav", type=int, default=2)
    ap.add_argument("--gdiv", type=int, default=5); ap.add_argument("--nmax", type=int, default=7); ap.add_argument("--nmin", type=int, default=2)
    ap.add_argument("--lds", type=int, default=0); ap.add_argument("--diag", type=int, default=0)
    ap.add_argument("--exp", default="sc0 sc1"); ap.add_argument("--imp", default="sc0 sc1")
    ap.add_argument("--blk", type=int, default=4)
    ap.add_argument("--tlbe", type=int, default=0); ap.add_argument("--prot", type=int, default=0)
    ap.add_argument("--tlb", type=int, default=0); ap.add_argument("--tlbs", type=int, default=18)
    ap.add_argument("--late", type=int, default=1); ap.add_argument("--vpre", type=int, default=2)
    ap.add_argument("--gdk", type=int, default=4); ap.add_argument("--nmink", type=int, default=2); ap.add_argument("--nmaxk", type=int, default=16)
    ap.add_argument("--policy", default="nt"); ap.add_argument("--usemin", type=int, default=0)
    ap.add_argument("-o", default="-")
    P = ap.parse_args(); t = gen(P)
    (sys.stdout if P.o == "-" else open(P.o, "w")).write(t)
```

```python
import argparse, sys
from gen_final import A, vr, sr, f32hex, HEADER, NAME, NH, SKV, DH, ROWB, HEADB, LOG2E

DOC = """;
;    16 MiB of K and of V = 8 slots of 2 MiB (4 per head), cut into rounds of {CK} keys ({TK} per worker wave).
;    In each pass workgroup j first runs the first {R0} rounds of slot j, then takes rounds of the pool (the
;    rest of the 8 slots, {POOL} rounds) from a per-group counter in d_ws: load balance across the dies.
"""

def gen(P):
    W, S = 4, 8
    NWG = (NH // 2) * S
    MG, NS, LA, LAV = P.mg, P.stages, P.la, P.lav
    assert MG in (2, 4)
    TK = 4 * MG; TB = TK * ROWB; CK = W * TK; CB = CK * ROWB
    NTH = SKV // CK; NTICK = 2 * NTH
    R0 = P.r0 if P.r0 else NTH // S
    BASE = R0 * S; POOL = NTICK - BASE
    SL = NTICK // S
    SEG = SL - R0
    THB = BASE + POOL // 2
    assert 0 < SEG and POOL == S * SEG
    NL = 2 * MG
    CAP = P.cap
    assert NS <= R0 < CAP and CAP * S >= NTICK
    REC = 1024 + 128
    CTRL = 0x100000
    SCG = 0x200000
    SCR = W * TK * 4
    LSCR = SCR.bit_length() - 1
    LPR = SCR // 16
    LLPR = LPR.bit_length() - 1
    XMAX = 63 // LPR
    WSB = SCG + (NH // 2) * POOL * SCR
    ML = 2 * W * 1024
    PW, PV, MCP = ML + 224, ML + 240, ML + 244
    MBN = (CAP + 16 + 255) // 256 * 256
    MBOX = ML + 256
    MBOX2 = MBOX + MBN * 4
    SC = MBOX2 + MBN * 4
    NEG = "0xff7fffff"
    pol = " " + P.policy
    KW = (NS - 1) * NL
    D = P.diag
    BIG = 0x7fffffff
    OOB = 0x7fffff00

    a = A()
    sV, sG, sCur, sW, sO, sD = 4, 8, 12, 16, 44, 48
    sQ = 16
    sOff, sOff2, sLim, sPair, sJ, sWave, sC, sWOff = 20, 21, 22, 23, 24, 25, 26, 27
    sT0, sT1, sT2, sT3 = 28, 29, 30, 31
    sPtr = 32
    sTk = 64
    sCK, sNK = 68, 69
    sCtl, sJ0 = 70, 71
    sNx, sPg, sN, sLast = 72, 73, 74, 75
    sSave, sAt = 76, 78
    sSel = 80
    sMode, sExp, sNV, sDone = 84, 85, 86, 87
    sMinP = 90
    sRot = 92
    sJSeg, sH0 = 88, 89
    vKoff, vVoff, vLane = 1, 2, 3
    vQ, vMask = 4, 12
    vM, vL, vMc, vCur = 16, 17, 18, 19
    vO, vC, vS, vT = 20, 28, 44, 48
    vTk, vMaddr, vPub, vZero, vRnd, vSad = 54, 55, 56, 57, 58, 59
    vMA, vGoff, vPubV, vRndV = 60, 61, 62, 63
    vMS = 82
    vQ2, vOA, vMcA, vLA = 64, 72, 80, 81
    vG = 36
    vBuf = 84
    Breg = lambda s, i: vBuf + s * 4 * NL + 4 * i
    nv = max(vBuf + NS * 4 * NL, vBuf + 64)
    assert NS <= 4 and nv <= 256

    def issue(s):
        for m in range(MG):
            for j in range(2):
                off, so = m * 2048 + j * 256, sOff
                if off >= 4096: off, so = off - 4096, sOff2
                a("buffer_load_dwordx4 %s, v%d, %s, s%d offen offset:%d%s" % (vr(Breg(s, 2 * m + j)), vCur, sr(sCur), so, off, pol))
    def set_off(src):
        a.c("round of the pair's range: static t = j*R0+k -> slot j, position k; pool rounds are dealt in blocks over the slots' tails")
        a("s_add_u32 s%d, s%d, s%d" % (sOff, src, sJSeg)); a("s_sub_u32 s%d, s%d, %d" % (sOff2, src, BASE))
        if P.blk:
            b = P.blk; lb = b.bit_length() - 1; H = POOL // 2
            assert b & (b - 1) == 0 and SEG % b == 0 and H & (H - 1) == 0
            lh = H.bit_length() - 1
            a("s_lshr_b32 s%d, s%d, %d" % (sRot, sOff2, lh)); a("s_lshl_b32 s%d, s%d, 2" % (sRot, sRot), "4 * half (invalid tickets: >= 8)")
            a("s_and_b32 s%d, s%d, %d" % (sOff2, sOff2, H - 1))
            a("s_bfe_u32 s%d, s%d, 0x%x" % (sRot + 1, sOff2, (2 << 16) | lb)); a("s_add_u32 s%d, s%d, s%d" % (sRot, sRot, sRot + 1), "slot")
            a("s_lshl_b32 s%d, s%d, %d" % (sRot, sRot, SL.bit_length() - 1))
            a("s_lshr_b32 s%d, s%d, %d" % (sRot + 1, sOff2, lb + 2)); a("s_lshl_b32 s%d, s%d, %d" % (sRot + 1, sRot + 1, lb)); a("s_add_u32 s%d, s%d, s%d" % (sRot, sRot, sRot + 1))
            a("s_and_b32 s%d, s%d, %d" % (sOff2, sOff2, b - 1)); a("s_add_u32 s%d, s%d, s%d" % (sOff2, sOff2, sRot)); a("s_add_u32 s%d, s%d, %d" % (sOff2, sOff2, R0))
        else:
            if SEG & (SEG - 1) == 0: a("s_lshr_b32 s%d, s%d, %d" % (sRot, sOff2, SEG.bit_length() - 1))
            else: a("s_mul_hi_u32 s%d, s%d, %d" % (sRot, sOff2, (1 << 32) // SEG + 1))
            a("s_mul_i32 s%d, s%d, %d" % (sRot, sRot, R0)); a("s_add_u32 s%d, s%d, s%d" % (sOff2, sOff2, sRot)); a("s_add_u32 s%d, s%d, %d" % (sOff2, sOff2, R0))
        a("s_cmp_ge_u32 s%d, %d" % (src, BASE)); a("s_cselect_b32 s%d, s%d, s%d" % (sOff, sOff2, sOff))
        a("s_mul_i32 s%d, s%d, %d" % (sOff, sOff, CB)); a("s_add_u32 s%d, s%d, s%d" % (sOff, sOff, sWOff))
        if MG > 2: a("s_add_u32 s%d, s%d, 4096" % (sOff2, sOff))
    def srd(dst, lo, size):
        a("s_mov_b32 s%d, s%d" % (dst, lo)); a("s_and_b32 s%d, s%d, 0xffff" % (dst + 1, lo + 1))
        a("s_mov_b32 s%d, %d" % (dst + 2, size)); a("s_mov_b32 s%d, 0x00020000" % (dst + 3))
    def srd_scores():
        a("s_mul_i32 s%d, s%d, %d" % (sT2, sPair, POOL * SCR)); a("s_add_u32 s%d, s%d, 0x%x" % (sT2, sT2, SCG))
        a("s_add_u32 s%d, s%d, s%d" % (sG, sPtr + 10, sT2)); a("s_addc_u32 s%d, s%d, 0" % (sG + 1, sPtr + 11))
        a("s_and_b32 s%d, s%d, 0xffff" % (sG + 1, sG + 1))
        a("s_mov_b32 s%d, %d" % (sG + 2, POOL * SCR)); a("s_mov_b32 s%d, 0x00020000" % (sG + 3))
    def xrow(v, op):
        for sw in ("v_permlane16_swap_b32", "v_permlane32_swap_b32"):
            a("v_mov_b32 v%d, v%d" % (vT + 1, v)); a("s_nop 1")
            a("%s v%d, v%d" % (sw, v, vT + 1)); a("s_nop 1")
            a("%s v%d, v%d, v%d" % (op, v, v, vT + 1))
    def dppmax(v, ctl):
        a("s_nop 1"); a("v_max_f32_dpp v%d, v%d, v%d %s row_mask:0xf bank_mask:0xf" % (v, v, v, ctl))

    if D: a("s_memrealtime s[52:53]"); a("s_mov_b32 s82, 0"); a("s_mov_b32 s83, 0")
    a("s_cmp_ge_u32 s2, %d" % NWG, "workgroups past the data leave at once")
    a("s_cbranch_scc1 L_done")
    a("s_load_dwordx4 %s, s[0:1], 0" % sr(sPtr), "q, k")
    a("s_load_dwordx4 %s, s[0:1], 16" % sr(sPtr + 4), "v, out")
    a("s_load_dwordx4 %s, s[0:1], 32" % sr(sPtr + 8), "debug, ws")
    a("v_and_b32 v%d, 63, v0" % vLane)
    a("v_lshrrev_b32 v%d, 6, v0" % vT)
    a("v_lshrrev_b32 v%d, 4, v%d" % (vT + 1, vLane), "g = lane>>4")
    a("v_readfirstlane_b32 s%d, v%d" % (sWave, vT))
    a("s_lshr_b32 s%d, s2, 3" % sPair, "group = head pair")
    if P.jrot:
        a("s_mul_i32 s%d, s%d, %d" % (sJ, sPair, P.jrot)); a("s_add_u32 s%d, s%d, s2" % (sJ, sJ)); a("s_and_b32 s%d, s%d, 7" % (sJ, sJ), "member of the group")
    else:
        a("s_and_b32 s%d, s2, 7" % sJ, "member of the group")
    a.c("K fragment (A operand): lane(i=4*key+p, g) reads key row 'key', 16 bytes at g*64 + p*16 (+256 for the 2nd half)")
    a("v_bfe_u32 v%d, v%d, 2, 2" % (vT + 2, vLane)); a("v_lshlrev_b32 v%d, 9, v%d" % (vT + 2, vT + 2))
    a("v_lshl_add_u32 v%d, v%d, 6, v%d" % (vT + 2, vT + 1, vT + 2)); a("v_and_b32 v%d, 3, v%d" % (vT + 3, vLane))
    a("v_lshl_add_u32 v%d, v%d, 4, v%d" % (vKoff, vT + 3, vT + 2))
    a.c("V fragment (B operand): lane(j, g) reads key row g, 16 bytes at j*16 (+256 for the 2nd half)")
    a("v_and_b32 v%d, 15, v%d" % (vT + 4, vLane)); a("v_lshlrev_b32 v%d, 4, v%d" % (vT + 4, vT + 4))
    a("v_lshl_add_u32 v%d, v%d, 9, v%d" % (vVoff, vT + 1, vT + 4))
    a.c("q fragment (B operand): lane(n, g) holds the q chunk that matches K chunk g*64 + (n&3)*16")
    a("v_lshlrev_b32 v%d, 4, v%d" % (vT + 3, vT + 3)); a("v_lshl_add_u32 v%d, v%d, 6, v%d" % (vT + 5, vT + 1, vT + 3))
    a("v_mov_b32 v%d, 0" % vZero)
    a("v_mov_b32 v%d, v%d" % (vCur, vKoff))
    a("s_lshr_b32 s%d, s%d, 8" % (sT1, sPair)); a("s_lshl_b32 s%d, s%d, 24" % (sT0, sPair), "pair * 16 MiB")
    a("s_mul_i32 s%d, s%d, %d" % (sWOff, sWave, TB))
    a("s_mul_i32 s%d, s%d, %d" % (sJ0, sJ, R0), "first static ticket")
    for s in range(NS): a("s_add_u32 s%d, s%d, %d" % (sTk + s, sJ0, s))
    a("s_lshl_b32 s%d, s%d, 8" % (sCtl, sPair)); a("s_add_u32 s%d, s%d, 0x%x" % (sCtl, sCtl, CTRL), "control line of the group (offset in d_ws)")
    a.c("score slot of this lane inside a round: wave*TK*4 + g*MG*4")
    a("v_mul_u32_u24 v%d, %d, v%d" % (vGoff, MG * 4, vT + 1)); a("s_mul_i32 s%d, s%d, %d" % (sT2, sWave, TK * 4)); a("v_add_u32 v%d, s%d, v%d" % (vGoff, sT2, vGoff))
    a("s_mul_i32 s%d, s%d, %d" % (sJSeg, sJ, SEG)); a("s_lshr_b32 s%d, s%d, 2" % (sH0, sJ), "head of the static rounds: slots 0..3 are head A, 4..7 head B")
    set_off(sTk)
    a("s_cmp_eq_u32 s%d, %d" % (sWave, W))
    a("s_waitcnt lgkmcnt(0)")
    a("s_cbranch_scc1 L_helper")
    a("s_add_u32 s%d, s%d, s%d" % (sCur, sPtr + 2, sT0)); a("s_addc_u32 s%d, s%d, s%d" % (sCur + 1, sPtr + 3, sT1))
    a("s_and_b32 s%d, s%d, 0xffff" % (sCur + 1, sCur + 1))
    a("s_mov_b32 s%d, %d" % (sCur + 2, 2 * HEADB), "tickets past the pair's range read nothing"); a("s_mov_b32 s%d, 0x00020000" % (sCur + 3))
    a("s_add_u32 s%d, s%d, s%d" % (sV, sPtr + 4, sT0)); a("s_addc_u32 s%d, s%d, s%d" % (sV + 1, sPtr + 5, sT1))
    a("s_and_b32 s%d, s%d, 0xffff" % (sV + 1, sV + 1))
    issue(0)
    srd(sQ, sPtr, NH * ROWB)
    a("s_lshl_b32 s%d, s%d, 10" % (sT0, sPair)); a("s_lshl_b32 s%d, s%d, 9" % (sT1, sH0)); a("s_or_b32 s%d, s%d, s%d" % (sT0, sT0, sT1), "q of the static head")
    a("s_xor_b32 s%d, s%d, 512" % (sT1, sT0), "q of the other head")
    for dst, so, off in ((vQ, sT0, 0), (vQ + 4, sT0, 256), (vQ2, sT1, 0), (vQ2 + 4, sT1, 256)):
        a("buffer_load_dwordx4 %s, v%d, %s, s%d offen offset:%d" % (vr(dst), vT + 5, sr(sQ), so, off))
    for s in range(1, NS): set_off(sTk + s); issue(s)
    srd(sO, sPtr + 6, NH * ROWB)
    a.c("P operand masks: element e=(lane&7) of the 8-wide k slab is the only live one")
    a("v_and_b32 v%d, 1, v%d" % (vT, vLane)); a("v_lshlrev_b32 v%d, 4, v%d" % (vT, vT)); a("v_mov_b32 v%d, 0xffff" % (vT + 1))
    a("v_lshlrev_b32 v%d, v%d, v%d" % (vT, vT, vT + 1)); a("v_bfe_u32 v%d, v%d, 1, 2" % (vT + 1, vLane))
    for r in range(4):
        a("v_cmp_eq_u32 vcc, %d, v%d" % (r, vT + 1)); a("s_nop 1"); a("v_cndmask_b32 v%d, 0, v%d, vcc" % (vMask + r, vT))
    a("v_mov_b32 v%d, %s" % (vM, NEG)); a("v_mov_b32 v%d, 0" % vL)
    for i in range(8): a("v_mov_b32 v%d, 0" % (vO + i))
    a("s_mov_b32 s%d, %s" % (sC, f32hex(LOG2E / 16.0)), "log2(e) / sqrt(256)")
    a("s_mov_b32 s%d, %d" % (sLim, BASE), "next ticket threshold at which something changes")
    a("s_mov_b32 s%d, 0" % sCK); a("s_mov_b32 s%d, 0x%x" % (sNK, BIG))
    a("v_mov_b32 v%d, %d" % (vMaddr, MBOX + 4 * NS)); a("v_mov_b32 v%d, 0" % vRnd); a("v_mov_b32 v%d, 0" % vRndV)
    a("s_lshl_b32 s%d, s%d, 2" % (sT0, sWave)); a("s_add_u32 s%d, s%d, %d" % (sT0, sT0, PW)); a("v_mov_b32 v%d, s%d" % (vPub, sT0), "this wave's progress word")
    a("v_mov_b32 v%d, %d" % (vPubV, PV))
    a("v_add_u32 v%d, %d, v%d" % (vSad, SC, vGoff))
    a("s_barrier", "mailboxes initialised by the ticket wave")

    for s in range(NS):
        t = "%d" % s
        a.label("L_k_" + t)
        a("s_cmp_ge_u32 s%d, s%d" % (sCK, sNK)); a("s_cbranch_scc1 L_tov_" + t)
        a.label("L_k2_" + t)
        a("s_cmp_lt_u32 s%d, s%d" % (sTk + s, sLim)); a("s_cbranch_scc0 L_ksw_" + t)
        a.label("L_kgo_" + t)
        a("ds_write_b32 v%d, v%d" % (vPub, vRnd), "publish progress (rounds whose scores are in LDS)")
        a("ds_read_b32 v%d, v%d" % (vTk, vMaddr), "next job's ticket")
        a("s_waitcnt vmcnt(%d)" % KW, "K tile")
        for j in range(2):
            for m in range(MG):
                a("v_mfma_f32_16x16x32_bf16 %s, %s, %s, %s" % (vr(vC + 4 * m), vr(Breg(s, 2 * m + j)), vr(vQ + 4 * j), "0" if j == 0 else vr(vC + 4 * m)))
        a("s_waitcnt lgkmcnt(0)")
        a("v_readfirstlane_b32 s%d, v%d" % (sTk + s, vTk))
        a("s_cmp_ge_u32 s%d, %d" % (sTk + s, NTICK)); a("s_cbranch_scc1 L_kx_" + t, "EMPTY (-1) or 'no more K work'")
        a.label("L_khave_" + t)
        set_off(sTk + s); issue(s)
        a("v_add_u32 v%d, 4, v%d" % (vMaddr, vMaddr))
        a("s_nop 1")
        for m in range(MG):
            a("v_mov_b32_dpp v%d, v%d quad_perm:[0,0,0,0] row_mask:0xf bank_mask:0xf" % (vS + m, vC + 4 * m))
        for r in range(1, 4):
            if MG < 4: a("s_nop 1")
            for m in range(MG):
                a("v_add_f32_dpp v%d, v%d, v%d quad_perm:[%d,%d,%d,%d] row_mask:0xf bank_mask:0xf" % (vS + m, vC + 4 * m + r, vS + m, r, r, r, r))
        a("%s v%d, %s" % ("ds_write_b64" if MG == 2 else "ds_write_b128", vSad, vr(vS, MG)), "scores of this tile")
        for m in range(0, MG, 2): a("v_max3_f32 v%d, v%d, v%d, v%d" % (vM, vM, vS + m, vS + m + 1))
        a("v_add_u32 v%d, %d, v%d" % (vSad, SCR, vSad)); a("v_add_u32 v%d, 1, v%d" % (vRnd, vRnd))
        a("s_add_u32 s%d, s%d, 1" % (sCK, sCK))
    a("s_branch L_k_0")
    for s in range(NS):
        t = "%d" % s
        a.label("L_kx_" + t)
        a("s_cmp_eq_u32 s%d, -1" % (sTk + s)); a("s_cbranch_scc0 L_kinv_" + t)
        if D: a("s_add_u32 s82, s82, 1")
        a("s_sleep 1")
        a("ds_read_b32 v%d, v%d" % (vTk, vMaddr)); a("s_waitcnt lgkmcnt(0)")
        a("v_readfirstlane_b32 s%d, v%d" % (sTk + s, vTk))
        a("s_cmp_ge_u32 s%d, %d" % (sTk + s, NTICK)); a("s_cbranch_scc1 L_kx_" + t)
        a("s_branch L_khave_" + t)
        a.label("L_kinv_" + t)
        a.c("K tickets are exhausted: from now on the issue stream is on V and walks the second mailbox")
        a("s_add_u32 s%d, s%d, %d" % (sNK, sCK, NS), "number of K rounds of this workgroup")
        a("s_mov_b32 s%d, s%d" % (sCur, sV)); a("s_mov_b32 s%d, s%d" % (sCur + 1, sV + 1))
        a("v_mov_b32 v%d, v%d" % (vCur, vVoff))
        a("s_mov_b32 s%d, s%d" % (sTk + s, sJ0))
        a("v_mov_b32 v%d, %d" % (vMaddr, MBOX2))
        a("s_branch L_khave_" + t)
        a.label("L_ksw_" + t)
        a("s_cmp_eq_u32 s%d, %d" % (sLim, BASE)); a("s_cbranch_scc0 L_kswap_" + t)
        if D: a("s_memrealtime s[94:95]")
        a.c("first round of the pool")
        a("v_mov_b32 v%d, v%d" % (vMS, vM), "max of this wave's static scores")
        a("s_mov_b32 s%d, %d" % (sLim, THB))
        a("s_cmp_eq_u32 s%d, 0" % sH0); a("s_cbranch_scc1 L_k2_" + t)
        a("s_cmp_lt_u32 s%d, %d" % (sTk + s, THB)); a("s_cbranch_scc1 L_kswap2_" + t)
        a("s_mov_b32 s%d, 0x%x" % (sLim, BIG)); a("s_branch L_kgo_" + t)
        a.label("L_kswap_" + t)
        a("s_mov_b32 s%d, 0x%x" % (sLim, BIG))
        a.label("L_kswap2_" + t)
        a("s_waitcnt vmcnt(%d)" % KW, "both q have landed")
        for i in range(8): a("v_swap_b32 v%d, v%d" % (vQ + i, vQ2 + i))
        a("s_branch L_kgo_" + t)
        a.label("L_tov_" + t)
        a("s_mov_b32 s%d, %d" % (sT3, s))
        a("s_branch L_tov")
    a.label("L_tov")
    if D: a("s_memrealtime s[54:55]")
    a("ds_write_b32 v%d, v%d" % (vPub, vRnd), "all K rounds of this wave are scored")
    a("s_cmp_eq_u32 s%d, %d" % (sLim, BASE)); a("s_cbranch_scc0 L_tov_sw")
    a("v_mov_b32 v%d, v%d" % (vMS, vM))
    a.label("L_tov_sw")
    xrow(vMS, "v_max_f32")
    a("v_mul_f32 v%d, s%d, v%d" % (vMc, sC, vMS), "true max of this wave's static scores")
    for i in range(8): a("v_mov_b32 v%d, 0" % (vOA + i))
    a("v_mov_b32 v%d, 0" % vLA); a("v_mov_b32 v%d, %s" % (vMcA, NEG))
    a("v_add_u32 v%d, %d, v%d" % (vSad, SC, vGoff), "back to round 0")
    a("s_mov_b32 s%d, %d" % (sLim, BASE))
    for s in range(NS - 1):
        a("s_cmp_eq_u32 s%d, %d" % (sT3, s)); a("s_cbranch_scc1 L_v_%d" % s)
    a("s_branch L_v_%d" % (NS - 1))

    for s in range(NS):
        t = "%d" % s
        a.label("L_v_" + t)
        a("s_cmp_lt_u32 s%d, s%d" % (sTk + s, sLim)); a("s_cbranch_scc0 L_vsw_" + t)
        a("ds_max_u32 v%d, v%d" % (vPubV, vRndV), "publish progress")
        a("ds_read_b32 v%d, v%d" % (vTk, vMaddr), "next job's ticket")
        a("%s %s, v%d" % ("ds_read_b64" if MG == 2 else "ds_read_b128", vr(vS, MG), vSad), "scores of this tile")
        a("v_add_u32 v%d, %d, v%d" % (vSad, SCR, vSad)); a("v_add_u32 v%d, 1, v%d" % (vRndV, vRndV))
        a("s_waitcnt lgkmcnt(0)")
        a("v_readfirstlane_b32 s%d, v%d" % (sTk + s, vTk))
        a("s_cmp_eq_u32 s%d, -1" % (sTk + s)); a("s_cbranch_scc1 L_vpoll_" + t)
        a.label("L_vhave_" + t)
        set_off(sTk + s)
        a("v_add_u32 v%d, 4, v%d" % (vMaddr, vMaddr))
        for m in range(MG): a("v_fma_f32 v%d, v%d, s%d, -v%d" % (vS + m, vS + m, sC, vMc))
        for m in range(MG): a("v_exp_f32 v%d, v%d" % (vS + m, vS + m))
        a("s_nop 0")
        for m in range(MG): a("v_add_f32 v%d, v%d, v%d" % (vL, vL, vS + m))
        for m in range(MG): a("v_cvt_pk_bf16_f32 v%d, v%d, v%d" % (vS + m, vS + m, vS + m))
        for m in range(MG):
            for r in range(4): a("v_and_b32 v%d, v%d, v%d" % (vC + 4 * m + r, vS + m, vMask + r))
        a("s_waitcnt vmcnt(%d)" % KW, "V tile")
        a("s_nop 1")
        for m in range(MG):
            for h in range(2):
                a("v_mfma_f32_16x16x32_bf16 %s, %s, %s, %s" % (vr(vO + 4 * h), vr(vC + 4 * m), vr(Breg(s, 2 * m + h)), vr(vO + 4 * h)))
        issue(s)
    a("s_branch L_v_0")
    for s in range(NS):
        t = "%d" % s
        a.label("L_vpoll_" + t)
        if D: a("s_add_u32 s83, s83, 1")
        a("s_sleep 1")
        a("ds_read_b32 v%d, v%d" % (vTk, vMaddr)); a("s_waitcnt lgkmcnt(0)")
        a("v_readfirstlane_b32 s%d, v%d" % (sTk + s, vTk))
        a("s_cmp_eq_u32 s%d, -1" % (sTk + s)); a("s_cbranch_scc1 L_vpoll_" + t)
        a("s_branch L_vhave_" + t)
        a.label("L_vsw_" + t)
        a("s_cmp_eq_u32 s%d, %d" % (sLim, NTICK)); a("s_cbranch_scc1 L_epi", "past head B: done")
        a("s_nop 7")
        a("s_cmp_eq_u32 s%d, %d" % (sLim, BASE)); a("s_cbranch_scc0 L_vswap_" + t)
        if D: a("s_memrealtime s[90:91]")
        a.c("first round of the pool: references become the pool's max per head (left by the ticket wave)")
        a("s_lshl_b32 s%d, s%d, 2" % (sT0, sH0)); a("s_add_u32 s%d, s%d, %d" % (sT0, sT0, MCP)); a("s_xor_b32 s%d, s%d, %d" % (sT1, sT0, MCP ^ (MCP + 4)))
        a("v_mov_b32 v%d, s%d" % (vT, sT0)); a("v_mov_b32 v%d, s%d" % (vT + 2, sT1))
        a("ds_read_b32 v%d, v%d" % (vT + 1, vT)); a("ds_read_b32 v%d, v%d" % (vMcA, vT + 2)); a("s_waitcnt lgkmcnt(0)")
        a("v_max_f32 v%d, v%d, v%d" % (vT + 1, vT + 1, vMc))
        a("v_sub_f32 v%d, v%d, v%d" % (vT, vMc, vT + 1)); a("v_mov_b32 v%d, v%d" % (vMc, vT + 1)); a("v_exp_f32 v%d, v%d" % (vT, vT))
        a("s_nop 0")
        a("v_mul_f32 v%d, v%d, v%d" % (vL, vL, vT))
        for i in range(8): a("v_mul_f32 v%d, v%d, v%d" % (vO + i, vO + i, vT))
        a("s_mov_b32 s%d, %d" % (sLim, THB))
        a("s_cmp_eq_u32 s%d, 0" % sH0); a("s_cbranch_scc1 L_v_" + t)
        a("s_cmp_lt_u32 s%d, %d" % (sTk + s, THB)); a("s_cbranch_scc1 L_vswap2_" + t)
        a("s_mov_b32 s%d, %d" % (sLim, NTICK)); a("s_branch L_v_" + t)
        a.label("L_vswap_" + t)
        a("s_mov_b32 s%d, %d" % (sLim, NTICK))
        a.label("L_vswap2_" + t)
        a.c("change of head: exchange the two accumulator sets")
        for i in range(8): a("v_swap_b32 v%d, v%d" % (vO + i, vOA + i))
        a("v_swap_b32 v%d, v%d" % (vL, vLA)); a("v_swap_b32 v%d, v%d" % (vMc, vMcA))
        a("s_branch L_v_" + t)

    f = open("gen_final.py").read()
    env = dict(locals()); env.update(vr=vr, sr=sr)
    j0 = f.index('    a.label("L_epi")'); j1 = f.index('    # ================= ticket wave')
    body = f[j0:j1].replace('''    if D: a("s_memrealtime s[56:57]")
    a("s_nop 7")''', '''    if D: a("s_memrealtime s[56:57]")
    srd(sW, sPtr + 10, WSB)
    a("s_nop 7")''')
    body = body.replace('(MBOX + 4 * NS - (W * 1024 + 128 + 4), vMaddr)', '(MBOX2 + 4 * NS - (W * 1024 + 128 + 4), vMaddr)')
    if D:
        body = body.replace('''    a.label("L_done")''', '''    if D:
        a("s_add_u32 s28, s28, 0x80000")
        a("v_mov_b32 v16, s90"); a("v_mov_b32 v17, s83"); a("v_mov_b32 v18, s68"); a("v_mov_b32 v19, s82"); a("v_mov_b32 v20, s94"); a("buffer_store_dword v20, v12, s[60:63], s28 offen offset:16")
        a("buffer_store_dwordx4 v[16:19], v12, s[60:63], s28 offen")
    a.label("L_done")''')
    import textwrap
    exec(textwrap.dedent(body), env)

    vX, vMx, vMy, vNeg = 20, 30, 31, 32
    a.label("L_helper")
    a("s_setprio 3")
    a.c("mailboxes: M[k] = j*R0 + k for the static rounds, EMPTY (-1) after them; progress words = 0")
    for i in range(4): a("v_mov_b32 v%d, -1" % (vT + i))
    a("v_lshlrev_b32 v%d, 4, v%d" % (vT + 4, vLane))
    for i in range(2 * MBN * 4 // 1024): a("ds_write_b128 v%d, %s offset:%d" % (vT + 4, vr(vT), MBOX + 1024 * i))
    a("v_add_u32 v%d, s%d, v%d" % (vT, sJ0, vLane)); a("v_lshlrev_b32 v%d, 2, v%d" % (vT + 1, vLane))
    for b in range(0, R0, 64):
        part = R0 - b < 64
        if part: a("s_bfm_b64 exec, %d, 0" % (R0 - b))
        a("ds_write_b32 v%d, v%d offset:%d" % (vT + 1, vT, MBOX + 4 * b)); a("ds_write_b32 v%d, v%d offset:%d" % (vT + 1, vT, MBOX2 + 4 * b))
        if part: a("s_mov_b64 exec, -1")
        else: a("v_add_u32 v%d, 64, v%d" % (vT, vT))
    for i in range(4): a("v_mov_b32 v%d, 0" % (vX + i))
    a("ds_write_b128 v%d, %s offset:%d" % (vZero, vr(vX), PW)); a("ds_write_b32 v%d, v%d offset:%d" % (vZero, vZero, PV))
    a("s_waitcnt lgkmcnt(0)")
    a("s_barrier")
    srd(sW, sPtr + 10, WSB); srd(sD, sPtr + 8, 256); srd_scores()
    a("s_add_u32 s%d, s%d, s%d" % (sAt, sPtr + 10, sCtl)); a("s_addc_u32 s%d, s%d, 0" % (sAt + 1, sPtr + 11))
    a("s_mov_b32 s%d, %s" % (sC, f32hex(LOG2E / 16.0)))
    a("s_mov_b32 s%d, %d" % (sNx, R0), "next mailbox slot to fill"); a("s_mov_b32 s%d, 0" % sLast, "pool counter as last seen")
    a("s_mov_b32 s%d, %d" % (sExp, R0), "next round to export"); a("s_mov_b32 s%d, %d" % (sNV, R0), "valid K rounds so far"); a("s_mov_b32 s%d, 0" % sDone)
    a("v_mov_b32 v%d, %s" % (vMx, NEG)); a("v_mov_b32 v%d, %s" % (vMy, NEG)); a("v_mov_b32 v%d, %s" % (vNeg, NEG))
    a("v_lshrrev_b32 v%d, %d, v%d" % (vX + 8, LLPR, vLane), "round inside an export / import batch")
    a("v_and_b32 v%d, %d, v%d" % (vX + 9, LPR - 1, vLane)); a("v_lshlrev_b32 v%d, 4, v%d" % (vX + 9, vX + 9), "16-byte piece inside the round")
    a("s_mov_b64 exec, 1")
    a("s_lshl_b32 s%d, s%d, 2" % (sT2, sPair)); a("s_add_u32 s%d, s%d, 128" % (sT2, sT2), "flag word of the group in d_debug")
    a("s_cmp_lg_u32 s%d, 0" % sJ); a("s_cbranch_scc1 L_h_w0")
    a.c("member 0 clears the group's control line (two pool counters, two completion counters, K-done counter), then raises the flag")
    a("buffer_store_dwordx4 %s, v%d, %s, s%d offen sc0 sc1" % (vr(vX), vZero, sr(sW), sCtl))
    a("buffer_store_dwordx4 %s, v%d, %s, s%d offen offset:16 sc0 sc1" % (vr(vX), vZero, sr(sW), sCtl))
    a("s_waitcnt vmcnt(0)")
    a("v_mov_b32 v%d, 1" % vT)
    a("buffer_store_dword v%d, v%d, %s, s%d offen sc0 sc1" % (vT, vZero, sr(sD), sT2)); a("s_waitcnt vmcnt(0)")
    def read_pw():
        a("ds_read_b128 %s, v%d offset:%d" % (vr(vT), vZero, PW)); a("s_waitcnt lgkmcnt(0)")
        a("v_min_u32 v%d, v%d, v%d" % (vT + 4, vT, vT + 1)); a("v_min3_u32 v%d, v%d, v%d, v%d" % (vT + 4, vT + 4, vT + 2, vT + 3))
        a("v_max_u32 v%d, v%d, v%d" % (vT + 5, vT, vT + 1)); a("v_max3_u32 v%d, v%d, v%d, v%d" % (vT + 5, vT + 5, vT + 2, vT + 3))
        a("s_nop 0")
        a("v_readfirstlane_b32 s%d, v%d" % (sT0, vT + 4), "slowest wave"); a("v_readfirstlane_b32 s%d, v%d" % (sPg, vT + 5), "fastest wave")
    a.label("L_h_w0")
    read_pw()
    a("s_add_u32 s%d, s%d, %d" % (sPg, sPg, NS + LA + 2 + P.tlbe)); a("s_cmp_le_u32 s%d, s%d" % (sNx, sPg)); a("s_cbranch_scc1 L_h_pre")
    a("s_sleep 16", "workers are still far from the end of their static rounds"); a("s_branch L_h_w0")
    def touch(ptr):
        step = 1 << P.tlbs
        n = (POOL * CB + step - 1) // step + 1
        a("s_lshr_b32 s%d, s%d, 8" % (sT1, sPair)); a("s_lshl_b32 s%d, s%d, 24" % (sT0, sPair))
        a("s_add_u32 s4, s%d, s%d" % (ptr, sT0)); a("s_addc_u32 s5, s%d, s%d" % (ptr + 1, sT1)); a("s_and_b32 s5, s5, 0xffff")
        a("s_mov_b32 s6, %d" % (2 * HEADB)); a("s_mov_b32 s7, 0x00020000")
        a("s_bfm_b64 exec, %d, 0" % min(n, 63))
        a("v_lshlrev_b32 v%d, %d, v%d" % (vT, P.tlbs, vLane)); a("v_add_u32 v%d, %d, v%d" % (vT, BASE * CB, vT))
        a("buffer_load_dword v%d, v%d, s[4:7], 0 offen nt" % (vT + 1, vT))
        a("s_mov_b64 exec, 1")
    a.label("L_h_pre")
    if P.tlb: touch(sPtr + 2)
    a.label("L_h_flag")
    a("buffer_load_dword v%d, v%d, %s, s%d offen sc0 sc1" % (vT, vZero, sr(sD), sT2)); a("s_waitcnt vmcnt(0)")
    a("v_readfirstlane_b32 s%d, v%d" % (sPg, vT)); a("s_cmp_lg_u32 s%d, 0" % sPg); a("s_cbranch_scc1 L_h_loop")
    a("s_sleep 4"); a("s_branch L_h_flag")

    def tickets(word, mbox, lab_next, lab_stop, kphase):
        gd, n0, n1 = (P.gdk, P.nmink, P.nmaxk) if kphase else (P.gdiv, P.nmin, P.nmax)
        assert n1 <= 31
        a("s_sub_i32 s%d, %d, s%d" % (sN, POOL, sLast), "batch = clamp(remaining >> %d, %d, %d)" % (gd, n0, n1))
        a("s_ashr_i32 s%d, s%d, %d" % (sN, sN, gd))
        a("s_max_i32 s%d, s%d, %d" % (sN, sN, n0)); a("s_min_i32 s%d, s%d, %d" % (sN, sN, n1))
        a("s_sub_i32 s%d, %d, s%d" % (sT1, CAP, sNx), "room left"); a("s_min_i32 s%d, s%d, s%d" % (sN, sN, sT1))
        a("s_cmp_le_i32 s%d, 0" % sN); a("s_cbranch_scc1 " + lab_stop)
        a("s_mov_b32 s%d, s%d" % (sLast, sN))
        a("s_atomic_add s%d, %s, 0x%x glc" % (sLast, sr(sAt, 2), word))
        a("s_lshl_b32 s%d, s%d, 2" % (sT2, sNx)); a("s_add_u32 s%d, s%d, %d" % (sT2, sT2, mbox))
        a("s_lshl_b32 s%d, 1, s%d" % (sT1, sN)); a("s_sub_u32 s%d, s%d, 1" % (sT1, sT1))
        a("s_waitcnt lgkmcnt(0)")
        if not kphase:
            a.c("bring in the scores of these rounds: 8 lanes x 16 bytes per round")
            a("s_lshl_b32 s%d, s%d, 3" % (sT0, sN)); a("s_bfm_b64 exec, s%d, 0" % sT0)
            a("v_add_u32 v%d, s%d, v%d" % (vT, sLast, vX + 8)); a("v_lshl_add_u32 v%d, v%d, 7, v%d" % (vT, vT, vX + 9))
            a("buffer_load_dwordx4 %s, v%d, %s, 0 offen %s" % (vr(vX + 4), vT, sr(sG), P.imp))
            a("v_add_u32 v%d, s%d, v%d" % (vT + 3, sNx, vX + 8)); a("v_lshl_add_u32 v%d, v%d, 7, v%d" % (vT + 3, vT + 3, vX + 9))
            a("s_waitcnt vmcnt(0)")
            a("ds_write_b128 v%d, %s offset:%d" % (vT + 3, vr(vX + 4), SC))
        a("s_mov_b64 exec, 0"); a("s_mov_b32 exec_lo, s%d" % sT1, "lanes 0..n-1 publish one ticket each")
        a("s_add_u32 s%d, s%d, %d" % (sT1, sLast, BASE))
        a("v_add_u32 v%d, s%d, v%d" % (vT + 1, sT1, vLane))
        a("v_lshlrev_b32 v%d, 2, v%d" % (vT + 2, vLane)); a("v_add_u32 v%d, s%d, v%d" % (vT + 2, sT2, vT + 2))
        a("ds_write_b32 v%d, v%d" % (vT + 2, vT + 1))
        a("s_mov_b64 exec, 1")
        if kphase:
            a.c("valid tickets of this batch: clamp(POOL - old, 0, n)")
            a("s_sub_i32 s%d, %d, s%d" % (sT1, POOL, sLast)); a("s_max_i32 s%d, s%d, 0" % (sT1, sT1)); a("s_min_i32 s%d, s%d, s%d" % (sT1, sT1, sN))
            a("s_add_u32 s%d, s%d, s%d" % (sNV, sNV, sT1))
        a("s_add_u32 s%d, s%d, s%d" % (sNx, sNx, sN))
        a("s_add_u32 s%d, s%d, s%d" % (sLast, sLast, sN))
        a("s_cmp_lt_u32 s%d, %d" % (sLast, POOL)); a("s_cbranch_scc1 " + lab_next)
    def fill_invalid(mbox):
        a("s_mov_b64 exec, 0xff")
        a("s_lshl_b32 s%d, s%d, 2" % (sT2, sNx)); a("s_add_u32 s%d, s%d, %d" % (sT2, sT2, mbox))
        a("v_lshlrev_b32 v%d, 2, v%d" % (vT, vLane)); a("v_add_u32 v%d, s%d, v%d" % (vT, sT2, vT))
        a("v_mov_b32 v%d, %d" % (vT + 1, NTICK)); a("ds_write_b32 v%d, v%d" % (vT, vT + 1))
        a("s_mov_b64 exec, 1")

    a.label("L_h_loop")
    read_pw()
    a.c("export the scores of finished pool rounds: up to 7 rounds, 8 lanes x 16 bytes each")
    a("s_mov_b32 s%d, s%d" % (sMinP, sT0))
    if P.late:
        a("s_cmp_eq_u32 s%d, 0" % sDone); a("s_cbranch_scc1 L_h_noexp", "exports wait for the end of pass 1 (one burst of writes)")
    a("s_min_u32 s%d, s%d, s%d" % (sT0, sT0, sNV)); a("s_sub_i32 s%d, s%d, s%d" % (sT0, sT0, sExp))
    a("s_min_i32 s%d, s%d, %d" % (sT0, sT0, XMAX)); a("s_cmp_le_i32 s%d, 0" % sT0); a("s_cbranch_scc1 L_h_noexp")
    a("s_lshl_b32 s%d, s%d, %d" % (sT1, sT0, LLPR)); a("s_bfm_b64 exec, s%d, 0" % sT1)
    a("v_add_u32 v%d, s%d, v%d" % (vT, sExp, vX + 8), "round")
    a("v_lshlrev_b32 v%d, 2, v%d" % (vT + 1, vT)); a("ds_read_b32 v%d, v%d offset:%d" % (vT + 2, vT + 1, MBOX), "its ticket")
    a("v_lshl_add_u32 v%d, v%d, %d, v%d" % (vT + 3, vT, LSCR, vX + 9)); a("ds_read_b128 %s, v%d offset:%d" % (vr(vX + 4), vT + 3, SC))
    a("s_add_u32 s%d, s%d, s%d" % (sExp, sExp, sT0))
    a("s_waitcnt lgkmcnt(0)")
    a("v_subrev_u32 v%d, %d, v%d" % (vT + 2, BASE, vT + 2))
    a("v_cmp_gt_u32 vcc, %d, v%d" % (POOL // 2, vT + 2), "head A?")
    a("v_lshl_add_u32 v%d, v%d, %d, v%d" % (vT + 2, vT + 2, LSCR, vX + 9))
    a("buffer_store_dwordx4 %s, v%d, %s, 0 offen %s" % (vr(vX + 4), vT + 2, sr(sG), P.exp))
    a("v_max3_f32 v%d, v%d, v%d, v%d" % (vT + 4, vX + 4, vX + 5, vX + 6)); a("v_max_f32 v%d, v%d, v%d" % (vT + 4, vT + 4, vX + 7))
    a("v_cndmask_b32 v%d, v%d, v%d, vcc" % (vT + 5, vNeg, vT + 4)); a("v_cndmask_b32 v%d, v%d, v%d, vcc" % (vT + 4, vT + 4, vNeg))
    a("v_max_f32 v%d, v%d, v%d" % (vMx, vMx, vT + 5)); a("v_max_f32 v%d, v%d, v%d" % (vMy, vMy, vT + 4))
    a("s_mov_b64 exec, 1")
    a("s_branch L_h_loop")
    a.label("L_h_noexp")
    a("s_cmp_lg_u32 s%d, 0" % sDone); a("s_cbranch_scc1 L_h_chk")
    if P.usemin: a("s_mov_b32 s%d, s%d" % (sPg, sMinP))
    a("s_add_u32 s%d, s%d, %d" % (sPg, sPg, NS + LA)); a("s_cmp_le_u32 s%d, s%d" % (sNx, sPg)); a("s_cbranch_scc1 L_h_go")
    a("s_sleep 1"); a("s_branch L_h_loop")
    a.label("L_h_go")
    tickets(0x0, MBOX, "L_h_loop", "L_h_stop", True)
    a.label("L_h_stop")
    fill_invalid(MBOX)
    a("s_mov_b32 s%d, 1" % sDone)
    a("s_branch L_h_loop")
    a.label("L_h_chk")
    a("s_cmp_ge_u32 s%d, s%d" % (sExp, sNV)); a("s_cbranch_scc1 L_h_kend")
    a("s_sleep 1"); a("s_branch L_h_loop")
    a.label("L_h_kend")
    a.c("all scores exported: publish this workgroup's max per head over them, then count it as done with K")
    a("s_mov_b64 exec, -1")
    for v in (vMx, vMy):
        for ctl in ("quad_perm:[1,0,3,2]", "quad_perm:[2,3,0,1]", "row_half_mirror", "row_mirror"): dppmax(v, ctl)
        a("s_nop 1")
        xrow(v, "v_max_f32")
    a("s_mov_b64 exec, 1")
    a("s_lshl_b32 s%d, s%d, 2" % (sT2, sJ)); a("s_add_u32 s%d, s%d, s%d" % (sT2, sT2, sCtl))
    a("buffer_store_dword v%d, v%d, %s, s%d offen offset:128 sc0 sc1" % (vMx, vZero, sr(sW), sT2))
    a("buffer_store_dword v%d, v%d, %s, s%d offen offset:160 sc0 sc1" % (vMy, vZero, sr(sW), sT2))
    a("s_waitcnt vmcnt(0)", "scores and max written through")
    a("s_mov_b32 s%d, 1" % sT1); a("s_atomic_add s%d, %s, 0x10 glc" % (sT1, sr(sAt, 2)))
    a("s_mov_b32 s%d, %d" % (sNx, R0)); a("s_mov_b32 s%d, 0" % sLast)
    a("s_waitcnt lgkmcnt(0)")
    a.label("L_h_v0")
    a("ds_read_b32 v%d, v%d offset:%d" % (vT, vZero, PV)); a("s_waitcnt lgkmcnt(0)")
    a("v_readfirstlane_b32 s%d, v%d" % (sPg, vT))
    a("s_add_u32 s%d, s%d, %d" % (sPg, sPg, NS + LAV + 4 + P.tlbe)); a("s_cmp_le_u32 s%d, s%d" % (sNx, sPg)); a("s_cbranch_scc1 L_h_vpre")
    a("s_sleep 16"); a("s_branch L_h_v0")
    a.label("L_h_vpre")
    if P.tlb: touch(sPtr + 4)
    a.label("L_h_kd")
    a("s_mov_b32 s%d, 0" % sT1); a("s_atomic_add s%d, %s, 0x10 glc" % (sT1, sr(sAt, 2))); a("s_waitcnt lgkmcnt(0)")
    a("s_cmp_ge_u32 s%d, %d" % (sT1, S)); a("s_cbranch_scc1 L_h_mx")
    a("s_sleep 4"); a("s_branch L_h_kd")
    a.label("L_h_mx")
    a("s_mov_b64 exec, 0xffff")
    a("v_lshlrev_b32 v%d, 2, v%d" % (vT, vLane))
    a("buffer_load_dword v%d, v%d, %s, s%d offen offset:128 sc0 sc1" % (vMx, vT, sr(sW), sCtl)); a("s_waitcnt vmcnt(0)")
    for ctl in ("quad_perm:[1,0,3,2]", "quad_perm:[2,3,0,1]", "row_half_mirror"): dppmax(vMx, ctl)
    a("s_mov_b64 exec, 0x101", "lane 0: head A, lane 8: head B")
    a("v_mul_f32 v%d, s%d, v%d" % (vMx, sC, vMx))
    a("v_lshrrev_b32 v%d, 1, v%d" % (vT, vLane))
    a("ds_write_b32 v%d, v%d offset:%d" % (vT, vMx, MCP))
    a("s_mov_b64 exec, 1")
    sOld, sPn, sHave = 94, 95, 91
    def vsize():
        a("s_sub_i32 s%d, %d, s%d" % (sN, POOL, sLast), "batch = clamp(remaining >> %d, %d, %d)" % (P.gdiv, P.nmin, P.nmax))
        a("s_ashr_i32 s%d, s%d, %d" % (sN, sN, P.gdiv))
        a("s_max_i32 s%d, s%d, %d" % (sN, sN, P.nmin)); a("s_min_i32 s%d, s%d, %d" % (sN, sN, P.nmax))
        a("s_sub_i32 s%d, %d, s%d" % (sT1, CAP, sNx), "room left"); a("s_min_i32 s%d, s%d, s%d" % (sN, sN, sT1))
    assert P.nmax <= XMAX
    a.label("L_h_vloop")
    a.c("no add in flight: wait until the workers come close to the end of what they have")
    a("ds_read_b32 v%d, v%d offset:%d" % (vT, vZero, PV)); a("s_waitcnt lgkmcnt(0)")
    a("v_readfirstlane_b32 s%d, v%d" % (sPg, vT))
    a("s_add_u32 s%d, s%d, %d" % (sPg, sPg, NS + LAV)); a("s_cmp_le_u32 s%d, s%d" % (sNx, sPg)); a("s_cbranch_scc1 L_h_vgo")
    a("s_sleep 1"); a("s_branch L_h_vloop")
    a.label("L_h_vgo")
    vsize()
    a("s_cmp_le_i32 s%d, 0" % sN); a("s_cbranch_scc1 L_h_vstop")
    a("s_mov_b32 s%d, s%d" % (sLast, sN)); a("s_atomic_add s%d, %s, 0xc glc" % (sLast, sr(sAt, 2)))
    a("s_mov_b32 s%d, s%d" % (sPn, sN))
    a("s_waitcnt lgkmcnt(0)")
    a.label("L_h_vhave")
    a.c("batch (old = sLast, size = sPn) is ours: import its scores, meanwhile ask for the next one if it is due")
    a("s_mov_b32 s%d, s%d" % (sOld, sLast))
    a("s_lshl_b32 s%d, s%d, %d" % (sT0, sPn, LLPR)); a("s_bfm_b64 exec, s%d, 0" % sT0)
    a("v_add_u32 v%d, s%d, v%d" % (vT, sOld, vX + 8)); a("v_lshl_add_u32 v%d, v%d, %d, v%d" % (vT, vT, LSCR, vX + 9))
    a("buffer_load_dwordx4 %s, v%d, %s, 0 offen %s" % (vr(vX + 4), vT, sr(sG), P.imp))
    a("v_add_u32 v%d, s%d, v%d" % (vT + 3, sNx, vX + 8)); a("v_lshl_add_u32 v%d, v%d, %d, v%d" % (vT + 3, vT + 3, LSCR, vX + 9))
    a("s_mov_b64 exec, 1")
    a("ds_read_b32 v%d, v%d offset:%d" % (vT, vZero, PV))
    a("s_lshl_b32 s%d, s%d, 2" % (sT2, sNx)); a("s_add_u32 s%d, s%d, %d" % (sT2, sT2, MBOX2), "mailbox slot of this batch")
    a("s_add_u32 s%d, s%d, s%d" % (sNx, sNx, sPn)); a("s_add_u32 s%d, s%d, s%d" % (sLast, sOld, sPn))
    a("s_mov_b32 s%d, 0" % sHave); a("s_mov_b32 s%d, s%d" % (sT3, sPn))
    a("s_waitcnt lgkmcnt(0)")
    a("v_readfirstlane_b32 s%d, v%d" % (sPg, vT))
    a("s_cmp_ge_u32 s%d, %d" % (sLast, POOL)); a("s_cbranch_scc1 L_h_vimp", "pool exhausted: nothing more to ask for")
    a("s_add_u32 s%d, s%d, %d" % (sPg, sPg, NS + LAV + P.vpre)); a("s_cmp_le_u32 s%d, s%d" % (sNx, sPg)); a("s_cbranch_scc0 L_h_vimp")
    vsize()
    a("s_cmp_le_i32 s%d, 0" % sN); a("s_cbranch_scc1 L_h_vimp")
    a("s_mov_b32 s%d, s%d" % (sPn, sN)); a("s_mov_b32 s%d, 1" % sHave)
    a("s_mov_b32 s%d, s%d" % (sLast, sN)); a("s_atomic_add s%d, %s, 0xc glc" % (sLast, sr(sAt, 2)))
    a.label("L_h_vimp")
    a("s_lshl_b32 s%d, s%d, %d" % (sT0, sT3, LLPR)); a("s_bfm_b64 exec, s%d, 0" % sT0)
    a("s_waitcnt vmcnt(0)")
    a("ds_write_b128 v%d, %s offset:%d" % (vT + 3, vr(vX + 4), SC))
    a("s_bfm_b64 exec, s%d, 0" % sT3, "lanes 0..n-1 publish one ticket each")
    a("s_add_u32 s%d, s%d, %d" % (sT1, sOld, BASE))
    a("v_add_u32 v%d, s%d, v%d" % (vT + 1, sT1, vLane))
    a("v_lshlrev_b32 v%d, 2, v%d" % (vT + 2, vLane)); a("v_add_u32 v%d, s%d, v%d" % (vT + 2, sT2, vT + 2))
    a("ds_write_b32 v%d, v%d" % (vT + 2, vT + 1))
    a("s_mov_b64 exec, 1")
    a("s_cmp_lg_u32 s%d, 0" % sHave); a("s_cbranch_scc0 L_h_vnext")
    a("s_waitcnt lgkmcnt(0)"); a("s_branch L_h_vhave")
    a.label("L_h_vnext")
    a("s_cmp_lt_u32 s%d, %d" % (sLast, POOL)); a("s_cbranch_scc1 L_h_vloop")
    a.label("L_h_vstop")
    fill_invalid(MBOX2)
    a("s_waitcnt lgkmcnt(0)")
    a("s_endpgm")

    lds = max(SC + CAP * SCR, P.lds)
    out = HEADER + "; @launch grid=(%d,1,1) block=(%d,1,1) lds=%d\n" % (NWG, (W + 1) * 64, lds)
    out += DOC.format(CK=CK, TK=TK, R0=R0, CB=CB, POOL=POOL)
    out += '.amdgcn_target "amdgcn-amd-amdhsa--gfx950"\n.text\n'
    out += ".globl %s_kernel\n.p2align 8\n.type %s_kernel,@function\n%s_kernel:\n" % (NAME, NAME, NAME)
    out += a.text()
    out += '.section .rodata,"a"\n.p2align 6\n.amdhsa_kernel %s_kernel\n' % NAME
    out += "  .amdhsa_next_free_vgpr %d\n  .amdhsa_next_free_sgpr 96\n  .amdhsa_accum_offset %d\n" % (nv, (nv + 3) // 4 * 4)
    out += "  .amdhsa_group_segment_fixed_size 0\n  .amdhsa_kernarg_size 48\n  .amdhsa_user_sgpr_count 2\n"
    out += "  .amdhsa_user_sgpr_kernarg_segment_ptr 1\n  .amdhsa_system_sgpr_workgroup_id_x 1\n.end_amdhsa_kernel\n"
    return out

if __name__ == "__main__":
    ap = argparse.ArgumentParser()
    ap.add_argument("--mg", type=int, default=2); ap.add_argument("--r0", type=int, default=96)
    ap.add_argument("--stages", type=int, default=2)
    ap.add_argument("--cap", type=int, default=256)
    ap.add_argument("--la", type=int, default=3); ap.add_argument("--lav", type=int, default=2)
    ap.add_argument("--gdiv", type=int, default=5); ap.add_argument("--nmax", type=int, default=7); ap.add_argument("--nmin", type=int, default=2)
    ap.add_argument("--lds", type=int, default=0); ap.add_argument("--diag", type=int, default=0)
    ap.add_argument("--exp", default="sc0 sc1"); ap.add_argument("--imp", default="sc0 sc1")
    ap.add_argument("--blk", type=int, default=4); ap.add_argument("--jrot", type=int, default=0)
    ap.add_argument("--tlbe", type=int, default=0); ap.add_argument("--prot", type=int, default=0)
    ap.add_argument("--tlb", type=int, default=0); ap.add_argument("--tlbs", type=int, default=18)
    ap.add_argument("--late", type=int, default=1); ap.add_argument("--vpre", type=int, default=2)
    ap.add_argument("--gdk", type=int, default=4); ap.add_argument("--nmink", type=int, default=2); ap.add_argument("--nmaxk", type=int, default=16)
    ap.add_argument("--policy", default="nt"); ap.add_argument("--usemin", type=int, default=0)
    ap.add_argument("-o", default="-")
    P = ap.parse_args(); t = gen(P)
    (sys.stdout if P.o == "-" else open(P.o, "w")).write(t)
```
